```python
import torch

def _softmax(x, axis=-1):
    return torch.softmax(x, dim=axis)
def _gelu(x):
    return torch.nn.functional.gelu(x, approximate="tanh")
def _silu(x):
    return torch.nn.functional.silu(x)
def _sigmoid(x):
    return torch.sigmoid(x)
def _layernorm(x, axis=-1, eps=1e-5):
    m = x.mean(dim=axis, keepdim=True)
    v = x.var(dim=axis, keepdim=True, unbiased=False)
    return (x - m) / torch.sqrt(v + eps)
def _scatter_add(tgt, idx, src, axis=0):
    return tgt.clone().index_add_(axis, idx, src)
def _segment_sum(src, seg, n):
    out = torch.zeros((n,) + src.shape[1:], dtype=src.dtype)
    return out.index_add_(0, seg, src)
def _pad(x, pw):
    flat = tuple(v for pair in reversed(pw) for v in pair)
    return torch.nn.functional.pad(x, flat)

kernel_name = 'concat_heads__sliding_block__sliding_block__prompt'

def setup_inputs():

    _w = (lambda a: (lambda t: t.to(torch.bfloat16) if t.is_floating_point() else t)(torch.as_tensor(a)))
    def _A_setup():
        B, S, D = 1, 2048, 512
        return {
            "x": _w((lambda *s: torch.randn(*s, dtype=torch.bfloat16) * 0.2)(B, S, D)),
            "wqkv": _w((lambda *s: torch.randn(*s, dtype=torch.bfloat16) * 0.4)(D, 3 * D)),
            "wo": _w((lambda *s: torch.randn(*s, dtype=torch.bfloat16) * 0.4)(D, D)),
        }
    _A_in = _A_setup()

    def _B_setup():
        B, S, D = 1, 2048, 512
        return {
            "x": _w((lambda *s: torch.randn(*s, dtype=torch.bfloat16) * 0.2)(B, S, D)),
            "wqkv": _w((lambda *s: torch.randn(*s, dtype=torch.bfloat16) * 0.4)(D, 3 * D)),
            "wo": _w((lambda *s: torch.randn(*s, dtype=torch.bfloat16) * 0.4)(D, D)),
        }
    _B_in = _B_setup()

    return {
        "A_x": _A_in["x"],
        "A_wqkv": _A_in["wqkv"],
        "A_wo": _A_in["wo"],
        "B_x": _B_in["x"],
        "B_wqkv": _B_in["wqkv"],
        "B_wo": _B_in["wo"],
    }

def reference(A_x, A_wqkv, A_wo, B_x, B_wqkv, B_wo):
    def _A_ref(x, wqkv, wo):
        B, S, D = x.shape
        H = 32; Dh = D // H; W = 256
        qkv = (lambda x, *d: x.permute(*d))((x @ wqkv).reshape(B, S, 3, H, Dh), 2, 0, 3, 1, 4)
        q, k, v = qkv[0], qkv[1], qkv[2]
        scores = torch.einsum("bhqd,bhkd->bhqk", q, k) * (Dh ** -0.5)
        idx = torch.arange(S)
        mask = (idx[:, None] - idx[None, :] >= 0) & (idx[:, None] - idx[None, :] < W)
        scores = torch.where(mask[None, None], scores, -1e9)
        p = _softmax(scores, axis=-1)
        o = torch.einsum("bhqk,bhkd->bhqd", p, v)
        return (lambda x, *d: x.permute(*d))(o, 0, 2, 1, 3).reshape(B, S, D) @ wo

    def _B_ref(x, wqkv, wo):
        B, S, D = x.shape
        H = 32; Dh = D // H; W = 256
        qkv = (lambda x, *d: x.permute(*d))((x @ wqkv).reshape(B, S, 3, H, Dh), 2, 0, 3, 1, 4)
        q, k, v = qkv[0], qkv[1], qkv[2]
        scores = torch.einsum("bhqd,bhkd->bhqk", q, k) * (Dh ** -0.5)
        idx = torch.arange(S)
        mask = (idx[:, None] - idx[None, :] >= 0) & (idx[:, None] - idx[None, :] < W)
        scores = torch.where(mask[None, None], scores, -1e9)
        p = _softmax(scores, axis=-1)
        o = torch.einsum("bhqk,bhkd->bhqd", p, v)
        return (lambda x, *d: x.permute(*d))(o, 0, 2, 1, 3).reshape(B, S, D) @ wo

    a = _A_ref(A_x, A_wqkv, A_wo)
    b = _B_ref(B_x, B_wqkv, B_wo)
    return torch.concatenate([a, b], axis=-1)
```

```python
import re
TRANS = ('v_exp_f32','v_rcp_f32','v_log_f32','v_rsq_f32','v_sqrt_f32')
def regs_of(tok):
    tok = tok.strip().strip('|').lstrip('-').strip('|')
    m = re.fullmatch(r'([vs])(\d+)', tok)
    if m: return [(m.group(1), int(m.group(2)))]
    m = re.fullmatch(r'([vs])\[(\d+):(\d+)\]', tok)
    if m: return [(m.group(1), i) for i in range(int(m.group(2)), int(m.group(3))+1)]
    if tok == 'vcc': return [('s', 106), ('s', 107)]
    if tok == 'exec': return [('s', 126), ('s', 127)]
    if tok == 'm0': return [('s', 124)]
    return []
class Ins:
    def __init__(s, text):
        s.text = text
        t = text.split(';')[0].strip()
        s.label = t.endswith(':')
        p = t.split(None, 1)
        s.op = p[0] if p else ''
        ops = [x.strip() for x in p[1].split(',')] if len(p) > 1 else []
        if ops: ops[-1] = ops[-1].split()[0] if ops[-1].split() else ops[-1]
        s.ops = ops
        op = s.op
        s.mfma = op.startswith('v_mfma')
        s.valu = op.startswith('v_') and not s.mfma
        s.trans = op.replace('_e32','').replace('_e64','') in TRANS
        s.vmem = op.startswith(('buffer_', 'global_'))
        s.ds = op.startswith('ds_')
        s.salu = op.startswith('s_')
        s.store = s.vmem and 'store' in op
        s.lds_dma = s.vmem and ' lds' in t
        R = [regs_of(o) for o in ops]
        s.w = []; s.r = []; s.srcc = []; s.ab = []
        if s.label or not ops: return
        if s.mfma:
            s.w = R[0]; s.ab = R[1] + R[2]; s.srcc = R[3]; s.r = s.ab + s.srcc
        elif op.startswith('v_cmp'):
            s.w = R[0]; s.r = sum(R[1:], [])
        elif op.startswith('v_permlane32_swap'):
            s.w = R[0] + R[1]; s.r = R[0] + R[1]
        elif s.valu:
            s.w = R[0]; s.r = sum(R[1:], [])
            if op.startswith(('v_fmac',)): s.r += R[0]
        elif s.vmem:
            if s.store or s.lds_dma: s.r = sum(R, [])
            else: s.w = R[0]; s.r = sum(R[1:], [])
            if s.lds_dma: s.r += [('s', 124)]
        elif s.ds:
            if 'write' in op: s.r = sum(R, [])
            else: s.w = R[0]; s.r = sum(R[1:], [])
        elif s.salu:
            if op.startswith(('s_cmp', 's_cbranch', 's_branch', 's_waitcnt', 's_nop', 's_barrier', 's_sleep', 's_endpgm', 's_setprio')):
                s.r = sum(R, [])
            else:
                s.w = R[0]; s.r = sum(R[1:], [])
    def states(s):
        if s.label: return 0
        if s.op == 's_nop': return int(s.ops[0], 0) + 1
        return 1
def need(p, c):
    n = 0
    pw = set(p.w); cr = set(c.r); cw = set(c.w)
    pwv = {x for x in pw if x[0] == 'v'}; pws = {x for x in pw if x[0] == 's'}
    if p.mfma:
        if c.mfma:
            if pwv & set(c.ab): n = max(n, 12)
            if pwv & set(c.srcc):
                if p.w != c.srcc: n = max(n, 10)
        elif c.valu or c.vmem or c.ds:
            if pwv & (cr | cw): n = max(n, 12)
        if c.valu and set(p.srcc) & cw: n = max(n, 7)
        if (c.ds or c.vmem) and set(p.srcc) & cw: n = max(n, 7)
    if p.valu:
        if c.mfma and pwv & cr: n = max(n, 2)
        if c.mfma and ('s', 126) in pws: n = max(n, 4)
        if c.op.startswith('v_permlane') and pwv & cr: n = max(n, 2)
        if c.op.startswith(('v_readfirstlane', 'v_readlane')) and pwv & cr: n = max(n, 1)
        if p.trans and c.valu and not c.trans and pwv & cr: n = max(n, 1)
        if p.trans and c.mfma and pwv & cr: n = max(n, 2)
        if c.vmem and pws & cr: n = max(n, 5)
        if c.valu and pws & cr: n = max(n, 2)
        if c.salu and pws & cr: n = max(n, 1)
        if c.op.startswith('s_cbranch_vcc') and ('s', 106) in pws: n = max(n, 1)
    if p.salu and ('s', 124) in pws and c.lds_dma: n = max(n, 1)
    if (p.store or (p.ds and 'write' in p.op)) and ('x4' in p.op or 'x3' in p.op or 'b128' in p.op):
        data = set(regs_of(p.ops[0])) if p.store else set(regs_of(p.ops[1]))
        if data & cw: n = max(n, 2)
    return n
class Asm:
    def __init__(s): s.L = []; s.uid = 0
    def __call__(s, text):
        for line in text.split('\n'):
            line = line.strip()
            if line: s.L.append(line)
    def lab(s, base):
        s.uid += 1
        return f'L_{base}_{s.uid}'
    def finish(s):
        out = []
        ins = [Ins(t) if not t.startswith(('.', ';')) else t for t in s.L]
        nadd = 0
        def fix(hist, c):
            dist = 0; req = 0
            for p in reversed(hist[-24:]):
                k = need(p, c) - dist
                req = max(req, k)
                dist += p.states()
                if dist >= 20: break
            return req
        hist = []
        for c in ins:
            if isinstance(c, str): out.append(c); continue
            if not c.label:
                k = fix(hist, c)
                if k > 0:
                    nop = Ins(f's_nop {k-1}'); out.append(nop); hist.append(nop); nadd += 1
            out.append(c); hist.append(c)
        real = [x for x in out if not isinstance(x, str)]
        labpos = {x.text.split(':')[0].strip(): i for i, x in enumerate(real) if x.label}
        for i, x in enumerate(real):
            if x.op.startswith(('s_cbranch', 's_branch')):
                tgt = labpos[x.ops[0]]
                h = real[max(0, i-24):i+1]
                for c in real[tgt:tgt+20]:
                    if c.label: continue
                    k = fix(h, c)
                    assert k <= 0, f'hazard across branch {x.text} -> {c.text} needs {k}'
                    h = h + [c]
        return '\n'.join(x if isinstance(x, str) else ('' if x.label else '    ') + x.text for x in out) + '\n', nadd
```

```python
import sys, struct
from asmlib import Asm
NAME = 'concat_heads__sliding_block__sliding_block__prompt'
PROF = '--prof' in sys.argv
FORCE_FB = '--force-fb' in sys.argv
def f2u(x): return struct.unpack('<I', struct.pack('<f', x))[0]
A = Asm()
SLOT = 40960
WS_O = 8 << 20; WS_FL = 12 << 20; WS_ST = 13 << 20; WS_SZ = 14 << 20
L_K = 65536; L_V = 81920; L_Q = 98304; L_M = 114688; L_X = 118784
CSC = 0.25 * 1.4426950408889634
BIG = 1e30
sW = 3; X, Wq, WO, WS, OUT, DBG = 4, 8, 12, 16, 20, 24
sB, sRB, sHG, sWG = 28, 29, 30, 31
sXo, sWo, sSl, sIt, sT, sT2, sN1, sN2 = 50, 51, 52, 53, 54, 55, 56, 57
sHalf = 60; sC = 62; sSpin = 63; sFl = 64; sOb = 65; sT3 = 66; sLo = 67; sHi = 68
sST = 72
nst = [0]
def srd(i): return f's[{i}:{i+3}]'
def vr(a, n): return f'v[{a}:{a+n-1}]'
def stamp(idx):
    if PROF:
        A(f's_memtime s[{sST+2*idx}:{sST+2*idx+1}]\ns_waitcnt lgkmcnt(0)')
KF = 16; QF = 64; OA = 72; SB = 104; MK = 136; VF = 152
ACC = 16; FR = 112
MFMA = 'v_mfma_f32_32x32x16_bf16'

def prologue():
    A(f'''s_cmp_ge_u32 s2, 256
    s_cbranch_scc1 L_end
    s_load_dwordx8 s[32:39], s[0:1], 0
    s_load_dwordx8 s[40:47], s[0:1], 32
    s_load_dwordx2 s[48:49], s[0:1], 64''')
    if PROF: A(f's_memrealtime s[100:101]')
    A(f'''v_lshrrev_b32 v1, 6, v0
    v_and_b32 v0, 63, v0
    s_and_b32 s{sT}, s2, 7
    v_readfirstlane_b32 s{sW}, v1
    s_lshr_b32 s{sT2}, s2, 3
    s_lshr_b32 s{sB}, s{sT}, 2
    s_and_b32 s{sT}, s{sT}, 3
    s_lshl_b32 s{sT}, s{sT}, 2
    s_lshr_b32 s{sRB}, s{sT2}, 3
    s_add_u32 s{sRB}, s{sRB}, s{sT}
    s_and_b32 s{sHG}, s{sT2}, 7
    s_lshl_b32 s{sWG}, s{sB}, 4
    s_add_u32 s{sWG}, s{sWG}, s{sRB}
    s_lshl_b32 s{sWG}, s{sWG}, 3
    s_add_u32 s{sWG}, s{sWG}, s{sHG}
    s_mov_b32 s{X+2}, 0x200000
    s_mov_b32 s{X+3}, 0x20000
    s_mov_b32 s{Wq+2}, 0x180000
    s_mov_b32 s{Wq+3}, 0x20000
    s_mov_b32 s{WO+2}, 0x80000
    s_mov_b32 s{WO+3}, 0x20000
    s_mov_b32 s{WS+2}, {WS_SZ}
    s_mov_b32 s{WS+3}, 0x20000
    s_mov_b32 s{OUT+2}, 0x400000
    s_mov_b32 s{OUT+3}, 0x20000
    s_mov_b32 s{DBG+2}, 256
    s_mov_b32 s{DBG+3}, 0x20000
    s_mov_b32 s{sHalf}, 0xffff
    s_mov_b32 s{sHalf+1}, 0xffff
    s_cmp_eq_u32 s{sB}, 0
    s_waitcnt lgkmcnt(0)
    s_cselect_b32 s{X}, s32, s38
    s_cselect_b32 s{X+1}, s33, s39
    s_cselect_b32 s{Wq}, s34, s40
    s_cselect_b32 s{Wq+1}, s35, s41
    s_cselect_b32 s{WO}, s36, s42
    s_cselect_b32 s{WO+1}, s37, s43
    s_mov_b32 s{OUT}, s44
    s_mov_b32 s{OUT+1}, s45
    s_mov_b32 s{DBG}, s46
    s_mov_b32 s{DBG+1}, s47
    s_mov_b32 s{WS}, s48
    s_mov_b32 s{WS+1}, s49''')
    stamp(0)
    A(f'''s_cmp_ge_u32 s{sW}, 4
    s_cbranch_scc1 L_loader''')

def preset_ones():
    A(f'v_mov_b32 v1, 0x3f803f80')
    for i in range(96): A(f'v_mov_b32 v{VF+i}, v1')

def common_consts():
    A(f'''s_lshl_b32 s{sFl}, s{sWG}, 7
    s_add_u32 s{sFl}, s{sFl}, {WS_FL}
    s_mov_b32 s{sC}, {f2u(CSC)}
    s_mov_b32 s{sLo}, {f2u(2.0**-40)}
    s_mov_b32 s{sHi}, {f2u(2.0**40)}''')

def loader_p1():
    A('L_loader:')
    A(f'''v_lshrrev_b32 v6, 3, v0
    v_and_b32 v7, 7, v0
    v_lshrrev_b32 v8, 4, v0
    v_xor_b32 v9, v7, v8
    v_lshlrev_b32 v9, 4, v9
    v_lshl_add_u32 v2, v6, 10, v9
    v_xor_b32 v3, 64, v2
    v_and_b32 v8, 1, v8
    v_lshlrev_b32 v8, 2, v8
    v_xor_b32 v9, v7, v8
    v_lshlrev_b32 v9, 4, v9
    v_mul_u32_u24 v4, 3072, v6
    v_add_u32 v4, v4, v9
    v_lshl_add_u32 v5, v6, 10, v9
    s_sub_u32 s{sT}, s{sW}, 4
    s_lshl_b32 s{sXo}, s{sRB}, 17
    s_lshl_b32 s{sT2}, s{sT}, 15
    s_add_u32 s{sXo}, s{sXo}, s{sT2}
    s_mul_i32 s{sWo}, s{sT}, {16*3072}
    s_lshl_b32 s{sT2}, s{sHG}, 7
    s_add_u32 s{sWo}, s{sWo}, s{sT2}
    s_lshl_b32 s{sN1}, s{sT}, 12
    s_lshl_b32 s{sN2}, s{sT}, 11
    s_add_u32 s{sN2}, s{sN2}, 16384
    s_mov_b32 s{sIt}, 0
    L_ld_loop:''')
    for j in range(4):
        A(f'''s_add_u32 m0, s{sN1}, {j*1024}
        s_add_u32 s{sT}, s{sXo}, {j*8192}
        buffer_load_dwordx4 v{2+(j&1)}, {srd(X)}, s{sT} offen lds''')
    for seg in range(3):
        for q in range(2):
            A(f'''s_add_u32 m0, s{sN2}, {seg*8192+q*1024}
            s_add_u32 s{sT}, s{sWo}, {seg*1024+q*8*3072}
            buffer_load_dwordx4 v4, {srd(Wq)}, s{sT} offen lds''')
    A(f'''s_add_u32 s{sXo}, s{sXo}, 128
    s_add_u32 s{sWo}, s{sWo}, {64*3072}
    s_mov_b32 s{sT}, {SLOT}
    s_cmp_eq_u32 s{sIt}, 3
    s_cselect_b32 s{sT}, {-3*SLOT & 0xffffffff}, s{sT}
    s_add_u32 s{sN1}, s{sN1}, s{sT}
    s_add_u32 s{sN2}, s{sN2}, s{sT}
    s_add_u32 s{sIt}, s{sIt}, 1
    s_cmp_lt_u32 s{sIt}, 4
    s_cbranch_scc1 L_ld_loop
    s_cmp_lg_u32 s{sIt}, 4
    s_cbranch_scc1 L_ld_skip''')
    preset_ones()
    common_consts()
    A(f'''s_waitcnt vmcnt(30)
    s_barrier
    L_ld_skip:
    s_waitcnt vmcnt(20)
    s_barrier
    s_cmp_lt_u32 s{sIt}, 8
    s_cbranch_scc1 L_ld_loop
    s_waitcnt vmcnt(10)
    s_barrier''')
    A(f'''v_mov_b32 v6, 0
    buffer_load_dword v7, v6, {srd(DBG)}, 0 offen sc1
    s_sub_u32 s{sT}, s{sW}, 4
    s_lshl_b32 s{sN1}, s{sT}, 14
    s_lshl_b32 s{sWo}, s{sT}, 17
    s_lshl_b32 s{sT2}, s{sHG}, 7
    s_add_u32 s{sWo}, s{sWo}, s{sT2}
    s_mov_b32 s{sIt}, 0
    L_wo_loop:''')
    for j in range(4):
        A(f'''s_add_u32 m0, s{sN1}, {j*1024}
        s_add_u32 s{sT}, s{sWo}, {j*8192}
        buffer_load_dwordx4 v5, {srd(WO)}, s{sT} offen lds''')
    A(f'''s_add_u32 s{sN1}, s{sN1}, 4096
    s_add_u32 s{sWo}, s{sWo}, 32768
    s_add_u32 s{sIt}, s{sIt}, 1
    s_cmp_lt_u32 s{sIt}, 4
    s_cbranch_scc1 L_wo_loop
    s_waitcnt vmcnt(16)
    s_mov_b32 s{sSpin}, 0
    L_gate:
    v_readfirstlane_b32 s{sT}, v7
    s_cmp_lg_u32 s{sT}, 0
    s_cbranch_scc1 L_gate_ok
    s_sleep 4
    buffer_load_dword v7, v6, {srd(DBG)}, 0 offen sc1
    s_add_u32 s{sSpin}, s{sSpin}, 1
    s_cmp_lt_u32 s{sSpin}, 0x10000
    s_waitcnt vmcnt(0)
    s_cbranch_scc1 L_gate
    L_gate_ok:
    s_barrier''')
    A(f'''v_and_b32 v6, 31, v0
    v_lshrrev_b32 v7, 5, v0
    v_lshlrev_b32 v7, 2, v7
    v_sub_u32 v6, v6, v7
    v_cvt_f32_i32 v6, v6
    s_mov_b32 s{sT}, {f2u(-BIG)}
    v_lshlrev_b32 v8, 4, v0''')
    for r in range(16):
        c = 8*(r//4) + r % 4
        A(f'v_sub_f32 v{MK+r}, {f2u(float(c))}, v6')
        A(f'v_med3_f32 v{MK+r}, v{MK+r}, 0, 1.0')
        A(f'v_mul_f32 v{MK+r}, s{sT}, v{MK+r}')
    A(f'v_add_u32 v8, {L_M}, v8')
    for g in range(4):
        A(f'ds_write_b128 v8, {vr(MK+4*g,4)} offset:{g*1024}')
    A(f'''s_barrier
    s_waitcnt vmcnt(0) lgkmcnt(0)
    s_barrier''')

def frag_reads(buf, ks):
    F = FR + 20*buf
    xs = [f'ds_read_b128 {vr(F+4*mt,4)}, v{2+ks} offset:{mt*4096}' for mt in range(2)]
    def wrd(seg): return [f'ds_read_b64_tr_b16 {vr(F+8+4*seg+2*j,2)}, v6 offset:{16384+seg*8192+ks*2048+j*512}' for j in range(2)]
    return [xs[0]] + wrd(0) + [xs[1]] + wrd(1) + wrd(2)
def mfmas(buf):
    F = FR + 20*buf
    L = []
    for seg in range(3):
        for mt in range(2):
            acc = vr(ACC + (seg*2+mt)*16, 16)
            x = vr(F+4*mt, 4); w = vr(F+8+4*seg, 4)
            a, b = (w, x) if seg < 2 else (x, w)
            L.append(f'{MFMA} {acc}, {a}, {b}, {acc}')
    return L

def compute_p1():
    A(f'''s_or_b32 s{sT}, s2, s{sW}
    s_cmp_lg_u32 s{sT}, 0
    s_cbranch_scc1 L_noinit
    v_lshrrev_b32 v1, 2, v0
    v_and_b32 v2, 3, v0
    v_lshlrev_b32 v1, 7, v1
    v_lshl_add_u32 v1, v2, 4, v1
    v_mov_b32 v4, 0
    v_mov_b32 v5, 0
    v_mov_b32 v6, 0
    v_mov_b32 v7, 0
    s_mov_b32 s{sT}, {WS_FL}
    L_init:
    buffer_store_dwordx4 v[4:7], v1, {srd(WS)}, s{sT} offen sc1
    s_add_u32 s{sT}, s{sT}, 2048
    s_cmp_lt_u32 s{sT}, {WS_FL+32768}
    s_cbranch_scc1 L_init
    v_mov_b32 v2, 1
    s_waitcnt vmcnt(0)
    buffer_store_dword v2, v4, {srd(DBG)}, 0 offen sc1
    L_noinit:''')
    A(f'''v_and_b32 v7, 31, v0
    v_lshrrev_b32 v8, 5, v0
    v_lshrrev_b32 v9, 1, v7
    v_and_b32 v9, 7, v9
    v_xor_b32 v9, v9, v8
    v_lshlrev_b32 v9, 4, v9
    v_lshl_add_u32 v2, v7, 7, v9
    s_lshr_b32 s{sT}, s{sW}, 1
    s_lshl_b32 s{sT}, s{sT}, 13
    v_add_u32 v2, s{sT}, v2
    v_xor_b32 v3, 32, v2
    v_xor_b32 v4, 64, v2
    v_xor_b32 v5, 96, v2
    v_bfe_u32 v9, v0, 2, 2
    v_lshl_add_u32 v9, v8, 3, v9
    v_lshlrev_b32 v6, 7, v9
    v_bfe_u32 v9, v0, 4, 1
    v_lshlrev_b32 v9, 1, v9
    v_bfe_u32 v10, v0, 1, 1
    v_or_b32 v9, v9, v10
    v_bfe_u32 v10, v0, 3, 1
    s_and_b32 s{sT}, s{sW}, 1
    v_xor_b32 v10, s{sT}, v10
    v_lshl_or_b32 v9, v10, 2, v9
    v_lshl_add_u32 v6, v9, 4, v6
    v_and_b32 v9, 1, v0
    v_lshl_add_u32 v6, v9, 3, v6''')
    for i in range(96): A(f'v_mov_b32 v{ACC+i}, 0')
    preset_ones()
    common_consts()
    A(f's_mov_b32 s{sIt}, 0\ns_barrier')
    stamp(1)
    for r in frag_reads(0, 0): A(r)
    A('L_p1_loop:')
    for ks in range(4):
        cur = ks & 1
        M = mfmas(cur)
        if ks < 3:
            R = frag_reads(cur ^ 1, ks+1)
            A('s_waitcnt lgkmcnt(5)'); A(M[0]); A(R[0]); A(R[1])
            A('s_waitcnt lgkmcnt(6)'); A(M[1]); A(R[2]); A(R[3])
            A('s_waitcnt lgkmcnt(6)'); A(M[2]); A(R[4]); A(R[5])
            A(M[3]); A(R[6]); A(R[7])
            A('s_waitcnt lgkmcnt(8)'); A(M[4]); A(M[5])
        else:
            R = frag_reads(0, 0)
            A('s_waitcnt lgkmcnt(5)'); A(M[0])
            A(f's_and_b32 s{sT2}, s{sIt}, 3\ns_mov_b32 s{sT}, {SLOT}')
            A(f's_cmp_eq_u32 s{sT2}, 3\ns_cselect_b32 s{sT}, {-3*SLOT & 0xffffffff}, s{sT}')
            A('s_waitcnt lgkmcnt(4)'); A(M[1])
            for i in range(2, 7): A(f'v_add_u32 v{i}, s{sT}, v{i}')
            A('s_waitcnt lgkmcnt(0)\ns_barrier')
            A(M[2]); A(R[0]); A(R[1])
            A(M[3]); A(R[2]); A(R[3])
            A(M[4]); A(R[4]); A(R[5])
            A(f's_add_u32 s{sIt}, s{sIt}, 1\ns_cmp_lt_u32 s{sIt}, 8')
            A(M[5]); A(R[6]); A(R[7])
            A('s_cbranch_scc1 L_p1_loop')
    stamp(2)
    A(f'''v_lshlrev_b32 v7, 4, v0
    v_bfe_u32 v10, v0, 4, 1
    v_and_b32 v11, 15, v0
    v_lshrrev_b32 v12, 5, v0
    v_lshl_or_b32 v11, v12, 4, v11
    v_lshlrev_b32 v11, 4, v11
    v_lshl_add_u32 v8, v10, 12, v11
    v_lshl_add_u32 v9, v10, 13, v11
    s_and_b32 s{sT}, s{sW}, 1
    s_lshr_b32 s{sT2}, s{sW}, 1
    s_lshl_b32 s{sN1}, s{sT}, 13
    s_lshl_b32 s{sT3}, s{sT2}, 11
    s_add_u32 s{sN1}, s{sN1}, s{sT3}
    s_add_u32 s{sN1}, s{sN1}, 65536
    v_add_u32 v10, s{sN1}, v7
    v_add_u32 v8, s{sN1}, v8
    s_lshl_b32 s{sN2}, s{sWG}, 15
    s_lshl_b32 s{sT}, s{sT}, 14
    s_add_u32 s{sN2}, s{sN2}, s{sT}
    s_add_u32 s{sN2}, s{sN2}, s{sT3}
    s_add_u32 s{sN1}, s{sN2}, 8192
    s_add_u32 s{sT}, s{sN2}, 4096
    s_waitcnt lgkmcnt(0)''')
    tmp = FR
    def cvt8(acc, dst):
        for i in range(8): A(f'v_cvt_pk_bf16_f32 v{dst+i}, v{acc+2*i}, v{acc+2*i+1}')
    n = 0
    for mt in range(2):
        acc = ACC + (1*2+mt)*16; d = tmp + 8*(n % 5); n += 1
        cvt8(acc, d)
        for e in range(2):
            A(f'buffer_store_dwordx4 {vr(d+4*e,4)}, v7, {srd(WS)}, s{sN1 if e else sN2} offen offset:{mt*1024} sc1')
            A(f'ds_write_b128 v10, {vr(d+4*e,4)} offset:{e*4096+mt*1024}')
    for mt in range(2):
        acc = ACC + (2*2+mt)*16; d = tmp + 8*(n % 5); n += 1
        cvt8(acc, d)
        for a in range(2):
            A(f'buffer_store_dwordx4 {vr(d+4*a,4)}, v9, {srd(WS)}, s{sT} offen offset:{mt*1024+a*512} sc1')
            A(f'ds_write_b128 v8, {vr(d+4*a,4)} offset:{16384+mt*1024+a*512}')
    for mt in range(2):
        acc = ACC + mt*16
        for i in range(16): A(f'v_mul_f32 v{acc+i}, s{sC}, v{acc+i}')
        cvt8(acc, acc)
        for e in range(2):
            A(f'ds_write_b128 v10, {vr(acc+4*e,4)} offset:{32768+e*4096+mt*1024}')
    A('s_waitcnt lgkmcnt(0)\ns_barrier')
    stamp(3)

def kf(t): return KF + 4*(t+8)
def vf(t, a): return VF + 8*(t+8) + 4*a
UNITS = {0: dict(q=(0, 3),
                 own=[(0,0,1),(1,0,0),(1,1,0),(1,2,0),(1,3,1)],
                 C=[(0,-5,0),(1,-5,1),(0,-6,0),(0,-7,0),(0,-8,1)]),
         1: dict(q=(1, 2),
                 own=[(0,0,0),(0,1,1),(1,0,0),(1,1,0),(1,2,1)],
                 C=[(0,-5,0),(1,-5,0),(0,-6,0),(1,-6,1),(0,-7,1)])}
for U in UNITS.values(): U['B'] = [(qi, t, 0) for t in (-1,-2,-3,-4) for qi in (0, 1)]
def qk(u, sb, cin=None):
    qi, t, m = u
    c = cin if cin else (vr(MK,16) if m else '0')
    return f'{MFMA} {vr(sb,16)}, {vr(kf(t),4)}, {vr(QF+4*qi,4)}, {c}'
def pv(u, sb, a, first):
    qi, t, m = u
    o = vr(OA+16*qi, 16)
    return f'{MFMA} {o}, {vr(vf(t,a),4)}, {vr(sb+8*a,4)}, {"0" if first else o}'
def segment(units, started, pre_qk=None, pre_pv=None, mid=None):
    n = len(units)
    def QK(i):
        if pre_qk: pre_qk(units[i])
        A(qk(units[i], SB+16*(i & 1)))
    def PV(i, a):
        u = units[i]
        if pre_pv: pre_pv(u)
        first = (u[0] not in started)
        started.add(u[0])
        A(pv(u, SB+16*(i & 1), a, first))
    QK(0)
    if n > 1: QK(1)
    for i in range(n):
        S = SB + 16*(i & 1)
        e = lambda r: A(f'v_exp_f32 v{S+r}, v{S+r}')
        def c(j):
            d = S + j if j < 4 else S + 4 + j
            A(f'v_cvt_pk_bf16_f32 v{d}, v{S+2*j}, v{S+2*j+1}')
        if mid and i in mid: mid[i]()
        e(0); e(1)
        if i > 0:
            PV(i-1, 1)
            if i+1 < n: QK(i+1)
        for j in range(7):
            e(2*j+2); c(j); e(2*j+3)
            if j == 4: PV(i, 0)
        A('s_nop 0'); c(7)
    PV(n-1, 1)

def poll(vaddr, lab):
    A(f'''s_mov_b32 s{sSpin}, 0
    {lab}:
    buffer_load_dword v15, v{vaddr}, {srd(WS)}, 0 offen sc1
    s_add_u32 s{sSpin}, s{sSpin}, 1
    s_waitcnt vmcnt(0)
    v_cmp_ne_u32 vcc, 1, v15
    s_cmp_ge_u32 s{sSpin}, 0x10000
    s_cbranch_scc1 {lab}_ok
    s_cbranch_vccz {lab}_ok
    s_sleep 1
    s_branch {lab}
    {lab}_ok:''')

def set_flag(dw):
    A(f'''s_lshl_b32 s{sT}, s{sW}, 2
    s_add_u32 s{sT}, s{sT}, s{sFl}
    v_mov_b32 v14, 1
    v_mov_b32 v13, 0
    s_mov_b64 exec, 1
    s_waitcnt vmcnt(0)
    buffer_store_dword v14, v13, {srd(WS)}, s{sT} offen offset:{dw*4} sc1
    s_mov_b64 exec, -1''')

def finalize(fb_label):
    for qi in range(2):
        o = OA + 16*qi
        A(f'v_rcp_f32 v{o+9}, v{o+8}')
        if fb_label:
            A(f'v_cmp_lt_f32 s[{70 if qi else 58}:{71 if qi else 59}], s{sLo}, v{o+8}')
            A(f'v_cmp_gt_f32 vcc, s{sHi}, v{o+8}')
            A(f's_and_b64 s[{70 if qi else 58}:{71 if qi else 59}], s[{70 if qi else 58}:{71 if qi else 59}], vcc')
        for j in range(8): A(f'v_mul_f32 v{o+j}, v{o+j}, v{o+9}')
        for j in range(4): A(f'v_cvt_pk_bf16_f32 v{SB+4*qi+j}, v{o+2*j}, v{o+2*j+1}')
        if fb_label:
            A(f'v_add_f32 v{o+10}, |v{o}|, |v{o+1}|')
            for j in range(2, 8): A(f'v_add_f32 v{o+10}, v{o+10}, |v{o+j}|')
    if fb_label:
        A(f'''v_add_f32 v{OA+10}, v{OA+10}, v{OA+26}
        s_and_b64 s[58:59], s[58:59], s[70:71]
        s_mov_b32 s{sT}, 0x7f800000
        v_cmp_gt_f32 vcc, s{sT}, v{OA+10}
        s_and_b64 s[58:59], s[58:59], vcc
        s_cmp_eq_u64 s[58:59], -1''')
        A(f's_branch {fb_label}' if FORCE_FB else f's_cbranch_scc0 {fb_label}')

def attention(ty):
    U = UNITS[ty]
    A(f'''s_and_b32 s{sT}, s{sW}, 3
    s_lshl_b32 s{sT2}, s{sT}, 12
    s_add_u32 s{sT2}, s{sT2}, 65536
    v_lshlrev_b32 v2, 4, v0
    v_add_u32 v7, s{sT2}, v2
    v_and_b32 v11, 15, v0
    v_lshrrev_b32 v12, 5, v0
    v_lshl_or_b32 v11, v12, 4, v11
    v_lshlrev_b32 v3, 4, v11
    v_add_u32 v8, s{sT2}, v3
    v_add_u32 v9, {L_M}, v2
    v_add_u32 v3, 4096, v3''')
    nown = 4 if ty == 0 else 3
    for qi in range(2): A(f'ds_read_b128 {vr(QF+4*qi,4)}, v7 offset:{32768+U["q"][qi]*1024}')
    for t in range(nown): A(f'ds_read_b128 {vr(kf(t),4)}, v7 offset:{t*1024}')
    for g in range(4): A(f'ds_read_b128 {vr(MK+4*g,4)}, v9 offset:{g*1024}')
    A(f's_mov_b64 exec, s[{sHalf}:{sHalf+1}]')
    for t in range(nown):
        for a in range(2): A(f'ds_read_b128 {vr(vf(t,a),4)}, v8 offset:{16384+t*1024+a*512}')
    A('s_mov_b64 exec, -1')
    A(f'''s_lshl_b32 s{sN1}, s{sWG}, 2
    s_add_u32 s{sN1}, s{sN1}, s{sT}
    s_lshl_b32 s{sOb}, s{sN1}, 12
    s_add_u32 s{sOb}, s{sOb}, {WS_O}
    s_lshl_b32 s{sN1}, s{sN1}, 13
    s_sub_u32 s{sN2}, s{sN1}, {2*32*8192}
    s_sub_u32 s{sN1}, s{sN1}, {32*8192}
    s_lshr_b32 s{sT}, s{sT}, 1
    s_lshl_b32 s{sT}, s{sT}, 2
    s_add_u32 s{sT}, s{sT}, s{sFl}
    s_sub_u32 s{sT}, s{sT}, 1024
    s_cmp_ge_u32 s{sRB}, 2
    s_cselect_b32 s{sT2}, 1024, 0
    v_and_b32 v4, 1, v0
    v_lshlrev_b32 v4, 3, v4
    v_add_u32 v4, s{sT}, v4
    v_bfe_u32 v5, v0, 1, 1
    v_mul_lo_u32 v5, v5, s{sT2}
    v_sub_u32 v4, v4, v5
    s_waitcnt lgkmcnt({2*nown})''')
    started = set()
    done = [False]
    def pre_pv(u):
        if not done[0]: A('s_waitcnt lgkmcnt(0)'); done[0] = True
    mid = {2: (lambda: set_flag(0))} if ty == 0 else None
    segment(U['own'], started, pre_pv=pre_pv, mid=mid)
    stamp(4)
    Lfin = f'L_fin{ty}'
    A(f's_cmp_eq_u32 s{sRB}, 0\ns_cbranch_scc1 {Lfin}')
    poll(4, f'L_pkv{ty}')
    stamp(5)
    tilesB = [-1,-2,-3,-4]; tilesC = [-5,-6,-7,-8] if ty == 0 else [-5,-6,-7]
    def ld(t):
        base = sN1 if t >= -4 else sN2
        T = t % 4
        A(f'buffer_load_dwordx4 {vr(kf(t),4)}, v2, {srd(WS)}, s{base} offen offset:{T*1024} sc1')
        A(f's_mov_b64 exec, s[{sHalf}:{sHalf+1}]')
        for a in range(2):
            A(f'buffer_load_dwordx4 {vr(vf(t,a),4)}, v3, {srd(WS)}, s{base} offen offset:{T*1024+a*512} sc1')
        A('s_mov_b64 exec, -1')
    for t in tilesB: ld(t)
    LB = f'L_B{ty}'
    A(f's_cmp_eq_u32 s{sRB}, 1\ns_cbranch_scc1 {LB}_only')
    for t in tilesC: ld(t)
    order = tilesB + tilesC
    def mk_wait(order):
        seen = set()
        def w(u):
            t = u[1]
            if t not in seen:
                seen.add(t)
                A(f's_waitcnt vmcnt({3*(len(order)-1-order.index(t))})')
        return w
    for r in range(16): A(f'v_sub_f32 v{MK+r}, {f2u(-BIG)}, v{MK+r}')
    st = set(started)
    segment(U['B'] + U['C'], st, pre_qk=mk_wait(order))
    A(f's_branch {Lfin}')
    A(f'{LB}_only:')
    segment(U['B'], set(started), pre_qk=mk_wait(tilesB))
    A(f'{Lfin}:\ns_nop 11')
    stamp(6)
    finalize(f'L_fb{ty}')
    A(f'L_fbret{ty}:')
    for qi in range(2):
        A(f'buffer_store_dwordx4 {vr(SB+4*qi,4)}, v2, {srd(WS)}, s{sOb} offen offset:{U["q"][qi]*1024} sc1')

def fallback(ty):
    U = UNITS[ty]
    A(f'L_fb{ty}:')
    MX = 10
    CB = SB + 16
    def flip():
        for r in range(16): A(f'v_sub_f32 v{MK+r}, {f2u(-BIG)}, v{MK+r}')
    def walk(fn, tag):
        A(f's_cmp_lt_u32 s{sRB}, 2\ns_cbranch_scc1 L_fb{ty}{tag}_a')
        for u in U['C']: fn(u)
        flip()
        A(f'L_fb{ty}{tag}_a:\ns_cmp_lt_u32 s{sRB}, 1\ns_cbranch_scc1 L_fb{ty}{tag}_b')
        for u in U['B']: fn(u)
        A(f'L_fb{ty}{tag}_b:')
        for u in U['own']: fn(u)
        A(f's_cmp_lt_u32 s{sRB}, 2\ns_cbranch_scc1 L_fb{ty}{tag}_c')
        flip()
        A(f's_nop 1\nL_fb{ty}{tag}_c:')
    A(f'v_mov_b32 v{MX}, 0xff800000\nv_mov_b32 v{MX+1}, 0xff800000')
    def p1(u):
        A(qk(u, SB))
        for j in range(8): A(f'v_max3_f32 v{MX+u[0]}, v{SB+2*j}, v{SB+2*j+1}, v{MX+u[0]}')
    walk(p1, 'm')
    for qi in range(2):
        A(f'v_mov_b32 v12, v{MX+qi}\ns_nop 1\nv_permlane32_swap_b32 v{MX+qi}, v12\nv_max_f32 v{MX+qi}, v{MX+qi}, v12')
        for r in range(16): A(f'v_mov_b32 v{OA+16*qi+r}, 0')
    def p2(u):
        for r in range(16):
            A(f'v_sub_f32 v{CB+r}, {("v%d" % (MK+r)) if u[2] else "0"}, v{MX+u[0]}')
        A(qk(u, SB, vr(CB, 16)))
        for r in range(16): A(f'v_exp_f32 v{SB+r}, v{SB+r}')
        for j in range(8): A(f'v_cvt_pk_bf16_f32 v{SB+j if j < 4 else SB+4+j}, v{SB+2*j}, v{SB+2*j+1}')
        A(pv(u, SB, 0, False)); A(pv(u, SB, 1, False))
        A('s_nop 7')
    walk(p2, 'p')
    finalize(None)
    A(f's_branch L_fbret{ty}')

WF = 16; OF = 152; AC3 = 216
def phase3():
    A('L_p3:')
    A(f'''s_lshr_b32 s{sT2}, s{sW}, 2
    v_bfe_u32 v9, v0, 2, 2
    v_lshrrev_b32 v8, 5, v0
    v_lshl_add_u32 v9, v8, 2, v9
    v_lshlrev_b32 v6, 7, v9
    v_bfe_u32 v9, v0, 4, 1
    v_lshlrev_b32 v9, 1, v9
    v_bfe_u32 v10, v0, 1, 1
    v_or_b32 v9, v9, v10
    v_bfe_u32 v10, v0, 3, 1
    v_lshl_or_b32 v9, v10, 2, v9
    v_lshl_add_u32 v6, v9, 4, v6
    v_and_b32 v9, 1, v0
    v_lshl_add_u32 v6, v9, 3, v6
    s_lshl_b32 s{sT3}, s{sT2}, 15
    v_add_u32 v6, s{sT3}, v6
    v_xor_b32 v7, 64, v6''')
    set_flag(4)
    stamp(7)
    for i in range(16):
        for nt in range(2):
            for j in range(2):
                A(f'ds_read_b64_tr_b16 {vr(WF+8*i+4*nt+2*j,2)}, v{6+nt} offset:{i*2048+j*1024}')
    A(f'''s_and_b32 s{sT}, s{sW}, 3
    s_add_u32 s{sN1}, s{sT}, 1
    s_and_b32 s{sN1}, s{sN1}, 2
    s_lshl_b32 s{sN1}, s{sN1}, 3
    s_andn2_b32 s{sN2}, s{sWG}, 7
    s_lshl_b32 s{sT3}, s{sT2}, 2
    s_add_u32 s{sN2}, s{sN2}, s{sT3}
    s_lshl_b32 s{sOb}, s{sN2}, 14
    s_lshl_b32 s{sN2}, s{sN2}, 7
    s_add_u32 s{sN1}, s{sN1}, s{sN2}
    s_add_u32 s{sN1}, s{sN1}, {WS_FL+16}
    v_bfe_u32 v4, v0, 2, 2
    v_lshlrev_b32 v4, 7, v4
    v_and_b32 v5, 3, v0
    v_lshl_add_u32 v4, v5, 2, v4
    v_add_u32 v4, s{sN1}, v4
    s_lshl_b32 s{sT3}, s{sT}, 10
    s_add_u32 s{sOb}, s{sOb}, s{sT3}
    s_add_u32 s{sOb}, s{sOb}, {WS_O}''')
    poll(4, 'L_po')
    stamp(8)
    for i in range(16):
        A(f'buffer_load_dwordx4 {vr(OF+4*i,4)}, v2, {srd(WS)}, s{sOb} offen sc1')
        if i < 15: A(f's_add_u32 s{sOb}, s{sOb}, 4096')
    A(f'''s_lshl_b32 s{sN1}, s{sW}, 12
    s_add_u32 s{sN1}, s{sN1}, {L_X}
    s_xor_b32 s{sN2}, s{sW}, 4
    s_lshl_b32 s{sN2}, s{sN2}, 12
    s_add_u32 s{sN2}, s{sN2}, {L_X}
    v_add_u32 v8, s{sN1}, v2
    v_add_u32 v9, s{sN2}, v2
    v_and_b32 v10, 31, v0
    v_lshlrev_b32 v10, 11, v10
    v_lshrrev_b32 v11, 5, v0
    v_lshl_add_u32 v10, v11, 4, v10
    s_lshl_b32 s{sN1}, s{sRB}, 2
    s_add_u32 s{sN1}, s{sN1}, s{sT}
    s_lshl_b32 s{sN1}, s{sN1}, 16
    s_lshl_b32 s{sN2}, s{sB}, 10
    s_add_u32 s{sN1}, s{sN1}, s{sN2}
    s_lshl_b32 s{sN2}, s{sHG}, 7
    s_add_u32 s{sN1}, s{sN1}, s{sN2}
    s_lshl_b32 s{sN2}, s{sT2}, 6
    s_add_u32 s{sN1}, s{sN1}, s{sN2}
    s_waitcnt lgkmcnt(0)''')
    for i in range(16):
        A(f's_waitcnt vmcnt({15-i})')
        for nt in range(2):
            acc = vr(AC3+16*nt, 16)
            A(f'{MFMA} {acc}, {vr(WF+8*i+4*nt,4)}, {vr(OF+4*i,4)}, {"0" if i == 0 else acc}')
    stamp(9)
    for kh in range(2):
        if kh == 0: A(f's_cmp_lg_u32 s{sT2}, 0\ns_cbranch_scc1 L_x1')
        else: A('L_x1:\ns_nop 7\ns_nop 3')
        send = AC3 + 16*(1-kh); keep = AC3 + 16*kh
        for g in range(4): A(f'ds_write_b128 v8, {vr(send+4*g,4)} offset:{g*1024}')
        A('s_waitcnt lgkmcnt(0)\ns_barrier')
        for g in range(4): A(f'ds_read_b128 {vr(16+4*g,4)}, v9 offset:{g*1024}')
        for g in range(4):
            A(f's_waitcnt lgkmcnt({3-g})')
            for r in range(4): A(f'v_add_f32 v{keep+4*g+r}, v{keep+4*g+r}, v{16+4*g+r}')
            for j in range(2): A(f'v_cvt_pk_bf16_f32 v{32+2*g+j}, v{keep+4*g+2*j}, v{keep+4*g+2*j+1}')
        if kh == 0: A('s_branch L_x2')
    A('L_x2:\ns_nop 1')
    for p in range(2):
        A(f'v_permlane32_swap_b32 v{32+4*p}, v{34+4*p}\nv_permlane32_swap_b32 v{33+4*p}, v{35+4*p}')
        A(f'buffer_store_dwordx4 {vr(32+4*p,4)}, v10, {srd(OUT)}, s{sN1} offen offset:{32*p}')
    if PROF:
        A('s_waitcnt vmcnt(0)')
        stamp(10)
        A(f'''s_lshl_b32 s{sT}, s2, 3
        s_add_u32 s{sT}, s{sT}, s{sW}
        s_lshl_b32 s{sT}, s{sT}, 7
        s_add_u32 s{sT}, s{sT}, {WS_ST}
        v_mov_b32 v1, 0''')
        for i in range(11):
            A(f'v_mov_b32 v2, s{sST+2*i}\nbuffer_store_dword v2, v1, {srd(WS)}, s{sT} offen offset:{4*i}')
        A(f'v_mov_b32 v2, s100\nbuffer_store_dword v2, v1, {srd(WS)}, s{sT} offen offset:60')
        A('s_memrealtime s[100:101]\ns_waitcnt lgkmcnt(0)')
        A(f'v_mov_b32 v2, s100\nbuffer_store_dword v2, v1, {srd(WS)}, s{sT} offen offset:56')
    A('L_end:\ns_endpgm')

prologue()
compute_p1()
attention(0)
A('s_branch L_p3')
loader_p1()
stamp(3)
attention(1)
phase3()
fallback(0)
fallback(1)
body, nadd = A.finish()
hdr = open('cdna_kernels/' + NAME + '.s.ref').read().split('; Override launch')[0]
out = hdr + f'''; @launch grid=(256,1,1) block=(512,1,1) lds=163840
.amdgcn_target "amdgcn-amd-amdhsa--gfx950"
.text
.globl {NAME}_kernel
.p2align 8
.type {NAME}_kernel,@function
{NAME}_kernel:
{body}.section .rodata,"a"
.p2align 6
.amdhsa_kernel {NAME}_kernel
  .amdhsa_next_free_vgpr 256
  .amdhsa_next_free_sgpr 102
  .amdhsa_accum_offset 256
  .amdhsa_group_segment_fixed_size 0
  .amdhsa_kernarg_size 72
  .amdhsa_user_sgpr_count 2
  .amdhsa_user_sgpr_kernarg_segment_ptr 1
  .amdhsa_system_sgpr_workgroup_id_x 1
.end_amdhsa_kernel
'''
dst = [a for a in sys.argv[1:] if not a.startswith('--')]
open(dst[0] if dst else 'cdna_kernels/' + NAME + '.s', 'w').write(out)
print('nops inserted', nadd, 'lines', body.count('\n'))
```

```python
import sys, struct
from asmlib import Asm
NAME = 'concat_heads__sliding_block__sliding_block__prompt'
DBGP = '--dbg' in sys.argv
PROF = '--prof' in sys.argv or DBGP
FORCE_FB = '--force-fb' in sys.argv
def f2u(x): return struct.unpack('<I', struct.pack('<f', x))[0]
A = Asm()
SLOT = 40960
WS_O = 8 << 20; WS_FL = 12 << 20; WS_ST = 13 << 20; WS_SZ = 14 << 20
L_K = 65536; L_V = 81920; L_Q = 98304; L_M = 114688; L_X = 118784
CSC = 0.25 * 1.4426950408889634
BIG = 1e30
sW = 3; X, Wq, WO, WS, OUT, DBG = 4, 8, 12, 16, 20, 24
sB, sRB, sHG, sWG = 28, 29, 30, 31
sXo, sWo, sSl, sIt, sT, sT2, sN1, sN2 = 50, 51, 52, 53, 54, 55, 56, 57
sHalf = 60; sC = 62; sSpin = 63; sFl = 64; sOb = 65; sT3 = 66; sLo = 67; sHi = 68
sST = 72
nst = [0]
def srd(i): return f's[{i}:{i+3}]'
def vr(a, n): return f'v[{a}:{a+n-1}]'
def stamp(idx):
    if PROF:
        A(f's_memtime s[{sST+2*idx}:{sST+2*idx+1}]\ns_waitcnt lgkmcnt(0)')
KF = 16; QF = 64; OA = 72; SB = 104; MK = 136; VF = 152
ACC = 16; FR = 112
MFMA = 'v_mfma_f32_32x32x16_bf16'

def prologue():
    A(f'''s_cmp_ge_u32 s2, 256
    s_cbranch_scc1 L_end
    s_load_dwordx8 s[32:39], s[0:1], 0
    s_load_dwordx8 s[40:47], s[0:1], 32
    s_load_dwordx2 s[48:49], s[0:1], 64''')
    if PROF: A(f's_memrealtime s[100:101]')
    A(f'''v_lshrrev_b32 v1, 6, v0
    v_and_b32 v0, 63, v0
    s_and_b32 s{sT}, s2, 7
    v_readfirstlane_b32 s{sW}, v1
    s_lshr_b32 s{sT2}, s2, 3
    s_lshr_b32 s{sB}, s{sT}, 2
    s_and_b32 s{sT}, s{sT}, 3
    s_lshl_b32 s{sT}, s{sT}, 2
    s_lshr_b32 s{sRB}, s{sT2}, 3
    s_add_u32 s{sRB}, s{sRB}, s{sT}
    s_and_b32 s{sHG}, s{sT2}, 7
    s_lshl_b32 s{sWG}, s{sB}, 4
    s_add_u32 s{sWG}, s{sWG}, s{sRB}
    s_lshl_b32 s{sWG}, s{sWG}, 3
    s_add_u32 s{sWG}, s{sWG}, s{sHG}
    s_mov_b32 s{X+2}, 0x200000
    s_mov_b32 s{X+3}, 0x20000
    s_mov_b32 s{Wq+2}, 0x180000
    s_mov_b32 s{Wq+3}, 0x20000
    s_mov_b32 s{WO+2}, 0x80000
    s_mov_b32 s{WO+3}, 0x20000
    s_mov_b32 s{WS+2}, {WS_SZ}
    s_mov_b32 s{WS+3}, 0x20000
    s_mov_b32 s{OUT+2}, 0x400000
    s_mov_b32 s{OUT+3}, 0x20000
    s_mov_b32 s{DBG+2}, 256
    s_mov_b32 s{DBG+3}, 0x20000
    s_mov_b32 s{sHalf}, 0xffff
    s_mov_b32 s{sHalf+1}, 0xffff
    s_cmp_eq_u32 s{sB}, 0
    s_waitcnt lgkmcnt(0)
    s_cselect_b32 s{X}, s32, s38
    s_cselect_b32 s{X+1}, s33, s39
    s_cselect_b32 s{Wq}, s34, s40
    s_cselect_b32 s{Wq+1}, s35, s41
    s_cselect_b32 s{WO}, s36, s42
    s_cselect_b32 s{WO+1}, s37, s43
    s_mov_b32 s{OUT}, s44
    s_mov_b32 s{OUT+1}, s45
    s_mov_b32 s{DBG}, s46
    s_mov_b32 s{DBG+1}, s47
    s_mov_b32 s{WS}, s48
    s_mov_b32 s{WS+1}, s49''')
    stamp(0)
    A(f'''s_cmp_ge_u32 s{sW}, 4
    s_cbranch_scc1 L_loader''')

def preset_ones():
    A(f'v_mov_b32 v1, 0x3f803f80')
    for i in range(96): A(f'v_mov_b32 v{VF+i}, v1')

def common_consts():
    A(f'''s_lshl_b32 s{sFl}, s{sWG}, 7
    s_add_u32 s{sFl}, s{sFl}, {WS_FL}
    s_mov_b32 s{sC}, {f2u(CSC)}
    s_mov_b32 s{sLo}, {f2u(2.0**-40)}
    s_mov_b32 s{sHi}, {f2u(2.0**40)}''')

def loader_p1():
    A('L_loader:')
    A(f'''v_lshrrev_b32 v6, 3, v0
    v_and_b32 v7, 7, v0
    v_lshrrev_b32 v8, 4, v0
    v_xor_b32 v9, v7, v8
    v_lshlrev_b32 v9, 4, v9
    v_lshl_add_u32 v2, v6, 10, v9
    v_xor_b32 v3, 64, v2
    v_and_b32 v8, 1, v8
    v_lshlrev_b32 v8, 2, v8
    v_xor_b32 v9, v7, v8
    v_lshlrev_b32 v9, 4, v9
    v_mul_u32_u24 v4, 3072, v6
    v_add_u32 v4, v4, v9
    v_lshl_add_u32 v5, v6, 10, v9
    s_sub_u32 s{sT}, s{sW}, 4
    s_lshl_b32 s{sXo}, s{sRB}, 17
    s_lshl_b32 s{sT2}, s{sT}, 15
    s_add_u32 s{sXo}, s{sXo}, s{sT2}
    s_mul_i32 s{sWo}, s{sT}, {16*3072}
    s_lshl_b32 s{sT2}, s{sHG}, 7
    s_add_u32 s{sWo}, s{sWo}, s{sT2}
    s_lshl_b32 s{sN1}, s{sT}, 12
    s_lshl_b32 s{sN2}, s{sT}, 11
    s_add_u32 s{sN2}, s{sN2}, 16384
    s_mov_b32 s{sIt}, 0
    L_ld_loop:''')
    for j in range(4):
        A(f'''s_add_u32 m0, s{sN1}, {j*1024}
        s_add_u32 s{sT}, s{sXo}, {j*8192}
        buffer_load_dwordx4 v{2+(j&1)}, {srd(X)}, s{sT} offen lds''')
    for seg in range(3):
        for q in range(2):
            A(f'''s_add_u32 m0, s{sN2}, {seg*8192+q*1024}
            s_add_u32 s{sT}, s{sWo}, {seg*1024+q*8*3072}
            buffer_load_dwordx4 v4, {srd(Wq)}, s{sT} offen lds''')
    A(f'''s_add_u32 s{sXo}, s{sXo}, 128
    s_add_u32 s{sWo}, s{sWo}, {64*3072}
    s_mov_b32 s{sT}, {SLOT}
    s_cmp_eq_u32 s{sIt}, 3
    s_cselect_b32 s{sT}, {-3*SLOT & 0xffffffff}, s{sT}
    s_add_u32 s{sN1}, s{sN1}, s{sT}
    s_add_u32 s{sN2}, s{sN2}, s{sT}
    s_add_u32 s{sIt}, s{sIt}, 1
    s_cmp_lt_u32 s{sIt}, 4
    s_cbranch_scc1 L_ld_loop
    s_cmp_lg_u32 s{sIt}, 4
    s_cbranch_scc1 L_ld_skip''')
    preset_ones()
    common_consts()
    A(f'''s_waitcnt vmcnt(30)
    s_barrier
    L_ld_skip:
    s_waitcnt vmcnt(20)
    s_barrier
    s_cmp_lt_u32 s{sIt}, 8
    s_cbranch_scc1 L_ld_loop
    s_waitcnt vmcnt(10)
    s_barrier''')
    A(f'''v_mov_b32 v6, 0
    buffer_load_dword v7, v6, {srd(DBG)}, 0 offen sc1
    s_sub_u32 s{sT}, s{sW}, 4
    s_lshl_b32 s{sN1}, s{sT}, 14
    s_lshl_b32 s{sWo}, s{sT}, 17
    s_lshl_b32 s{sT2}, s{sHG}, 7
    s_add_u32 s{sWo}, s{sWo}, s{sT2}
    s_mov_b32 s{sIt}, 0
    L_wo_loop:''')
    for j in range(4):
        A(f'''s_add_u32 m0, s{sN1}, {j*1024}
        s_add_u32 s{sT}, s{sWo}, {j*8192}
        buffer_load_dwordx4 v5, {srd(WO)}, s{sT} offen lds''')
    A(f'''s_add_u32 s{sN1}, s{sN1}, 4096
    s_add_u32 s{sWo}, s{sWo}, 32768
    s_add_u32 s{sIt}, s{sIt}, 1
    s_cmp_lt_u32 s{sIt}, 4
    s_cbranch_scc1 L_wo_loop
    s_waitcnt vmcnt(16)
    s_mov_b32 s{sSpin}, 0
    L_gate:
    v_readfirstlane_b32 s{sT}, v7
    s_cmp_lg_u32 s{sT}, 0
    s_cbranch_scc1 L_gate_ok
    s_sleep 4
    buffer_load_dword v7, v6, {srd(DBG)}, 0 offen sc1
    s_add_u32 s{sSpin}, s{sSpin}, 1
    s_cmp_lt_u32 s{sSpin}, 0x10000
    s_waitcnt vmcnt(0)
    s_cbranch_scc1 L_gate
    L_gate_ok:
    s_barrier''')
    A(f'''v_and_b32 v6, 31, v0
    v_lshrrev_b32 v7, 5, v0
    v_lshlrev_b32 v7, 2, v7
    v_sub_u32 v6, v6, v7
    v_cvt_f32_i32 v6, v6
    s_mov_b32 s{sT}, {f2u(-BIG)}
    v_lshlrev_b32 v8, 4, v0''')
    for r in range(16):
        c = 8*(r//4) + r % 4
        A(f'v_sub_f32 v{MK+r}, {f2u(float(c))}, v6')
        A(f'v_med3_f32 v{MK+r}, v{MK+r}, 0, 1.0')
        A(f'v_mul_f32 v{MK+r}, s{sT}, v{MK+r}')
    A(f'v_add_u32 v8, {L_M}, v8')
    for g in range(4):
        A(f'ds_write_b128 v8, {vr(MK+4*g,4)} offset:{g*1024}')
    A(f'''s_barrier
    s_waitcnt vmcnt(0) lgkmcnt(0)
    s_barrier''')

def frag_reads(buf, ks):
    F = FR + 20*buf
    xs = [f'ds_read_b128 {vr(F+4*mt,4)}, v{2+ks} offset:{mt*4096}' for mt in range(2)]
    def wrd(seg): return [f'ds_read_b64_tr_b16 {vr(F+8+4*seg+2*j,2)}, v6 offset:{16384+seg*8192+ks*2048+j*512}' for j in range(2)]
    return [xs[0]] + wrd(0) + [xs[1]] + wrd(1) + wrd(2)
def mfmas(buf):
    F = FR + 20*buf
    L = []
    for seg in range(3):
        for mt in range(2):
            acc = vr(ACC + (seg*2+mt)*16, 16)
            x = vr(F+4*mt, 4); w = vr(F+8+4*seg, 4)
            a, b = (w, x) if seg < 2 else (x, w)
            L.append(f'{MFMA} {acc}, {a}, {b}, {acc}')
    return L

def compute_p1():
    A(f'''s_or_b32 s{sT}, s2, s{sW}
    s_cmp_lg_u32 s{sT}, 0
    s_cbranch_scc1 L_noinit
    v_lshrrev_b32 v1, 2, v0
    v_and_b32 v2, 3, v0
    v_lshlrev_b32 v1, 7, v1
    v_lshl_add_u32 v1, v2, 4, v1
    v_mov_b32 v4, 0
    v_mov_b32 v5, 0
    v_mov_b32 v6, 0
    v_mov_b32 v7, 0
    s_mov_b32 s{sT}, {WS_FL}
    L_init:
    buffer_store_dwordx4 v[4:7], v1, {srd(WS)}, s{sT} offen sc1
    s_add_u32 s{sT}, s{sT}, 2048
    s_cmp_lt_u32 s{sT}, {WS_FL+32768}
    s_cbranch_scc1 L_init
    v_mov_b32 v2, 1
    s_waitcnt vmcnt(0)
    buffer_store_dword v2, v4, {srd(DBG)}, 0 offen sc1
    L_noinit:''')
    A(f'''v_and_b32 v7, 31, v0
    v_lshrrev_b32 v8, 5, v0
    v_lshrrev_b32 v9, 1, v7
    v_and_b32 v9, 7, v9
    v_xor_b32 v9, v9, v8
    v_lshlrev_b32 v9, 4, v9
    v_lshl_add_u32 v2, v7, 7, v9
    s_lshr_b32 s{sT}, s{sW}, 1
    s_lshl_b32 s{sT}, s{sT}, 13
    v_add_u32 v2, s{sT}, v2
    v_xor_b32 v3, 32, v2
    v_xor_b32 v4, 64, v2
    v_xor_b32 v5, 96, v2
    v_bfe_u32 v9, v0, 2, 2
    v_lshl_add_u32 v9, v8, 3, v9
    v_lshlrev_b32 v6, 7, v9
    v_bfe_u32 v9, v0, 4, 1
    v_lshlrev_b32 v9, 1, v9
    v_bfe_u32 v10, v0, 1, 1
    v_or_b32 v9, v9, v10
    v_bfe_u32 v10, v0, 3, 1
    s_and_b32 s{sT}, s{sW}, 1
    v_xor_b32 v10, s{sT}, v10
    v_lshl_or_b32 v9, v10, 2, v9
    v_lshl_add_u32 v6, v9, 4, v6
    v_and_b32 v9, 1, v0
    v_lshl_add_u32 v6, v9, 3, v6''')
    for i in range(96): A(f'v_mov_b32 v{ACC+i}, 0')
    preset_ones()
    common_consts()
    A(f's_mov_b32 s{sIt}, 0\ns_barrier')
    stamp(1)
    for r in frag_reads(0, 0): A(r)
    A('L_p1_loop:')
    for ks in range(4):
        cur = ks & 1
        M = mfmas(cur)
        if ks < 3:
            R = frag_reads(cur ^ 1, ks+1)
            A('s_waitcnt lgkmcnt(5)'); A(M[0]); A(R[0]); A(R[1])
            A('s_waitcnt lgkmcnt(6)'); A(M[1]); A(R[2]); A(R[3])
            A('s_waitcnt lgkmcnt(6)'); A(M[2]); A(R[4]); A(R[5])
            A(M[3]); A(R[6]); A(R[7])
            A('s_waitcnt lgkmcnt(8)'); A(M[4]); A(M[5])
        else:
            R = frag_reads(0, 0)
            A('s_waitcnt lgkmcnt(5)'); A(M[0])
            A(f's_and_b32 s{sT2}, s{sIt}, 3\ns_mov_b32 s{sT}, {SLOT}')
            A(f's_cmp_eq_u32 s{sT2}, 3\ns_cselect_b32 s{sT}, {-3*SLOT & 0xffffffff}, s{sT}')
            A('s_waitcnt lgkmcnt(4)'); A(M[1])
            for i in range(2, 7): A(f'v_add_u32 v{i}, s{sT}, v{i}')
            A('s_waitcnt lgkmcnt(0)\ns_barrier')
            A(M[2]); A(R[0]); A(R[1])
            A(M[3]); A(R[2]); A(R[3])
            A(M[4]); A(R[4]); A(R[5])
            A(f's_add_u32 s{sIt}, s{sIt}, 1\ns_cmp_lt_u32 s{sIt}, 8')
            A(M[5]); A(R[6]); A(R[7])
            A('s_cbranch_scc1 L_p1_loop')
    stamp(2)
    A(f'''v_lshlrev_b32 v7, 4, v0
    v_bfe_u32 v10, v0, 4, 1
    v_and_b32 v11, 15, v0
    v_lshrrev_b32 v12, 5, v0
    v_lshl_or_b32 v11, v12, 4, v11
    v_lshlrev_b32 v11, 4, v11
    v_lshl_add_u32 v8, v10, 12, v11
    v_lshl_add_u32 v9, v10, 13, v11
    s_and_b32 s{sT}, s{sW}, 1
    s_lshr_b32 s{sT2}, s{sW}, 1
    s_lshl_b32 s{sN1}, s{sT}, 13
    s_lshl_b32 s{sT3}, s{sT2}, 11
    s_add_u32 s{sN1}, s{sN1}, s{sT3}
    s_add_u32 s{sN1}, s{sN1}, 65536
    v_add_u32 v10, s{sN1}, v7
    v_add_u32 v8, s{sN1}, v8
    s_lshl_b32 s{sN2}, s{sWG}, 15
    s_lshl_b32 s{sT}, s{sT}, 14
    s_add_u32 s{sN2}, s{sN2}, s{sT}
    s_add_u32 s{sN2}, s{sN2}, s{sT3}
    s_add_u32 s{sN1}, s{sN2}, 8192
    s_add_u32 s{sT}, s{sN2}, 4096
    s_waitcnt lgkmcnt(0)''')
    tmp = FR
    def cvt8(acc, dst):
        for i in range(8): A(f'v_cvt_pk_bf16_f32 v{dst+i}, v{acc+2*i}, v{acc+2*i+1}')
    n = 0
    for mt in range(2):
        acc = ACC + (1*2+mt)*16; d = tmp + 8*(n % 5); n += 1
        cvt8(acc, d)
        for e in range(2):
            A(f'buffer_store_dwordx4 {vr(d+4*e,4)}, v7, {srd(WS)}, s{sN1 if e else sN2} offen offset:{mt*1024} sc1')
            A(f'ds_write_b128 v10, {vr(d+4*e,4)} offset:{e*4096+mt*1024}')
    for mt in range(2):
        acc = ACC + (2*2+mt)*16; d = tmp + 8*(n % 5); n += 1
        cvt8(acc, d)
        for a in range(2):
            A(f'buffer_store_dwordx4 {vr(d+4*a,4)}, v9, {srd(WS)}, s{sT} offen offset:{mt*1024+a*512} sc1')
            A(f'ds_write_b128 v8, {vr(d+4*a,4)} offset:{16384+mt*1024+a*512}')
    for mt in range(2):
        acc = ACC + mt*16
        for i in range(16): A(f'v_mul_f32 v{acc+i}, s{sC}, v{acc+i}')
        cvt8(acc, acc)
        for e in range(2):
            A(f'ds_write_b128 v10, {vr(acc+4*e,4)} offset:{32768+e*4096+mt*1024}')
    A('s_waitcnt lgkmcnt(0)\ns_barrier')
    stamp(3)

def kf(t): return KF + 4*(t+8)
def vf(t, a): return VF + 8*(t+8) + 4*a
UNITS = {0: dict(q=(0, 3),
                 own=[(0,0,1),(1,0,0),(1,1,0),(1,2,0),(1,3,1)],
                 C=[(0,-5,0),(1,-5,1),(0,-6,0),(0,-7,0),(0,-8,1)]),
         1: dict(q=(1, 2),
                 own=[(0,0,0),(0,1,1),(1,0,0),(1,1,0),(1,2,1)],
                 C=[(0,-5,0),(1,-5,0),(0,-6,0),(1,-6,1),(0,-7,1)])}
for U in UNITS.values(): U['B'] = [(qi, t, 0) for t in (-1,-2,-3,-4) for qi in (0, 1)]
def qk(u, sb, cin=None):
    qi, t, m = u
    c = cin if cin else (vr(MK,16) if m else '0')
    return f'{MFMA} {vr(sb,16)}, {vr(kf(t),4)}, {vr(QF+4*qi,4)}, {c}'
def pv(u, sb, a, first):
    qi, t, m = u
    o = vr(OA+16*qi, 16)
    return f'{MFMA} {o}, {vr(vf(t,a),4)}, {vr(sb+8*a,4)}, {"0" if first else o}'
def segment(units, started, pre_qk=None, pre_pv=None, mid=None):
    n = len(units)
    def QK(i):
        if pre_qk: pre_qk(units[i])
        A(qk(units[i], SB+16*(i & 1)))
    def PV(i, a):
        u = units[i]
        if pre_pv: pre_pv(u)
        first = (u[0] not in started)
        started.add(u[0])
        A(pv(u, SB+16*(i & 1), a, first))
    QK(0)
    if n > 1: QK(1)
    for i in range(n):
        S = SB + 16*(i & 1)
        e = lambda r: A(f'v_exp_f32 v{S+r}, v{S+r}')
        def c(j):
            d = S + j if j < 4 else S + 4 + j
            A(f'v_cvt_pk_bf16_f32 v{d}, v{S+2*j}, v{S+2*j+1}')
        if mid and i in mid: mid[i]()
        e(0); e(1)
        if i > 0:
            PV(i-1, 1)
            if i+1 < n: QK(i+1)
        for j in range(7):
            e(2*j+2); c(j); e(2*j+3)
            if j == 4: PV(i, 0)
        A('s_nop 0'); c(7)
    PV(n-1, 1)

def poll(vaddr, lab):
    A(f'''s_mov_b32 s{sSpin}, 0
    {lab}:
    buffer_load_dword v15, v{vaddr}, {srd(WS)}, 0 offen sc1
    s_add_u32 s{sSpin}, s{sSpin}, 1
    s_waitcnt vmcnt(0)
    v_cmp_ne_u32 vcc, 1, v15
    s_cmp_ge_u32 s{sSpin}, 0x10000
    s_cbranch_scc1 {lab}_ok
    s_cbranch_vccz {lab}_ok
    s_sleep 1
    s_branch {lab}
    {lab}_ok:''')

def set_flag(dw):
    A(f'''s_lshl_b32 s{sT}, s{sW}, 2
    s_add_u32 s{sT}, s{sT}, s{sFl}
    v_mov_b32 v14, 1
    v_mov_b32 v13, 0
    s_mov_b64 exec, 1
    s_waitcnt vmcnt(0)
    buffer_store_dword v14, v13, {srd(WS)}, s{sT} offen offset:{dw*4} sc1
    s_mov_b64 exec, -1''')

def finalize(fb_label):
    for qi in range(2):
        o = OA + 16*qi
        A(f'v_rcp_f32 v{o+9}, v{o+8}')
        if fb_label:
            A(f'v_cmp_lt_f32 s[{70 if qi else 58}:{71 if qi else 59}], s{sLo}, v{o+8}')
            A(f'v_cmp_gt_f32 vcc, s{sHi}, v{o+8}')
            A(f's_and_b64 s[{70 if qi else 58}:{71 if qi else 59}], s[{70 if qi else 58}:{71 if qi else 59}], vcc')
        for j in range(8): A(f'v_mul_f32 v{o+j}, v{o+j}, v{o+9}')
        for j in range(4): A(f'v_cvt_pk_bf16_f32 v{SB+4*qi+j}, v{o+2*j}, v{o+2*j+1}')
        if fb_label:
            A(f'v_add_f32 v{o+10}, |v{o}|, |v{o+1}|')
            for j in range(2, 8): A(f'v_add_f32 v{o+10}, v{o+10}, |v{o+j}|')
    if fb_label:
        A(f'''v_add_f32 v{OA+10}, v{OA+10}, v{OA+26}
        s_and_b64 s[58:59], s[58:59], s[70:71]
        s_mov_b32 s{sT}, 0x7f800000
        v_cmp_gt_f32 vcc, s{sT}, v{OA+10}
        s_and_b64 s[58:59], s[58:59], vcc
        s_cmp_eq_u64 s[58:59], -1''')
        A(f's_branch {fb_label}' if FORCE_FB else f's_cbranch_scc0 {fb_label}')

def attention(ty):
    U = UNITS[ty]
    A(f'''s_and_b32 s{sT}, s{sW}, 3
    s_lshl_b32 s{sT2}, s{sT}, 12
    s_add_u32 s{sT2}, s{sT2}, 65536
    v_lshlrev_b32 v2, 4, v0
    v_add_u32 v7, s{sT2}, v2
    v_and_b32 v11, 15, v0
    v_lshrrev_b32 v12, 5, v0
    v_lshl_or_b32 v11, v12, 4, v11
    v_lshlrev_b32 v3, 4, v11
    v_add_u32 v8, s{sT2}, v3
    v_add_u32 v9, {L_M}, v2
    v_add_u32 v3, 4096, v3''')
    nown = 4 if ty == 0 else 3
    for qi in range(2): A(f'ds_read_b128 {vr(QF+4*qi,4)}, v7 offset:{32768+U["q"][qi]*1024}')
    for t in range(nown): A(f'ds_read_b128 {vr(kf(t),4)}, v7 offset:{t*1024}')
    for g in range(4): A(f'ds_read_b128 {vr(MK+4*g,4)}, v9 offset:{g*1024}')
    A(f's_mov_b64 exec, s[{sHalf}:{sHalf+1}]')
    for t in range(nown):
        for a in range(2): A(f'ds_read_b128 {vr(vf(t,a),4)}, v8 offset:{16384+t*1024+a*512}')
    A('s_mov_b64 exec, -1')
    A(f'''s_lshl_b32 s{sN1}, s{sWG}, 2
    s_add_u32 s{sN1}, s{sN1}, s{sT}
    s_lshl_b32 s{sOb}, s{sN1}, 12
    s_add_u32 s{sOb}, s{sOb}, {WS_O}
    s_lshl_b32 s{sN1}, s{sN1}, 13
    s_sub_u32 s{sN2}, s{sN1}, {2*32*8192}
    s_sub_u32 s{sN1}, s{sN1}, {32*8192}
    s_lshr_b32 s{sT}, s{sT}, 1
    s_lshl_b32 s{sT}, s{sT}, 2
    s_add_u32 s{sT}, s{sT}, s{sFl}
    s_sub_u32 s{sT}, s{sT}, 1024
    s_cmp_ge_u32 s{sRB}, 2
    s_cselect_b32 s{sT2}, 1024, 0
    v_and_b32 v4, 1, v0
    v_lshlrev_b32 v4, 3, v4
    v_add_u32 v4, s{sT}, v4
    v_bfe_u32 v5, v0, 1, 1
    v_mul_lo_u32 v5, v5, s{sT2}
    v_sub_u32 v4, v4, v5
    s_waitcnt lgkmcnt({2*nown})''')
    started = set()
    done = [False]
    def pre_pv(u):
        if not done[0]: A('s_waitcnt lgkmcnt(0)'); done[0] = True
    mid = {2: (lambda: set_flag(0))} if ty == 0 else None
    segment(U['own'], started, pre_pv=pre_pv, mid=mid)
    stamp(4)
    Lfin = f'L_fin{ty}'
    A(f's_cmp_eq_u32 s{sRB}, 0\ns_cbranch_scc1 {Lfin}')
    poll(4, f'L_pkv{ty}')
    stamp(5)
    tilesB = [-1,-2,-3,-4]; tilesC = [-5,-6,-7,-8] if ty == 0 else [-5,-6,-7]
    def ld(t):
        base = sN1 if t >= -4 else sN2
        T = t % 4
        A(f'buffer_load_dwordx4 {vr(kf(t),4)}, v2, {srd(WS)}, s{base} offen offset:{T*1024} sc1')
        A(f's_mov_b64 exec, s[{sHalf}:{sHalf+1}]')
        for a in range(2):
            A(f'buffer_load_dwordx4 {vr(vf(t,a),4)}, v3, {srd(WS)}, s{base} offen offset:{T*1024+a*512} sc1')
        A('s_mov_b64 exec, -1')
    for t in tilesB: ld(t)
    LB = f'L_B{ty}'
    A(f's_cmp_eq_u32 s{sRB}, 1\ns_cbranch_scc1 {LB}_only')
    for t in tilesC: ld(t)
    order = tilesB + tilesC
    def mk_wait(order):
        seen = set()
        def w(u):
            t = u[1]
            if t not in seen:
                seen.add(t)
                A(f's_waitcnt vmcnt({3*(len(order)-1-order.index(t))})')
        return w
    for r in range(16): A(f'v_sub_f32 v{MK+r}, {f2u(-BIG)}, v{MK+r}')
    st = set(started)
    segment(U['B'] + U['C'], st, pre_qk=mk_wait(order))
    A(f's_branch {Lfin}')
    A(f'{LB}_only:')
    segment(U['B'], set(started), pre_qk=mk_wait(tilesB))
    A(f'{Lfin}:\ns_nop 11')
    stamp(6)
    finalize(f'L_fb{ty}')
    A(f'L_fbret{ty}:')
    for qi in range(2):
        A(f'buffer_store_dwordx4 {vr(SB+4*qi,4)}, v2, {srd(WS)}, s{sOb} offen offset:{U["q"][qi]*1024} sc1')

def fallback(ty):
    U = UNITS[ty]
    A(f'L_fb{ty}:')
    MX = 10
    CB = SB + 16
    def flip():
        for r in range(16): A(f'v_sub_f32 v{MK+r}, {f2u(-BIG)}, v{MK+r}')
    def walk(fn, tag):
        A(f's_cmp_lt_u32 s{sRB}, 2\ns_cbranch_scc1 L_fb{ty}{tag}_a')
        for u in U['C']: fn(u)
        flip()
        A(f'L_fb{ty}{tag}_a:\ns_cmp_lt_u32 s{sRB}, 1\ns_cbranch_scc1 L_fb{ty}{tag}_b')
        for u in U['B']: fn(u)
        A(f'L_fb{ty}{tag}_b:')
        for u in U['own']: fn(u)
        A(f's_cmp_lt_u32 s{sRB}, 2\ns_cbranch_scc1 L_fb{ty}{tag}_c')
        flip()
        A(f's_nop 1\nL_fb{ty}{tag}_c:')
    A(f'v_mov_b32 v{MX}, 0xff800000\nv_mov_b32 v{MX+1}, 0xff800000')
    def p1(u):
        A(qk(u, SB))
        for j in range(8): A(f'v_max3_f32 v{MX+u[0]}, v{SB+2*j}, v{SB+2*j+1}, v{MX+u[0]}')
    walk(p1, 'm')
    for qi in range(2):
        A(f'v_mov_b32 v12, v{MX+qi}\ns_nop 1\nv_permlane32_swap_b32 v{MX+qi}, v12\nv_max_f32 v{MX+qi}, v{MX+qi}, v12')
        for r in range(16): A(f'v_mov_b32 v{OA+16*qi+r}, 0')
    def p2(u):
        for r in range(16):
            A(f'v_sub_f32 v{CB+r}, {("v%d" % (MK+r)) if u[2] else "0"}, v{MX+u[0]}')
        A(qk(u, SB, vr(CB, 16)))
        for r in range(16): A(f'v_exp_f32 v{SB+r}, v{SB+r}')
        for j in range(8): A(f'v_cvt_pk_bf16_f32 v{SB+j if j < 4 else SB+4+j}, v{SB+2*j}, v{SB+2*j+1}')
        A(pv(u, SB, 0, False)); A(pv(u, SB, 1, False))
        A('s_nop 7')
    walk(p2, 'p')
    finalize(None)
    A(f's_branch L_fbret{ty}')

WF = 16; OF = 152; AC3 = 216
def phase3():
    A('L_p3:')
    A(f'''s_lshr_b32 s{sT2}, s{sW}, 2
    v_bfe_u32 v9, v0, 2, 2
    v_lshrrev_b32 v8, 5, v0
    v_lshl_add_u32 v9, v8, 2, v9
    v_lshlrev_b32 v6, 7, v9
    v_bfe_u32 v9, v0, 4, 1
    v_lshlrev_b32 v9, 1, v9
    v_bfe_u32 v10, v0, 1, 1
    v_or_b32 v9, v9, v10
    v_bfe_u32 v10, v0, 3, 1
    v_lshl_or_b32 v9, v10, 2, v9
    v_lshl_add_u32 v6, v9, 4, v6
    v_and_b32 v9, 1, v0
    v_lshl_add_u32 v6, v9, 3, v6
    s_lshl_b32 s{sT3}, s{sT2}, 15
    v_add_u32 v6, s{sT3}, v6
    v_xor_b32 v7, 64, v6''')
    set_flag(4)
    stamp(7)
    for i in range(16):
        for nt in range(2):
            for j in range(2):
                A(f'ds_read_b64_tr_b16 {vr(WF+8*i+4*nt+2*j,2)}, v{6+nt} offset:{i*2048+j*1024}')
    A(f'''s_and_b32 s{sT}, s{sW}, 3
    s_add_u32 s{sN1}, s{sT}, 1
    s_and_b32 s{sN1}, s{sN1}, 2
    s_lshl_b32 s{sN1}, s{sN1}, 3
    s_andn2_b32 s{sN2}, s{sWG}, 7
    s_lshl_b32 s{sT3}, s{sT2}, 2
    s_add_u32 s{sN2}, s{sN2}, s{sT3}
    s_lshl_b32 s{sOb}, s{sN2}, 14
    s_lshl_b32 s{sN2}, s{sN2}, 7
    s_add_u32 s{sN1}, s{sN1}, s{sN2}
    s_add_u32 s{sN1}, s{sN1}, {WS_FL+16}
    v_bfe_u32 v4, v0, 2, 2
    v_lshlrev_b32 v4, 7, v4
    v_and_b32 v5, 3, v0
    v_lshl_add_u32 v4, v5, 2, v4
    v_add_u32 v4, s{sN1}, v4
    s_lshl_b32 s{sT3}, s{sT}, 10
    s_add_u32 s{sOb}, s{sOb}, s{sT3}
    s_add_u32 s{sOb}, s{sOb}, {WS_O}''')
    poll(4, 'L_po')
    stamp(8)
    for i in range(16):
        A(f'buffer_load_dwordx4 {vr(OF+4*i,4)}, v2, {srd(WS)}, s{sOb} offen sc1')
        if i < 15: A(f's_add_u32 s{sOb}, s{sOb}, 4096')
    A(f'''s_lshl_b32 s{sN1}, s{sW}, 12
    s_add_u32 s{sN1}, s{sN1}, {L_X}
    s_xor_b32 s{sN2}, s{sW}, 4
    s_lshl_b32 s{sN2}, s{sN2}, 12
    s_add_u32 s{sN2}, s{sN2}, {L_X}
    v_add_u32 v8, s{sN1}, v2
    v_add_u32 v9, s{sN2}, v2
    v_and_b32 v10, 31, v0
    v_lshlrev_b32 v10, 11, v10
    v_lshrrev_b32 v11, 5, v0
    v_lshl_add_u32 v10, v11, 4, v10
    s_lshl_b32 s{sN1}, s{sRB}, 2
    s_add_u32 s{sN1}, s{sN1}, s{sT}
    s_lshl_b32 s{sN1}, s{sN1}, 16
    s_lshl_b32 s{sN2}, s{sB}, 10
    s_add_u32 s{sN1}, s{sN1}, s{sN2}
    s_lshl_b32 s{sN2}, s{sHG}, 7
    s_add_u32 s{sN1}, s{sN1}, s{sN2}
    s_lshl_b32 s{sN2}, s{sT2}, 6
    s_add_u32 s{sN1}, s{sN1}, s{sN2}
    s_waitcnt lgkmcnt(0)''')
    for i in range(16):
        A(f's_waitcnt vmcnt({15-i})')
        for nt in range(2):
            acc = vr(AC3+16*nt, 16)
            A(f'{MFMA} {acc}, {vr(WF+8*i+4*nt,4)}, {vr(OF+4*i,4)}, {"0" if i == 0 else acc}')
    stamp(9)
    for kh in range(2):
        if kh == 0: A(f's_cmp_lg_u32 s{sT2}, 0\ns_cbranch_scc1 L_x1')
        else: A('L_x1:\ns_nop 7\ns_nop 3')
        send = AC3 + 16*(1-kh); keep = AC3 + 16*kh
        for g in range(4): A(f'ds_write_b128 v8, {vr(send+4*g,4)} offset:{g*1024}')
        A('s_waitcnt lgkmcnt(0)\ns_barrier')
        for g in range(4): A(f'ds_read_b128 {vr(16+4*g,4)}, v9 offset:{g*1024}')
        for g in range(4):
            A(f's_waitcnt lgkmcnt({3-g})')
            for r in range(4): A(f'v_add_f32 v{keep+4*g+r}, v{keep+4*g+r}, v{16+4*g+r}')
            for j in range(2): A(f'v_cvt_pk_bf16_f32 v{32+2*g+j}, v{keep+4*g+2*j}, v{keep+4*g+2*j+1}')
        if kh == 0: A('s_branch L_x2')
    A('L_x2:\ns_nop 1')
    for p in range(2):
        A(f'v_permlane32_swap_b32 v{32+4*p}, v{34+4*p}\nv_permlane32_swap_b32 v{33+4*p}, v{35+4*p}')
        A(f'buffer_store_dwordx4 {vr(32+4*p,4)}, v10, {srd(OUT)}, s{sN1} offen offset:{32*p}')
    if PROF:
        A('s_waitcnt vmcnt(0)')
        stamp(10)
        A(f'''s_lshl_b32 s{sT}, s2, 3
        s_add_u32 s{sT}, s{sT}, s{sW}
        s_lshl_b32 s{sT}, s{sT}, 7
        s_add_u32 s{sT}, s{sT}, {WS_ST}
        v_mov_b32 v1, 0''')
        for i in range(11):
            A(f'v_mov_b32 v2, s{sST+2*i}\nbuffer_store_dword v2, v1, {srd(WS)}, s{sT} offen offset:{4*i}')
        A(f'v_mov_b32 v2, s100\nbuffer_store_dword v2, v1, {srd(WS)}, s{sT} offen offset:60')
        A('s_mov_b32 s99, s100\ns_memrealtime s[100:101]\ns_waitcnt lgkmcnt(0)')
        A(f'v_mov_b32 v2, s100\nbuffer_store_dword v2, v1, {srd(WS)}, s{sT} offen offset:56')
    if DBGP:
        A(f'''s_mov_b64 exec, 1
        v_mov_b32 v2, s100
        buffer_atomic_umax v2, v1, {srd(DBG)}, 0 offen offset:4
        s_not_b32 s{sT}, s99
        v_mov_b32 v3, s{sT}
        buffer_atomic_umax v3, v1, {srd(DBG)}, 0 offen offset:8
        s_cmp_lg_u32 s2, 77
        s_cbranch_scc1 L_end
        s_cmp_eq_u32 s{sW}, 4
        s_cbranch_scc1 L_dbg4
        s_cmp_lg_u32 s{sW}, 0
        s_cbranch_scc1 L_end''')
        for i in range(1, 11):
            A(f's_sub_u32 s{sT}, s{sST+2*i}, s{sST}\nv_mov_b32 v2, s{sT}\nbuffer_store_dword v2, v1, {srd(DBG)}, 0 offen offset:{8+4*i}')
        A('s_branch L_end\nL_dbg4:')
        for k, i in enumerate((5, 6, 8)):
            A(f's_sub_u32 s{sT}, s{sST+2*i}, s{sST}\nv_mov_b32 v2, s{sT}\nbuffer_store_dword v2, v1, {srd(DBG)}, 0 offen offset:{52+4*k}')
    A('L_end:\ns_endpgm')

prologue()
compute_p1()
attention(0)
A('s_branch L_p3')
loader_p1()
stamp(3)
attention(1)
phase3()
fallback(0)
fallback(1)
body, nadd = A.finish()
hdr = open('cdna_kernels/' + NAME + '.s.ref').read().split('; Override launch')[0]
out = hdr + f'''; @launch grid=(256,1,1) block=(512,1,1) lds=163840
.amdgcn_target "amdgcn-amd-amdhsa--gfx950"
.text
.globl {NAME}_kernel
.p2align 8
.type {NAME}_kernel,@function
{NAME}_kernel:
{body}.section .rodata,"a"
.p2align 6
.amdhsa_kernel {NAME}_kernel
  .amdhsa_next_free_vgpr 256
  .amdhsa_next_free_sgpr 102
  .amdhsa_accum_offset 256
  .amdhsa_group_segment_fixed_size 0
  .amdhsa_kernarg_size 72
  .amdhsa_user_sgpr_count 2
  .amdhsa_user_sgpr_kernarg_segment_ptr 1
  .amdhsa_system_sgpr_workgroup_id_x 1
.end_amdhsa_kernel
'''
dst = [a for a in sys.argv[1:] if not a.startswith('--')]
open(dst[0] if dst else 'cdna_kernels/' + NAME + '.s', 'w').write(out)
print('nops inserted', nadd, 'lines', body.count('\n'))
```

```python
import sys, struct
from asmlib import Asm
NAME = 'concat_heads__sliding_block__sliding_block__prompt'
DBGP = '--dbg' in sys.argv
PROF = '--prof' in sys.argv or DBGP
def opt(name, d):
    for a in sys.argv:
        if a.startswith('--'+name+'='): return int(a.split('=')[1])
    return d
DEP = opt('dep', 2); ROT = opt('rot', 0); PF = opt('pf', 1); LDSC = ' sc1' if opt('ldsc', 1) else ''
FORCE_FB = '--force-fb' in sys.argv
def f2u(x): return struct.unpack('<I', struct.pack('<f', x))[0]
A = Asm()
SLOT = 40960
WS_O = 8 << 20; WS_FL = 12 << 20; WS_ST = 13 << 20; WS_SZ = 14 << 20
RING0 = 40960; L_M = 0; L_CNT = 4096; L_WO = 4608; L_B = 70144; L_X = 122880
CSC = 0.25 * 1.4426950408889634
BIG = 1e30
sW = 3; X, Wq, WO, WS, OUT, DBG = 4, 8, 12, 16, 20, 24
sB, sRB, sHG, sWG = 28, 29, 30, 31
sXo, sWo, sSl, sIt, sT, sT2, sN1, sN2 = 50, 51, 52, 53, 54, 55, 56, 57
sHalf = 60; sC = 62; sSpin = 63; sFl = 64; sOb = 65; sT3 = 66; sLo = 67; sHi = 68
sST = 72
nst = [0]
def srd(i): return f's[{i}:{i+3}]'
def vr(a, n): return f'v[{a}:{a+n-1}]'
def stamp(idx):
    if PROF:
        A(f's_memtime s[{sST+2*idx}:{sST+2*idx+1}]\ns_waitcnt lgkmcnt(0)')
QF = 16; OA = 32; SB = 96; MK = 128; KF = 144; VF = 168; PK = 240
sEarly, sKB1, sKB2, sIss, sNew, sFB = 32, 33, 34, 35, 36, 37
sE1, sE2, sE3 = 39, 40, 41
XCH = 4608
OST = opt('ost', 0)
ACC = 16; FR = 112
MFMA = 'v_mfma_f32_32x32x16_bf16'

def prologue():
    A(f'''s_cmp_ge_u32 s2, 256
    s_cbranch_scc1 L_end
    s_load_dwordx8 s[32:39], s[0:1], 0
    s_load_dwordx8 s[40:47], s[0:1], 32
    s_load_dwordx2 s[48:49], s[0:1], 64''')
    if PROF: A(f's_memrealtime s[100:101]')
    A(f'''v_lshrrev_b32 v1, 6, v0
    v_and_b32 v0, 63, v0
    s_and_b32 s{sT}, s2, 7
    v_readfirstlane_b32 s{sW}, v1
    s_lshr_b32 s{sT2}, s2, 3
    s_lshr_b32 s{sB}, s{sT}, 2
    s_and_b32 s{sT}, s{sT}, 3
    s_lshl_b32 s{sT}, s{sT}, 2
    s_lshr_b32 s{sRB}, s{sT2}, 3
    s_add_u32 s{sRB}, s{sRB}, s{sT}
    s_and_b32 s{sHG}, s{sT2}, 7
    s_lshl_b32 s{sWG}, s{sB}, 4
    s_add_u32 s{sWG}, s{sWG}, s{sRB}
    s_lshl_b32 s{sWG}, s{sWG}, 3
    s_add_u32 s{sWG}, s{sWG}, s{sHG}
    s_mov_b32 s{X+2}, 0x200000
    s_mov_b32 s{X+3}, 0x20000
    s_mov_b32 s{Wq+2}, 0x180000
    s_mov_b32 s{Wq+3}, 0x20000
    s_mov_b32 s{WO+2}, 0x80000
    s_mov_b32 s{WO+3}, 0x20000
    s_mov_b32 s{WS+2}, {WS_SZ}
    s_mov_b32 s{WS+3}, 0x20000
    s_mov_b32 s{OUT+2}, 0x400000
    s_mov_b32 s{OUT+3}, 0x20000
    s_mov_b32 s{DBG+2}, 256
    s_mov_b32 s{DBG+3}, 0x20000
    s_mov_b32 s{sHalf}, 0xffff
    s_mov_b32 s{sHalf+1}, 0xffff
    s_cmp_eq_u32 s{sB}, 0
    s_waitcnt lgkmcnt(0)
    s_cselect_b32 s{X}, s32, s38
    s_cselect_b32 s{X+1}, s33, s39
    s_cselect_b32 s{Wq}, s34, s40
    s_cselect_b32 s{Wq+1}, s35, s41
    s_cselect_b32 s{WO}, s36, s42
    s_cselect_b32 s{WO+1}, s37, s43
    s_mov_b32 s{OUT}, s44
    s_mov_b32 s{OUT+1}, s45
    s_mov_b32 s{DBG}, s46
    s_mov_b32 s{DBG+1}, s47
    s_mov_b32 s{WS}, s48
    s_mov_b32 s{WS+1}, s49''')
    stamp(0)
    A(f'''s_cmp_ge_u32 s{sW}, 4
    s_cbranch_scc1 L_loader''')

def preset_ones():
    A(f'v_mov_b32 v1, 0x3f803f80')
    for i in range(48): A(f'v_mov_b32 v{VF+i}, v1')

def common_consts():
    A(f'''s_lshl_b32 s{sFl}, s{sWG}, 7
    s_add_u32 s{sFl}, s{sFl}, {WS_FL}
    s_mov_b32 s{sC}, {f2u(CSC)}
    s_mov_b32 s{sLo}, {f2u(2.0**-40)}
    s_mov_b32 s{sHi}, {f2u(2.0**40)}''')

def lds_min4(dst_s, vt, addr_v, off, wait=True):
    A(f'ds_read_b128 {vr(vt,4)}, v{addr_v} offset:{off}')
    A('s_waitcnt lgkmcnt(0)')
    min4(dst_s, vt)
def min4(dst_s, vt):
    A(f'v_min3_u32 v{vt}, v{vt}, v{vt+1}, v{vt+2}\nv_min_u32 v{vt}, v{vt}, v{vt+3}\nv_readfirstlane_b32 s{dst_s}, v{vt}')

def loader_p1():
    A('L_loader:')
    A(f"""v_lshrrev_b32 v6, 3, v0
    v_and_b32 v7, 7, v0
    v_lshrrev_b32 v8, 4, v0
    v_xor_b32 v9, v7, v8
    v_lshlrev_b32 v9, 4, v9
    v_lshl_add_u32 v2, v6, 10, v9
    v_xor_b32 v3, 64, v2
    v_and_b32 v8, 1, v8
    v_lshlrev_b32 v8, 2, v8
    v_xor_b32 v9, v7, v8
    v_lshlrev_b32 v9, 4, v9
    v_mul_u32_u24 v4, 3072, v6
    v_add_u32 v4, v4, v9
    v_lshl_add_u32 v5, v6, 10, v9
    s_sub_u32 s{sT}, s{sW}, 4
    s_lshl_b32 s{sXo}, s{sRB}, 17
    s_lshl_b32 s{sT2}, s{sT}, 15
    s_add_u32 s{sXo}, s{sXo}, s{sT2}
    s_mul_i32 s{sWo}, s{sT}, {16*3072}
    s_lshl_b32 s{sT2}, s{sHG}, 7
    s_add_u32 s{sWo}, s{sWo}, s{sT2}
    s_lshl_b32 s{sN1}, s{sT}, 12
    s_add_u32 s{sN1}, s{sN1}, {RING0+SLOT}
    s_lshl_b32 s{sN2}, s{sT}, 11
    s_add_u32 s{sN2}, s{sN2}, {16384+RING0+SLOT}
    s_lshl_b32 s{sT}, s{sT}, 2
    v_mov_b32 v10, 0
    v_mov_b32 v11, s{sT}
    s_mov_b32 s{sIt}, 0
    s_mov_b32 s69, 1
    L_ld_loop:""")
    for j in range(4):
        A(f"""s_add_u32 m0, s{sN1}, {j*1024}
        s_add_u32 s{sT}, s{sXo}, {j*8192}
        buffer_load_dwordx4 v{2+(j&1)}, {srd(X)}, s{sT} offen lds""")
    for seg in range(3):
        for q in range(2):
            A(f"""s_add_u32 m0, s{sN2}, {seg*8192+q*1024}
            s_add_u32 s{sT}, s{sWo}, {seg*1024+q*8*3072}
            buffer_load_dwordx4 v4, {srd(Wq)}, s{sT} offen lds""")
    A(f"""s_add_u32 s{sXo}, s{sXo}, 128
    s_add_u32 s{sWo}, s{sWo}, {64*3072}
    s_add_u32 s69, s69, 1
    s_mov_b32 s{sT}, {SLOT}
    s_cmp_eq_u32 s69, 3
    s_cselect_b32 s{sT}, {-2*SLOT & 0xffffffff}, s{sT}
    s_cselect_b32 s69, 0, s69
    s_add_u32 s{sN1}, s{sN1}, s{sT}
    s_add_u32 s{sN2}, s{sN2}, s{sT}
    s_cmp_lg_u32 s{sIt}, 0
    s_cbranch_scc1 L_ld_sig
    s_barrier
    s_mov_b32 s{sIt}, 1
    s_branch L_ld_loop
    L_ld_sig:
    v_mov_b32 v12, s{sIt}
    s_add_u32 s{sIt}, s{sIt}, 1
    s_waitcnt vmcnt(10)
    ds_write_b32 v11, v12 offset:{L_CNT}
    s_cmp_lt_u32 s{sIt}, 3
    s_cbranch_scc1 L_ld_loop
    s_cmp_eq_u32 s{sIt}, 8
    s_cbranch_scc1 L_ld_done
    s_sub_u32 s{sT3}, s{sIt}, 2""")
    lds_min4(sT2, 16, 10, L_CNT+16)
    A(f"""s_cmp_ge_u32 s{sT2}, s{sT3}
    s_cbranch_scc1 L_ld_loop
    v_mov_b32 v12, s{sIt}
    s_waitcnt vmcnt(0)
    ds_write_b32 v11, v12 offset:{L_CNT}
    L_ld_spin:""")
    lds_min4(sT2, 16, 10, L_CNT+16)
    A(f"""s_cmp_ge_u32 s{sT2}, s{sT3}
    s_cbranch_scc1 L_ld_loop
    s_branch L_ld_spin
    L_ld_done:
    buffer_load_dword v7, v10, {srd(DBG)}, 0 offen sc1
    v_mov_b32 v12, 8
    s_waitcnt vmcnt(1)
    ds_write_b32 v11, v12 offset:{L_CNT}""")
    stamp(1)
    A(f"""v_and_b32 v6, 31, v0
    v_lshrrev_b32 v9, 5, v0
    v_lshlrev_b32 v9, 2, v9
    v_sub_u32 v6, v6, v9
    v_cvt_f32_i32 v6, v6
    s_mov_b32 s{sT}, {f2u(-BIG)}
    v_lshlrev_b32 v8, 4, v0""")
    for r in range(16):
        c = 8*(r//4) + r % 4
        A(f'v_sub_f32 v{MK+r}, {f2u(float(c))}, v6')
        A(f'v_med3_f32 v{MK+r}, v{MK+r}, 0, 1.0')
        A(f'v_mul_f32 v{MK+r}, s{sT}, v{MK+r}')
    for g in range(4):
        A(f'ds_write_b128 v8, {vr(MK+4*g,4)} offset:{L_M+g*1024}')
    A(f"""s_sub_u32 s{sT}, s{sW}, 4
    s_lshl_b32 s{sN1}, s{sT}, 14
    s_add_u32 s{sN1}, s{sN1}, {L_WO}
    s_lshl_b32 s{sWo}, s{sT}, 17
    s_lshl_b32 s{sT2}, s{sHG}, 7
    s_add_u32 s{sWo}, s{sWo}, s{sT2}
    s_mov_b32 s{sIt}, 0
    L_wo_spin:""")
    lds_min4(sT2, 16, 10, L_CNT+16)
    A(f"""s_cmp_lt_u32 s{sT2}, 6
    s_cbranch_scc1 L_wo_spin
    L_wo_loop:""")
    for j in range(4):
        A(f"""s_add_u32 m0, s{sN1}, {j*1024}
        s_add_u32 s{sT}, s{sWo}, {j*8192}
        buffer_load_dwordx4 v5, {srd(WO)}, s{sT} offen lds""")
    A(f"""s_add_u32 s{sN1}, s{sN1}, 4096
    s_add_u32 s{sWo}, s{sWo}, 32768
    s_add_u32 s{sIt}, s{sIt}, 1
    s_cmp_lt_u32 s{sIt}, 4
    s_cbranch_scc1 L_wo_loop""")
    preset_ones()
    common_consts()
    A(f"""s_mov_b32 s{sSpin}, 0
    s_waitcnt vmcnt(16)
    L_gate:
    v_readfirstlane_b32 s{sT}, v7
    s_cmp_lg_u32 s{sT}, 0
    s_cbranch_scc1 L_gate_ok
    s_sleep 4
    buffer_load_dword v7, v10, {srd(DBG)}, 0 offen sc1
    s_add_u32 s{sSpin}, s{sSpin}, 1
    s_cmp_lt_u32 s{sSpin}, 0x10000
    s_waitcnt vmcnt(0)
    s_cbranch_scc1 L_gate
    L_gate_ok:""")
    nb_setup()
    for r in range(16): A(f'v_mov_b32 v{OA+r}, 0')
    poll_issue()
    stamp(2)
    try_load(1, 'a')
    A(f's_cmp_lg_u32 s{sEarly}, 0\ns_cbranch_scc1 L_y_nopoll')
    poll_issue()
    A("""L_y_nopoll:
    s_waitcnt lgkmcnt(0)
    s_barrier""")

def frag_reads(buf, ks):
    F = FR + 20*buf
    xs = [f'ds_read_b128 {vr(F+4*mt,4)}, v{2+ks} offset:{mt*4096}' for mt in range(2)]
    def wrd(seg): return [f'ds_read_b64_tr_b16 {vr(F+8+4*seg+2*j,2)}, v6 offset:{16384+seg*8192+ks*2048+j*512}' for j in range(2)]
    return [xs[0]] + wrd(0) + [xs[1]] + wrd(1) + wrd(2)
def mfmas(buf):
    F = FR + 20*buf
    L = []
    for seg in range(3):
        for mt in range(2):
            acc = vr(ACC + (seg*2+mt)*16, 16)
            x = vr(F+4*mt, 4); w = vr(F+8+4*seg, 4)
            a, b = (w, x) if seg < 2 else (x, w)
            L.append(f'{MFMA} {acc}, {a}, {b}, {acc}')
    return L

def compute_p1():
    A(f'''v_mov_b32 v12, 0
    v_lshlrev_b32 v13, 2, v0
    ds_write_b32 v13, v12 offset:{L_CNT}
    s_waitcnt lgkmcnt(0)
    s_barrier''')
    A(f'''s_or_b32 s{sT}, s2, s{sW}
    s_cmp_lg_u32 s{sT}, 0
    s_cbranch_scc1 L_noinit
    v_lshrrev_b32 v1, 2, v0
    v_and_b32 v2, 3, v0
    v_lshlrev_b32 v1, 7, v1
    v_lshl_add_u32 v1, v2, 4, v1
    v_mov_b32 v4, 0
    v_mov_b32 v5, 0
    v_mov_b32 v6, 0
    v_mov_b32 v7, 0
    s_mov_b32 s{sT}, {WS_FL}
    L_init:
    buffer_store_dwordx4 v[4:7], v1, {srd(WS)}, s{sT} offen sc1
    s_add_u32 s{sT}, s{sT}, 2048
    s_cmp_lt_u32 s{sT}, {WS_FL+32768}
    s_cbranch_scc1 L_init
    v_mov_b32 v2, 1
    s_waitcnt vmcnt(0)
    buffer_store_dword v2, v4, {srd(DBG)}, 0 offen sc1
    L_noinit:''')
    A(f'''v_and_b32 v7, 31, v0
    v_lshrrev_b32 v8, 5, v0
    v_lshrrev_b32 v9, 1, v7
    v_and_b32 v9, 7, v9
    v_xor_b32 v9, v9, v8
    v_lshlrev_b32 v9, 4, v9
    v_lshl_add_u32 v2, v7, 7, v9
    s_lshr_b32 s{sT}, s{sW}, 1
    s_lshl_b32 s{sT}, s{sT}, 13
    s_add_u32 s{sT}, s{sT}, {RING0+SLOT}
    v_add_u32 v2, s{sT}, v2
    v_xor_b32 v3, 32, v2
    v_xor_b32 v4, 64, v2
    v_xor_b32 v5, 96, v2
    v_bfe_u32 v9, v0, 2, 2
    v_lshl_add_u32 v9, v8, 3, v9
    v_lshlrev_b32 v6, 7, v9
    v_bfe_u32 v9, v0, 4, 1
    v_lshlrev_b32 v9, 1, v9
    v_bfe_u32 v10, v0, 1, 1
    v_or_b32 v9, v9, v10
    v_bfe_u32 v10, v0, 3, 1
    s_and_b32 s{sT}, s{sW}, 1
    v_xor_b32 v10, s{sT}, v10
    v_lshl_or_b32 v9, v10, 2, v9
    v_lshl_add_u32 v6, v9, 4, v6
    v_and_b32 v9, 1, v0
    v_lshl_add_u32 v6, v9, 3, v6
    v_add_u32 v6, {RING0+SLOT}, v6
    s_lshl_b32 s{sT}, s{sW}, 2
    v_mov_b32 v13, s{sT}''')
    epi_addr()
    for i in range(96): A(f'v_mov_b32 v{ACC+i}, 0')
    preset_ones()
    common_consts()
    A(f's_mov_b32 s{sIt}, 0\ns_mov_b32 s69, 1\nL_c_spin0:')
    lds_min4(sT2, 8, 12, L_CNT)
    A(f's_cmp_lt_u32 s{sT2}, 1\ns_cbranch_scc1 L_c_spin0')
    stamp(1)
    Q = []
    def ds(txt, tag): A(txt); Q.append(tag)
    def wait(tag):
        n = len(Q) - 1 - max(i for i, t in enumerate(Q) if t == tag)
        A(f's_waitcnt lgkmcnt({n})')
        del Q[:len(Q)-n]
    TAGS = ['x0', 'wq', 'wq', 'x1', 'wk', 'wk', 'wv', 'wv']
    for r, t in zip(frag_reads(0, 0), TAGS): ds(r, (0, t))
    A('L_p1_loop:')
    for ks in range(4):
        cur = ks & 1
        M = mfmas(cur)
        nk = (ks+1) & 3
        R = [(r, (nk, t)) for r, t in zip(frag_reads(cur ^ 1, nk), TAGS)]
        if ks < 3:
            wait((ks, 'wq')); A(M[0]); ds(*R[0]); ds(*R[1])
            wait((ks, 'x1')); A(M[1]); ds(*R[2]); ds(*R[3])
            wait((ks, 'wk')); A(M[2]); ds(*R[4]); ds(*R[5])
            A(M[3]); ds(*R[6]); ds(*R[7])
            wait((ks, 'wv')); A(M[4])
            if ks == 2: ds(f'ds_read_b128 v[8:11], v12 offset:{L_CNT}', 'cnt')
            A(M[5])
        else:
            wait((ks, 'wq')); A(M[0])
            A(f"""s_add_u32 s{sIt}, s{sIt}, 1
            s_add_u32 s69, s69, 1
            s_mov_b32 s{sT}, {SLOT}
            s_cmp_eq_u32 s69, 3
            s_cselect_b32 s{sT}, {-2*SLOT & 0xffffffff}, s{sT}
            s_cselect_b32 s69, 0, s69
            v_mov_b32 v14, s{sIt}""")
            wait((ks, 'x1')); A(M[1])
            for i in range(2, 7): A(f'v_add_u32 v{i}, s{sT}, v{i}')
            wait('cnt')
            A(f'ds_write_b32 v13, v14 offset:{L_CNT+16}')
            min4(sT2, 8)
            A(M[2])
            A(f"""s_min_u32 s{sT3}, s{sIt}, 7
            s_cmp_gt_u32 s{sT2}, s{sT3}
            s_cbranch_scc1 L_c_ok
            L_c_spin:""")
            lds_min4(sT2, 8, 12, L_CNT)
            A(f"""s_cmp_le_u32 s{sT2}, s{sT3}
            s_cbranch_scc1 L_c_spin
            L_c_ok:""")
            Q[:] = []
            ds(*R[0]); ds(*R[1])
            A(M[3]); ds(*R[2]); ds(*R[3]); ds(*R[4])
            A(M[4]); ds(*R[5]); ds(*R[6]); ds(*R[7])
            A(f's_cmp_lt_u32 s{sIt}, 8')
            A(M[5])
            A('s_cbranch_scc1 L_p1_loop')
    stamp(2)
    A('L_c_spin2:')
    lds_min4(sT2, 8, 12, L_CNT+16)
    A(f's_cmp_lt_u32 s{sT2}, 7\ns_cbranch_scc1 L_c_spin2')
    tmp = FR
    def cvt8(acc, dst):
        for i in range(8): A(f'v_cvt_pk_bf16_f32 v{dst+i}, v{acc+2*i}, v{acc+2*i+1}')
    n = 0
    for mt in range(2):
        acc = ACC + (1*2+mt)*16; d = tmp + 8*(n % 5); n += 1
        cvt8(acc, d)
        for e in range(2):
            A(f'buffer_store_dwordx4 {vr(d+4*e,4)}, v152, {srd(WS)}, s{sE2 if e else sE1} offen offset:{mt*1024} sc1')
            A(f'ds_write_b128 v155, {vr(d+4*e,4)} offset:{e*4096+mt*1024}')
    for mt in range(2):
        acc = ACC + (2*2+mt)*16; d = tmp + 8*(n % 5); n += 1
        cvt8(acc, d)
        for a in range(2):
            A(f'buffer_store_dwordx4 {vr(d+4*a,4)}, v154, {srd(WS)}, s{sE3} offen offset:{mt*1024+a*512} sc1')
            A(f'ds_write_b128 v153, {vr(d+4*a,4)} offset:{16384+mt*1024+a*512}')
    for mt in range(2):
        acc = ACC + mt*16
        for i in range(8): A(f'v_pk_mul_f32 {vr(acc+2*i,2)}, {vr(acc+2*i,2)}, s[{sC}:{sC+1}] op_sel_hi:[1,0]')
        cvt8(acc, acc)
        for e in range(2):
            A(f'ds_write_b128 v155, {vr(acc+4*e,4)} offset:{32768+e*4096+mt*1024}')
    nb_setup()
    A('s_waitcnt lgkmcnt(0)\ns_barrier')
    stamp(3)

def epi_addr():
    A(f'''v_lshlrev_b32 v152, 4, v0
    v_bfe_u32 v10, v0, 4, 1
    v_and_b32 v11, 15, v0
    v_lshrrev_b32 v7, 5, v0
    v_lshl_or_b32 v11, v7, 4, v11
    v_lshlrev_b32 v11, 4, v11
    v_lshl_add_u32 v153, v10, 12, v11
    v_lshl_add_u32 v154, v10, 13, v11
    s_and_b32 s{sT}, s{sW}, 1
    s_lshr_b32 s{sT2}, s{sW}, 1
    s_lshl_b32 s{sN1}, s{sT}, 13
    s_lshl_b32 s{sT3}, s{sT2}, 11
    s_add_u32 s{sN1}, s{sN1}, s{sT3}
    s_add_u32 s{sN1}, s{sN1}, {L_B}
    v_add_u32 v155, s{sN1}, v152
    v_add_u32 v153, s{sN1}, v153
    s_lshl_b32 s{sE1}, s{sWG}, 15
    s_lshl_b32 s{sT}, s{sT}, 14
    s_add_u32 s{sE1}, s{sE1}, s{sT}
    s_add_u32 s{sE1}, s{sE1}, s{sT3}
    s_add_u32 s{sE2}, s{sE1}, 8192
    s_add_u32 s{sE3}, s{sE1}, 4096''')

UNITS = {0: dict(tiles=[0, 3, -1, -2, -5, -8], keep=(0, 1),
                 own=[(0,0,1),(1,0,0),(2,0,0),(3,0,0),(3,3,1)],
                 C=[(0,-5,0),(1,-5,0),(2,-5,0),(3,-5,1),(0,-8,1)]),
         1: dict(tiles=[1, 2, -3, -4, -6, -7], keep=(2, 3),
                 own=[(1,1,1),(2,1,0),(3,1,0),(2,2,1),(3,2,0)],
                 C=[(0,-6,0),(1,-6,0),(2,-6,1),(0,-7,0),(1,-7,1)])}
for U in UNITS.values(): U['B'] = [(q, t, 0) for t in U['tiles'][2:4] for q in range(4)]
CT = [None]
def kf(t): return KF + 4*CT[0].index(t)
def vf(t, a): return VF + 8*CT[0].index(t) + 4*a
def qk(u, sb):
    q, t, m = u
    return f'{MFMA} {vr(sb,16)}, {vr(kf(t),4)}, {vr(QF+4*q,4)}, {vr(MK,16) if m else "0"}'
def pv(u, sb, a, first):
    q, t, m = u
    o = vr(OA+16*q, 16)
    return f'{MFMA} {o}, {vr(vf(t,a),4)}, {vr(sb+8*a,4)}, {"0" if first else o}'
def segment(units, started, pre_qk=None, pre_pv=None, mid=None):
    n = len(units)
    def QK(i):
        if pre_qk: pre_qk(units[i])
        A(qk(units[i], SB+16*(i & 1)))
    def PV(i, a):
        u = units[i]
        if pre_pv: pre_pv(u)
        first = (u[0] not in started)
        started.add(u[0])
        A(pv(u, SB+16*(i & 1), a, first))
    QK(0)
    if n > 1: QK(1)
    for i in range(n):
        S = SB + 16*(i & 1)
        e = lambda r: A(f'v_exp_f32 v{S+r}, v{S+r}')
        def c(j):
            d = S + j if j < 4 else S + 4 + j
            A(f'v_cvt_pk_bf16_f32 v{d}, v{S+2*j}, v{S+2*j+1}')
        if mid and i in mid: mid[i]()
        e(0); e(1)
        if i > 0:
            PV(i-1, 1)
            if i+1 < n: QK(i+1)
        for j in range(7):
            e(2*j+2); c(j); e(2*j+3)
            if j == 4: PV(i, 0)
        A('s_nop 0'); c(7)
    PV(n-1, 1)

def nb_setup():
    A(f'''s_and_b32 s{sT}, s{sW}, 3
    s_lshl_b32 s{sT2}, s{sT}, 12
    s_add_u32 s{sT2}, s{sT2}, {L_B}
    v_lshlrev_b32 v2, 4, v0
    v_add_u32 v7, s{sT2}, v2
    v_and_b32 v11, 15, v0
    v_lshrrev_b32 v12, 5, v0
    v_lshl_or_b32 v11, v12, 4, v11
    v_lshlrev_b32 v3, 4, v11
    v_add_u32 v8, s{sT2}, v3
    v_add_u32 v3, 4096, v3
    s_lshl_b32 s{sKB1}, s{sWG}, 2
    s_add_u32 s{sKB1}, s{sKB1}, s{sT}
    s_lshl_b32 s{sKB1}, s{sKB1}, 13
    s_sub_u32 s{sKB2}, s{sKB1}, {2*32*8192}
    s_sub_u32 s{sKB1}, s{sKB1}, {32*8192}
    s_lshl_b32 s{sOb}, s{sWG}, 14
    s_lshl_b32 s{sT2}, s{sT}, 10
    s_add_u32 s{sOb}, s{sOb}, s{sT2}
    s_add_u32 s{sOb}, s{sOb}, {WS_O}
    s_lshr_b32 s{sT}, s{sT}, 1
    s_lshl_b32 s{sT}, s{sT}, 2
    s_add_u32 s{sT}, s{sT}, s{sFl}
    s_sub_u32 s{sT}, s{sT}, 1024
    s_cmp_ge_u32 s{sRB}, 2
    s_cselect_b32 s{sT2}, 1024, 0
    v_and_b32 v4, 1, v0
    v_lshlrev_b32 v4, 3, v4
    v_add_u32 v4, s{sT}, v4
    v_bfe_u32 v5, v0, 1, 1
    v_mul_lo_u32 v5, v5, s{sT2}
    v_sub_u32 v4, v4, v5
    s_cmp_eq_u32 s{sRB}, 0
    s_cselect_b32 s{sEarly}, 1, 0
    s_mov_b32 s{sFB}, 0
    s_mul_i32 s{sT}, s{sW}, {XCH}
    s_add_u32 s{sT}, s{sT}, {L_X}
    v_add_u32 v5, s{sT}, v2
    v_lshl_add_u32 v10, v0, 2, s{sT}
    s_xor_b32 s{sT}, s{sW}, 4
    s_mul_i32 s{sT}, s{sT}, {XCH}
    s_add_u32 s{sT}, s{sT}, {L_X}
    v_add_u32 v6, s{sT}, v2
    v_lshl_add_u32 v11, v0, 2, s{sT}''')
    A(f'''s_lshr_b32 s{sT2}, s{sW}, 2
    s_and_b32 s{sN1}, s{sW}, 2
    s_lshl_b32 s{sN1}, s{sN1}, 3
    s_andn2_b32 s{sN2}, s{sWG}, 7
    s_lshl_b32 s{sT3}, s{sT2}, 2
    s_add_u32 s{sN2}, s{sN2}, s{sT3}
    s_lshl_b32 s{sN2}, s{sN2}, 7
    s_add_u32 s{sN1}, s{sN1}, s{sN2}
    s_add_u32 s{sN1}, s{sN1}, {WS_FL+16}
    v_bfe_u32 v9, v0, 2, 2
    v_lshlrev_b32 v9, 7, v9
    v_and_b32 v12, 3, v0
    v_lshl_add_u32 v9, v12, 2, v9
    v_add_u32 v9, s{sN1}, v9''')

def poll_issue(va=4, vd=15): A(f'buffer_load_dword v{vd}, v{va}, {srd(WS)}, 0 offen sc1')
def nb_loads(ty, tag):
    CT[0] = UNITS[ty]['tiles']
    def ld(t):
        base = sKB1 if t >= -4 else sKB2
        T = t % 4
        A(f'buffer_load_dwordx4 {vr(kf(t),4)}, v2, {srd(WS)}, s{base} offen offset:{T*1024}{LDSC}')
        A(f's_mov_b64 exec, s[{sHalf}:{sHalf+1}]')
        for a in range(2):
            A(f'buffer_load_dwordx4 {vr(vf(t,a),4)}, v3, {srd(WS)}, s{base} offen offset:{T*1024+a*512}{LDSC}')
        A('s_mov_b64 exec, -1')
    for t in CT[0][2:4]: ld(t)
    A(f's_cmp_eq_u32 s{sRB}, 1\ns_cbranch_scc1 L_nl{ty}{tag}')
    for t in CT[0][4:6]: ld(t)
    A(f'L_nl{ty}{tag}:\ns_mov_b32 s{sEarly}, 1')
def try_load(ty, tag):
    A(f'''s_cmp_lg_u32 s{sEarly}, 0
    s_cbranch_scc1 L_tl{ty}{tag}
    s_waitcnt vmcnt(0)
    v_cmp_ne_u32 vcc, 1, v15
    s_cbranch_vccnz L_tl{ty}{tag}''')
    nb_loads(ty, tag)
    A(f'L_tl{ty}{tag}:')

def set_flag(dw, wait=True):
    A(f'''s_lshl_b32 s{sT}, s{sW}, 2
    s_add_u32 s{sT}, s{sT}, s{sFl}
    v_mov_b32 v14, 1
    v_mov_b32 v13, 0''')
    if wait: A('s_waitcnt vmcnt(0)')
    else: wait_dyn(wait)
    A(f'''s_mov_b64 exec, 1
    buffer_store_dword v14, v13, {srd(WS)}, s{sT} offen offset:{dw*4} sc1
    s_mov_b64 exec, -1''')

RG = SB
def attention(ty):
    U = UNITS[ty]; CT[0] = U['tiles']
    own = U['tiles'][:2]
    for q in range(4): A(f'ds_read_b128 {vr(QF+4*q,4)}, v7 offset:{32768+q*1024}')
    for t in own: A(f'ds_read_b128 {vr(kf(t),4)}, v7 offset:{t*1024}')
    for g in range(4): A(f'ds_read_b128 {vr(MK+4*g,4)}, v2 offset:{L_M+g*1024}')
    A(f's_mov_b64 exec, s[{sHalf}:{sHalf+1}]')
    for t in own:
        for a in range(2): A(f'ds_read_b128 {vr(vf(t,a),4)}, v8 offset:{16384+t*1024+a*512}')
    A('s_mov_b64 exec, -1')
    if ty == 0:
        set_flag(0)
        poll_issue()
    A('s_waitcnt lgkmcnt(4)')
    started = set() if ty == 0 else {0}
    done = [False]
    def pre_pv(u):
        if not done[0]: A('s_waitcnt lgkmcnt(0)'); done[0] = True
    segment(U['own'], started, pre_pv=pre_pv, mid={(3 if ty == 0 else 2): (lambda: try_load(ty, 'm'))})
    stamp(4)
    Lfin = f'L_fin{ty}'
    A(f'''s_cmp_lg_u32 s{sEarly}, 0
    s_cbranch_scc1 L_have{ty}
    s_mov_b32 s{sSpin}, 0
    L_pkv{ty}:''')
    poll_issue()
    A(f'''s_add_u32 s{sSpin}, s{sSpin}, 1
    s_waitcnt vmcnt(0)
    v_cmp_ne_u32 vcc, 1, v15
    s_cmp_ge_u32 s{sSpin}, 0x10000
    s_cbranch_scc1 L_pkv{ty}_ok
    s_cbranch_vccnz L_pkv{ty}
    L_pkv{ty}_ok:''')
    nb_loads(ty, 'b')
    A(f'L_have{ty}:')
    stamp(5)
    A(f's_cmp_eq_u32 s{sRB}, 0\ns_cbranch_scc1 {Lfin}')
    LB = f'L_B{ty}'
    A(f's_cmp_eq_u32 s{sRB}, 1\ns_cbranch_scc1 {LB}_only')
    def mk_wait(order):
        seen = set()
        def w(u):
            t = u[1]
            if t not in seen:
                seen.add(t)
                A(f's_waitcnt vmcnt({3*(len(order)-1-order.index(t))})')
        return w
    for r in range(16): A(f'v_sub_f32 v{MK+r}, {f2u(-BIG)}, v{MK+r}')
    segment(U['B'] + U['C'], set(started), pre_qk=mk_wait(U['tiles'][2:6]))
    A(f's_branch {Lfin}')
    A(f'{LB}_only:')
    segment(U['B'], set(started), pre_qk=mk_wait(U['tiles'][2:4]))
    A(f'{Lfin}:')
    poll_issue(9)
    A('s_nop 9')
    stamp(6)
    send = [q for q in range(4) if q not in U['keep']]
    for a, q in enumerate(send):
        o = OA + 16*q
        A(f'ds_write_b128 v5, {vr(o,4)} offset:{a*2048}\nds_write_b128 v5, {vr(o+4,4)} offset:{a*2048+1024}')
        A(f'ds_write_b32 v10, v{o+8} offset:{4096+a*256}')
    A('s_waitcnt vmcnt(1) lgkmcnt(0)\ns_barrier')
    for a in range(2):
        A(f'ds_read_b32 v{RG+16+a}, v11 offset:{4096+a*256}')
        A(f'ds_read_b128 {vr(RG+8*a,4)}, v6 offset:{a*2048}\nds_read_b128 {vr(RG+8*a+4,4)}, v6 offset:{a*2048+1024}')
    for a, q in enumerate(U['keep']):
        o = OA + 16*q
        A(f's_waitcnt lgkmcnt({3-3*a})')
        A(f'v_add_f32 v{RG+16+a}, v{RG+16+a}, v{o+8}')
        for j in range(8): A(f'v_add_f32 v{RG+8*a+j}, v{RG+8*a+j}, v{o+j}')
    if ty == 1:
        for j in range(8): A(f'v_mov_b32 v{QF+j}, v{QF+8+j}')

def finalize():
    A('L_final:')
    for a in range(2):
        o = RG + 8*a; l = RG + 16 + a; m = f's[{70 if a else 58}:{71 if a else 59}]'
        A(f'v_rcp_f32 v{l+2}, v{l}')
        A(f'v_cmp_lt_f32 {m}, s{sLo}, v{l}\nv_cmp_gt_f32 vcc, s{sHi}, v{l}\ns_and_b64 {m}, {m}, vcc')
        for j in range(8): A(f'v_mul_f32 v{o+j}, v{o+j}, v{l+2}')
        for j in range(4): A(f'v_cvt_pk_bf16_f32 v{PK+4*a+j}, v{o+2*j}, v{o+2*j+1}')
        A(f'v_add_f32 v{l+4}, |v{o}|, |v{o+1}|')
        for j in range(2, 8): A(f'v_add_f32 v{l+4}, v{l+4}, |v{o+j}|')
    A(f'''v_add_f32 v{RG+20}, v{RG+20}, v{RG+21}
    s_and_b64 s[58:59], s[58:59], s[70:71]
    s_mov_b32 s{sT}, 0x7f800000
    v_cmp_gt_f32 vcc, s{sT}, v{RG+20}
    s_and_b64 s[58:59], s[58:59], vcc
    s_cmp_eq_u64 s[58:59], -1
    s_cselect_b32 s{sT}, {0 if FORCE_FB else 1}, 0
    s_or_b32 s{sT}, s{sT}, s{sFB}
    s_cbranch_scc0 L_fb
    s_lshr_b32 s{sT}, s{sW}, 2
    s_lshl_b32 s{sT}, s{sT}, 13
    s_add_u32 s{sT}, s{sT}, s{sOb}
    s_add_u32 s{sT2}, s{sT}, 4096''')
    for a in range(2):
        A(f'buffer_store_dwordx4 {vr(PK+4*a,4)}, v2, {srd(WS)}, s{sT2 if a else sT} offen sc1')

def fallback():
    A('L_fb:')
    sG, sG0, sQ, sA, sBv, sAd = 42, 43, 44, 45, 46, 47
    S = OA + 32; CB = OA + 48; MX = 12
    for g in range(4): A(f'ds_read_b128 {vr(MK+4*g,4)}, v2 offset:{L_M+g*1024}')
    A(f'''s_mov_b32 s{sFB}, 1
    s_lshr_b32 s{sQ}, s{sW}, 2
    s_lshl_b32 s{sQ}, s{sQ}, 1
    s_lshl_b32 s{sT}, s{sRB}, 2
    s_add_u32 s{sQ}, s{sQ}, s{sT}
    s_max_u32 s{sG0}, s{sQ}, 8
    s_sub_u32 s{sG0}, s{sG0}, 8
    v_mov_b32 v{MX}, 0xff800000
    v_mov_b32 v{MX+1}, 0xff800000''')
    for r in range(32): A(f'v_mov_b32 v{OA+r}, 0')
    A('s_waitcnt lgkmcnt(0)')
    for ps in range(2):
        A(f'''s_mov_b32 s{sG}, s{sG0}
        L_fbl{ps}:
        s_lshr_b32 s{sT}, s{sG}, 2
        s_sub_u32 s{sT}, s{sT}, s{sRB}
        s_add_u32 s{sT}, s{sT}, 2
        s_lshl_b32 s{sT}, s{sT}, 18
        s_add_u32 s{sAd}, s{sKB2}, s{sT}
        s_and_b32 s{sT}, s{sG}, 3
        s_lshl_b32 s{sT}, s{sT}, 10
        s_add_u32 s{sAd}, s{sAd}, s{sT}
        buffer_load_dwordx4 {vr(KF,4)}, v2, {srd(WS)}, s{sAd} offen sc1
        s_mov_b64 exec, s[{sHalf}:{sHalf+1}]
        buffer_load_dwordx4 {vr(VF,4)}, v3, {srd(WS)}, s{sAd} offen sc1
        buffer_load_dwordx4 {vr(VF+4,4)}, v3, {srd(WS)}, s{sAd} offen offset:512 sc1
        s_mov_b64 exec, -1
        s_waitcnt vmcnt(0)''')
        for a in range(2):
            A(f'''s_sub_u32 s{sT}, s{sQ}, s{sG}
            s_add_u32 s{sT}, s{sT}, {a}
            s_cmp_eq_u32 s{sT}, 0
            s_cselect_b32 s{sA}, 1.0, 0
            s_cmp_eq_u32 s{sT}, 8
            s_cselect_b32 s{sA}, -1.0, s{sA}
            s_cmp_ge_u32 s{sT}, 8
            s_cselect_b32 s{sBv}, {f2u(-BIG)}, 0''')
            A(f'v_mov_b32 v14, s{sBv}' if ps == 0 else f'v_sub_f32 v14, s{sBv}, v{MX+a}')
            for r in range(16): A(f'v_fma_f32 v{CB+r}, v{MK+r}, s{sA}, v14')
            A(f'{MFMA} {vr(S,16)}, {vr(KF,4)}, {vr(QF+4*a,4)}, {vr(CB,16)}')
            if ps == 0:
                for j in range(8): A(f'v_max3_f32 v{MX+a}, v{S+2*j}, v{S+2*j+1}, v{MX+a}')
            else:
                for r in range(16): A(f'v_exp_f32 v{S+r}, v{S+r}')
                for j in range(8): A(f'v_cvt_pk_bf16_f32 v{S+j if j < 4 else S+4+j}, v{S+2*j}, v{S+2*j+1}')
                for h in range(2):
                    A(f'{MFMA} {vr(OA+16*a,16)}, {vr(VF+4*h,4)}, {vr(S+8*h,4)}, {vr(OA+16*a,16)}')
                A('s_nop 7')
        A(f'''s_add_u32 s{sG}, s{sG}, 1
        s_add_u32 s{sT}, s{sQ}, 1
        s_cmp_le_u32 s{sG}, s{sT}
        s_cbranch_scc1 L_fbl{ps}''')
        if ps == 0:
            for a in range(2):
                A(f'v_mov_b32 v14, v{MX+a}\ns_nop 1\nv_permlane32_swap_b32 v{MX+a}, v14\nv_max_f32 v{MX+a}, v{MX+a}, v14')
    A('s_nop 7')
    for a in range(2):
        for j in range(8): A(f'v_mov_b32 v{RG+8*a+j}, v{OA+16*a+j}')
        A(f'v_mov_b32 v{RG+16+a}, v{OA+16*a+8}')
    A('s_branch L_final')

WF = 16; OF = 144; AC3 = 208
def wait_chain(sreg, nmax, per, extra, tag):
    for n in range(nmax, 0, -1):
        A(f's_cmp_ge_u32 s{sreg}, {n}\ns_cbranch_scc1 L_wc{tag}_{n}')
    A(f's_waitcnt vmcnt({extra})')
    for n in range(1, nmax+1):
        A(f'L_wc{tag}_{n}:\ns_waitcnt vmcnt({per*n+extra})')
def wait_dyn(_):
    A(f's_bcnt1_i32_b32 s{sT2}, s{sNew}')
    wait_chain(sT2, 4, 4, 0, 'f')
def o_issue(tag):
    A(f'''v_cmp_eq_u32 vcc, 1, v15
    s_lshr_b32 s{sT}, vcc_lo, 1
    s_and_b32 s{sT}, s{sT}, vcc_lo
    s_lshr_b32 s{sT2}, s{sT}, 2
    s_and_b32 s{sT}, s{sT}, s{sT2}
    s_cmp_ge_u32 s{sSpin}, 0x10000
    s_cselect_b32 s{sT}, -1, s{sT}
    s_and_b32 s{sT}, s{sT}, 0x1111
    s_andn2_b32 s{sNew}, s{sT}, s{sIss}
    s_or_b32 s{sIss}, s{sIss}, s{sNew}''')
    for g in range(4):
        A(f's_bitcmp0_b32 s{sNew}, {4*g}\ns_cbranch_scc1 L_oi{tag}{g}\ns_add_u32 s{sT}, s{sN2}, {g*16384}')
        for j in range(4):
            A(f'buffer_load_dwordx4 {vr(OF+16*g+4*j,4)}, v2, {srd(WS)}, s{sT} offen offset:{j*1024}{LDSC}')
        A(f'L_oi{tag}{g}:')
def phase3():
    A(f'''s_andn2_b32 s{sN2}, s{sWG}, 7
    s_and_b32 s{sT3}, s{sW}, 4
    s_add_u32 s{sN2}, s{sN2}, s{sT3}
    s_lshl_b32 s{sN2}, s{sN2}, 14
    s_and_b32 s{sT3}, s{sW}, 3
    s_lshl_b32 s{sT3}, s{sT3}, 12
    s_add_u32 s{sN2}, s{sN2}, s{sT3}
    s_add_u32 s{sN2}, s{sN2}, {WS_O}
    s_mov_b32 s{sIss}, 0
    s_mov_b32 s{sSpin}, 0
    s_waitcnt vmcnt(2)''')
    o_issue('a')
    stamp(8)
    A(f'''v_bfe_u32 v3, v0, 2, 2
    v_lshrrev_b32 v8, 5, v0
    v_lshl_add_u32 v3, v8, 2, v3
    v_lshlrev_b32 v12, 7, v3
    v_bfe_u32 v3, v0, 4, 1
    v_lshlrev_b32 v3, 1, v3
    v_bfe_u32 v10, v0, 1, 1
    v_or_b32 v3, v3, v10
    v_bfe_u32 v10, v0, 3, 1
    v_lshl_or_b32 v3, v10, 2, v3
    v_lshl_add_u32 v12, v3, 4, v12
    v_and_b32 v3, 1, v0
    v_lshl_add_u32 v12, v3, 3, v12
    s_lshr_b32 s{sT3}, s{sW}, 2
    s_lshl_b32 s{sT3}, s{sT3}, 15
    s_add_u32 s{sT3}, s{sT3}, {L_WO}
    v_add_u32 v12, s{sT3}, v12
    v_xor_b32 v7, 64, v12''')
    for i in range(16):
        for nt in range(2):
            for j in range(2):
                A(f'ds_read_b64_tr_b16 {vr(WF+8*i+4*nt+2*j,2)}, v{7 if nt else 12} offset:{i*2048+j*1024}')
    set_flag(4, wait=False)
    stamp(7)
    poll_issue(9)
    for r in range(32): A(f'v_mov_b32 v{AC3+r}, 0')
    A(f'''v_and_b32 v10, 31, v0
    v_lshlrev_b32 v10, 11, v10
    v_lshl_add_u32 v10, v8, 4, v10
    s_and_b32 s{sT}, s{sW}, 3
    s_lshl_b32 s{sN1}, s{sRB}, 2
    s_add_u32 s{sN1}, s{sN1}, s{sT}
    s_lshl_b32 s{sN1}, s{sN1}, 16
    s_lshl_b32 s{sT}, s{sB}, 10
    s_add_u32 s{sN1}, s{sN1}, s{sT}
    s_lshl_b32 s{sT}, s{sHG}, 7
    s_add_u32 s{sN1}, s{sN1}, s{sT}
    s_and_b32 s{sT}, s{sW}, 4
    s_lshl_b32 s{sT}, s{sT}, 4
    s_add_u32 s{sN1}, s{sN1}, s{sT}
    s_waitcnt lgkmcnt(0)
    L_p3l:''')
    for g in range(4):
        A(f's_bitcmp0_b32 s{sNew}, {4*g}\ns_cbranch_scc1 L_om{g}')
        if g < 3:
            A(f's_lshr_b32 s{sT}, s{sNew}, {4*g+4}\ns_bcnt1_i32_b32 s{sT2}, s{sT}')
        wait_chain(sT2, 3-g, 4, 2, f'm{g}')
        for j in range(4):
            for nt in range(2):
                acc = vr(AC3+16*nt, 16); i = 4*g + j
                A(f'{MFMA} {acc}, {vr(WF+8*i+4*nt,4)}, {vr(OF+4*i,4)}, {acc}')
        A(f'L_om{g}:')
    A(f'''s_cmp_eq_u32 s{sIss}, 0x1111
    s_cbranch_scc1 L_p3d
    s_add_u32 s{sSpin}, s{sSpin}, 1
    s_waitcnt vmcnt(0)''')
    o_issue('b')
    stamp(8)
    poll_issue(9, 14); poll_issue(9)
    A('s_branch L_p3l\nL_p3d:')
    A(f's_lshr_b32 s{sT2}, s{sW}, 2\ns_nop 7\ns_nop 3')
    stamp(9)
    for kh in range(2):
        if kh == 0: A(f's_cmp_lg_u32 s{sT2}, 0\ns_cbranch_scc1 L_x1')
        else: A('L_x1:')
        send = AC3 + 16*(1-kh); keep = AC3 + 16*kh
        for g in range(4): A(f'ds_write_b128 v6, {vr(send+4*g,4)} offset:{g*1024}')
        A('s_waitcnt lgkmcnt(0)\ns_barrier')
        for g in range(4): A(f'ds_read_b128 {vr(16+4*g,4)}, v5 offset:{g*1024}')
        for g in range(4):
            A(f's_waitcnt lgkmcnt({3-g})')
            for r in range(4): A(f'v_add_f32 v{keep+4*g+r}, v{keep+4*g+r}, v{16+4*g+r}')
            for j in range(2): A(f'v_cvt_pk_bf16_f32 v{32+2*g+j}, v{keep+4*g+2*j}, v{keep+4*g+2*j+1}')
        if kh == 0: A('s_branch L_x2')
    A('L_x2:\ns_nop 1')
    for p in range(2):
        A(f'v_permlane32_swap_b32 v{32+4*p}, v{34+4*p}\nv_permlane32_swap_b32 v{33+4*p}, v{35+4*p}')
        A(f'buffer_store_dwordx4 {vr(32+4*p,4)}, v10, {srd(OUT)}, s{sN1} offen offset:{32*p}' + ['', ' sc1', ' nt', ' sc0 sc1', ' sc1 nt'][OST])
    if PROF:
        A('s_waitcnt vmcnt(0)')
        stamp(10)
        A(f'''s_lshl_b32 s{sT}, s2, 3
        s_add_u32 s{sT}, s{sT}, s{sW}
        s_lshl_b32 s{sT}, s{sT}, 7
        s_add_u32 s{sT}, s{sT}, {WS_ST}
        v_mov_b32 v1, 0''')
        for i in range(11):
            A(f'v_mov_b32 v2, s{sST+2*i}\nbuffer_store_dword v2, v1, {srd(WS)}, s{sT} offen offset:{4*i}')
        A(f'v_mov_b32 v2, s100\nbuffer_store_dword v2, v1, {srd(WS)}, s{sT} offen offset:60')
        A('s_mov_b32 s99, s100\ns_memrealtime s[100:101]\ns_waitcnt lgkmcnt(0)')
        A(f'v_mov_b32 v2, s100\nbuffer_store_dword v2, v1, {srd(WS)}, s{sT} offen offset:56')
    if DBGP:
        A(f'''s_mov_b64 exec, 1
        v_mov_b32 v2, s100
        buffer_atomic_umax v2, v1, {srd(DBG)}, 0 offen offset:4
        s_not_b32 s{sT}, s99
        v_mov_b32 v3, s{sT}
        buffer_atomic_umax v3, v1, {srd(DBG)}, 0 offen offset:8
        s_cmp_lg_u32 s2, 77
        s_cbranch_scc1 L_end
        s_cmp_eq_u32 s{sW}, 4
        s_cbranch_scc1 L_dbg4
        s_cmp_lg_u32 s{sW}, 0
        s_cbranch_scc1 L_end''')
        for i in range(1, 11):
            A(f's_sub_u32 s{sT}, s{sST+2*i}, s{sST}\nv_mov_b32 v2, s{sT}\nbuffer_store_dword v2, v1, {srd(DBG)}, 0 offen offset:{8+4*i}')
        A('s_branch L_end\nL_dbg4:')
        for k, i in enumerate((5, 6, 8)):
            A(f's_sub_u32 s{sT}, s{sST+2*i}, s{sST}\nv_mov_b32 v2, s{sT}\nbuffer_store_dword v2, v1, {srd(DBG)}, 0 offen offset:{52+4*k}')
    A('L_end:\ns_endpgm')

prologue()
compute_p1()
attention(0)
A('s_branch L_final')
loader_p1()
stamp(3)
attention(1)
finalize()
phase3()
fallback()
body, nadd = A.finish()
hdr = open('cdna_kernels/' + NAME + '.s.ref').read().split('; Override launch')[0]
out = hdr + f'''; @launch grid=(256,1,1) block=(512,1,1) lds=163840
.amdgcn_target "amdgcn-amd-amdhsa--gfx950"
.text
.globl {NAME}_kernel
.p2align 8
.type {NAME}_kernel,@function
{NAME}_kernel:
{body}.section .rodata,"a"
.p2align 6
.amdhsa_kernel {NAME}_kernel
  .amdhsa_next_free_vgpr 256
  .amdhsa_next_free_sgpr 102
  .amdhsa_accum_offset 256
  .amdhsa_group_segment_fixed_size 0
  .amdhsa_kernarg_size 72
  .amdhsa_user_sgpr_count 2
  .amdhsa_user_sgpr_kernarg_segment_ptr 1
  .amdhsa_system_sgpr_workgroup_id_x 1
.end_amdhsa_kernel
'''
dst = [a for a in sys.argv[1:] if not a.startswith('--')]
open(dst[0] if dst else 'cdna_kernels/' + NAME + '.s', 'w').write(out)
print('nops inserted', nadd, 'lines', body.count('\n'))
```

```python
import sys, struct
from asmlib import Asm
NAME = 'concat_heads__sliding_block__sliding_block__prompt'
DBGP = '--dbg' in sys.argv
PROF = '--prof' in sys.argv or DBGP
def opt(name, d):
    for a in sys.argv:
        if a.startswith('--'+name+'='): return int(a.split('=')[1])
    return d
DEP = opt('dep', 2); ROT = opt('rot', 0); PF = opt('pf', 1); LDSC = ' sc1' if opt('ldsc', 1) else ''
FORCE_FB = '--force-fb' in sys.argv
def f2u(x): return struct.unpack('<I', struct.pack('<f', x))[0]
A = Asm()
SLOT = 40960
WS_O = 8 << 20; WS_FL = 12 << 20; WS_ST = 13 << 20; WS_SZ = 14 << 20
RING0 = 40960; L_M = 0; L_CNT = 4096; L_WO = 4608; L_B = 70144; L_X = 122880
CSC = 0.25 * 1.4426950408889634
BIG = 1e30
sW = 3; X, Wq, WO, WS, OUT, DBG = 4, 8, 12, 16, 20, 24
sB, sRB, sHG, sWG = 28, 29, 30, 31
sXo, sWo, sSl, sIt, sT, sT2, sN1, sN2 = 50, 51, 52, 53, 54, 55, 56, 57
sHalf = 60; sC = 62; sSpin = 63; sFl = 64; sOb = 65; sT3 = 66; sLo = 67; sHi = 68
sST = 72
nst = [0]
def srd(i): return f's[{i}:{i+3}]'
def vr(a, n): return f'v[{a}:{a+n-1}]'
def stamp(idx):
    if PROF:
        A(f's_memtime s[{sST+2*idx}:{sST+2*idx+1}]\ns_waitcnt lgkmcnt(0)')
QF = 16; OA = 32; SB = 96; MK = 128; KF = 144; VF = 168; PK = 240
sEarly, sKB1, sKB2, sIss, sNew, sFB = 32, 33, 34, 35, 36, 37
sE1, sE2, sE3 = 39, 40, 41
sFo, sWm, sWg = 38, 48, 49
SLP = opt('slp', 2)
XCH = 4608
OST = opt('ost', 0)
ACC = 16; FR = 112
MFMA = 'v_mfma_f32_32x32x16_bf16'

def prologue():
    A(f'''s_cmp_ge_u32 s2, 256
    s_cbranch_scc1 L_end
    s_load_dwordx8 s[32:39], s[0:1], 0
    s_load_dwordx8 s[40:47], s[0:1], 32
    s_load_dwordx2 s[48:49], s[0:1], 64''')
    if PROF: A(f's_memrealtime s[100:101]')
    A(f'''v_lshrrev_b32 v1, 6, v0
    v_and_b32 v0, 63, v0
    s_and_b32 s{sT}, s2, 7
    v_readfirstlane_b32 s{sW}, v1
    s_lshr_b32 s{sT2}, s2, 3
    s_lshr_b32 s{sB}, s{sT}, 2
    s_and_b32 s{sT}, s{sT}, 3
    s_lshl_b32 s{sT}, s{sT}, 2
    s_lshr_b32 s{sRB}, s{sT2}, 3
    s_add_u32 s{sRB}, s{sRB}, s{sT}
    s_and_b32 s{sHG}, s{sT2}, 7
    s_lshl_b32 s{sWG}, s{sB}, 4
    s_add_u32 s{sWG}, s{sWG}, s{sRB}
    s_lshl_b32 s{sWG}, s{sWG}, 3
    s_add_u32 s{sWG}, s{sWG}, s{sHG}
    s_mov_b32 s{X+2}, 0x200000
    s_mov_b32 s{X+3}, 0x20000
    s_mov_b32 s{Wq+2}, 0x180000
    s_mov_b32 s{Wq+3}, 0x20000
    s_mov_b32 s{WO+2}, 0x80000
    s_mov_b32 s{WO+3}, 0x20000
    s_mov_b32 s{WS+2}, {WS_SZ}
    s_mov_b32 s{WS+3}, 0x20000
    s_mov_b32 s{OUT+2}, 0x400000
    s_mov_b32 s{OUT+3}, 0x20000
    s_mov_b32 s{DBG+2}, 256
    s_mov_b32 s{DBG+3}, 0x20000
    s_mov_b32 s{sHalf}, 0xffff
    s_mov_b32 s{sHalf+1}, 0xffff
    s_cmp_eq_u32 s{sB}, 0
    s_waitcnt lgkmcnt(0)
    s_cselect_b32 s{X}, s32, s38
    s_cselect_b32 s{X+1}, s33, s39
    s_cselect_b32 s{Wq}, s34, s40
    s_cselect_b32 s{Wq+1}, s35, s41
    s_cselect_b32 s{WO}, s36, s42
    s_cselect_b32 s{WO+1}, s37, s43
    s_mov_b32 s{OUT}, s44
    s_mov_b32 s{OUT+1}, s45
    s_mov_b32 s{DBG}, s46
    s_mov_b32 s{DBG+1}, s47
    s_mov_b32 s{WS}, s48
    s_mov_b32 s{WS+1}, s49''')
    stamp(0)
    A(f'''s_cmp_ge_u32 s{sW}, 4
    s_cbranch_scc1 L_loader''')

def preset_ones():
    A(f'v_mov_b32 v1, 0x3f803f80')
    for i in range(48): A(f'v_mov_b32 v{VF+i}, v1')

def common_consts():
    A(f'''s_lshl_b32 s{sFl}, s{sB}, 3
    s_add_u32 s{sFl}, s{sFl}, s{sHG}
    s_lshl_b32 s{sFl}, s{sFl}, 8
    s_lshl_b32 s{sT}, s{sRB}, 3
    s_add_u32 s{sFl}, s{sFl}, s{sT}
    s_and_b32 s{sT}, s{sW}, 1
    s_lshl_b32 s{sT}, s{sT}, 7
    s_add_u32 s{sFl}, s{sFl}, s{sT}
    s_bfe_u32 s{sT}, s{sW}, 0x10001
    s_lshl_b32 s{sT}, s{sT}, 2
    s_add_u32 s{sFl}, s{sFl}, s{sT}
    s_add_u32 s{sFl}, s{sFl}, {WS_FL}
    s_lshr_b32 s{sFo}, s{sWG}, 3
    s_lshl_b32 s{sFo}, s{sFo}, 8
    s_lshr_b32 s{sT}, s{sW}, 2
    s_lshl_b32 s{sT}, s{sT}, 7
    s_add_u32 s{sFo}, s{sFo}, s{sT}
    s_lshl_b32 s{sT}, s{sHG}, 4
    s_add_u32 s{sFo}, s{sFo}, s{sT}
    s_and_b32 s{sT}, s{sW}, 3
    s_lshl_b32 s{sT}, s{sT}, 2
    s_add_u32 s{sFo}, s{sFo}, s{sT}
    s_add_u32 s{sFo}, s{sFo}, {WS_FL+4096}
    s_mov_b32 s{sC}, {f2u(CSC)}
    s_mov_b32 s{sLo}, {f2u(2.0**-40)}
    s_mov_b32 s{sHi}, {f2u(2.0**40)}''')

def lds_min4(dst_s, vt, addr_v, off, wait=True):
    A(f'ds_read_b128 {vr(vt,4)}, v{addr_v} offset:{off}')
    A('s_waitcnt lgkmcnt(0)')
    min4(dst_s, vt)
def min4(dst_s, vt):
    A(f'v_min3_u32 v{vt}, v{vt}, v{vt+1}, v{vt+2}\nv_min_u32 v{vt}, v{vt}, v{vt+3}\nv_readfirstlane_b32 s{dst_s}, v{vt}')

def loader_p1():
    A('L_loader:')
    A(f"""v_lshrrev_b32 v6, 3, v0
    v_and_b32 v7, 7, v0
    v_lshrrev_b32 v8, 4, v0
    v_xor_b32 v9, v7, v8
    v_lshlrev_b32 v9, 4, v9
    v_lshl_add_u32 v2, v6, 10, v9
    v_xor_b32 v3, 64, v2
    v_and_b32 v8, 1, v8
    v_lshlrev_b32 v8, 2, v8
    v_xor_b32 v9, v7, v8
    v_lshlrev_b32 v9, 4, v9
    v_mul_u32_u24 v4, 3072, v6
    v_add_u32 v4, v4, v9
    v_lshl_add_u32 v5, v6, 10, v9
    s_sub_u32 s{sT}, s{sW}, 4
    s_lshl_b32 s{sXo}, s{sRB}, 17
    s_lshl_b32 s{sT2}, s{sT}, 15
    s_add_u32 s{sXo}, s{sXo}, s{sT2}
    s_mul_i32 s{sWo}, s{sT}, {16*3072}
    s_lshl_b32 s{sT2}, s{sHG}, 7
    s_add_u32 s{sWo}, s{sWo}, s{sT2}
    s_lshl_b32 s{sN1}, s{sT}, 12
    s_add_u32 s{sN1}, s{sN1}, {RING0+SLOT}
    s_lshl_b32 s{sN2}, s{sT}, 11
    s_add_u32 s{sN2}, s{sN2}, {16384+RING0+SLOT}
    s_lshl_b32 s{sT}, s{sT}, 2
    v_mov_b32 v10, 0
    v_mov_b32 v11, s{sT}
    s_mov_b32 s{sIt}, 0
    s_mov_b32 s69, 1
    L_ld_loop:""")
    for j in range(4):
        A(f"""s_add_u32 m0, s{sN1}, {j*1024}
        s_add_u32 s{sT}, s{sXo}, {j*8192}
        buffer_load_dwordx4 v{2+(j&1)}, {srd(X)}, s{sT} offen lds""")
    for seg in range(3):
        for q in range(2):
            A(f"""s_add_u32 m0, s{sN2}, {seg*8192+q*1024}
            s_add_u32 s{sT}, s{sWo}, {seg*1024+q*8*3072}
            buffer_load_dwordx4 v4, {srd(Wq)}, s{sT} offen lds""")
    A(f"""s_add_u32 s{sXo}, s{sXo}, 128
    s_add_u32 s{sWo}, s{sWo}, {64*3072}
    s_add_u32 s69, s69, 1
    s_mov_b32 s{sT}, {SLOT}
    s_cmp_eq_u32 s69, 3
    s_cselect_b32 s{sT}, {-2*SLOT & 0xffffffff}, s{sT}
    s_cselect_b32 s69, 0, s69
    s_add_u32 s{sN1}, s{sN1}, s{sT}
    s_add_u32 s{sN2}, s{sN2}, s{sT}
    s_cmp_lg_u32 s{sIt}, 0
    s_cbranch_scc1 L_ld_sig
    s_barrier
    s_mov_b32 s{sIt}, 1
    s_branch L_ld_loop
    L_ld_sig:
    v_mov_b32 v12, s{sIt}
    s_add_u32 s{sIt}, s{sIt}, 1
    s_waitcnt vmcnt(10)
    ds_write_b32 v11, v12 offset:{L_CNT}
    s_cmp_lt_u32 s{sIt}, 3
    s_cbranch_scc1 L_ld_loop
    s_cmp_eq_u32 s{sIt}, 8
    s_cbranch_scc1 L_ld_done
    s_sub_u32 s{sT3}, s{sIt}, 2""")
    lds_min4(sT2, 16, 10, L_CNT+16)
    A(f"""s_cmp_ge_u32 s{sT2}, s{sT3}
    s_cbranch_scc1 L_ld_loop
    v_mov_b32 v12, s{sIt}
    s_waitcnt vmcnt(0)
    ds_write_b32 v11, v12 offset:{L_CNT}
    L_ld_spin:""")
    lds_min4(sT2, 16, 10, L_CNT+16)
    A(f"""s_cmp_ge_u32 s{sT2}, s{sT3}
    s_cbranch_scc1 L_ld_loop
    s_branch L_ld_spin
    L_ld_done:
    buffer_load_dword v7, v10, {srd(DBG)}, 0 offen sc1
    v_mov_b32 v12, 8
    s_waitcnt vmcnt(1)
    ds_write_b32 v11, v12 offset:{L_CNT}""")
    stamp(1)
    A(f"""v_and_b32 v6, 31, v0
    v_lshrrev_b32 v9, 5, v0
    v_lshlrev_b32 v9, 2, v9
    v_sub_u32 v6, v6, v9
    v_cvt_f32_i32 v6, v6
    s_mov_b32 s{sT}, {f2u(-BIG)}
    v_lshlrev_b32 v8, 4, v0""")
    for r in range(16):
        c = 8*(r//4) + r % 4
        A(f'v_sub_f32 v{MK+r}, {f2u(float(c))}, v6')
        A(f'v_med3_f32 v{MK+r}, v{MK+r}, 0, 1.0')
        A(f'v_mul_f32 v{MK+r}, s{sT}, v{MK+r}')
    for g in range(4):
        A(f'ds_write_b128 v8, {vr(MK+4*g,4)} offset:{L_M+g*1024}')
    preset_ones()
    common_consts()
    A(f"""s_mov_b32 s{sSpin}, 0
    s_waitcnt vmcnt(0)
    L_gate:
    v_readfirstlane_b32 s{sT}, v7
    s_cmp_lg_u32 s{sT}, 0
    s_cbranch_scc1 L_gate_ok
    s_sleep 4
    buffer_load_dword v7, v10, {srd(DBG)}, 0 offen sc1
    s_add_u32 s{sSpin}, s{sSpin}, 1
    s_cmp_lt_u32 s{sSpin}, 0x10000
    s_waitcnt vmcnt(0)
    s_cbranch_scc1 L_gate
    L_gate_ok:""")
    nb_setup()
    for r in range(16): A(f'v_mov_b32 v{OA+r}, 0')
    poll_issue()
    stamp(2)
    try_load(1, 'a')
    A(f's_cmp_lg_u32 s{sEarly}, 0\ns_cbranch_scc1 L_y_nopoll')
    poll_issue()
    A("""L_y_nopoll:
    s_waitcnt lgkmcnt(0)
    s_barrier""")

def frag_reads(buf, ks):
    F = FR + 20*buf
    xs = [f'ds_read_b128 {vr(F+4*mt,4)}, v{2+ks} offset:{mt*4096}' for mt in range(2)]
    def wrd(seg): return [f'ds_read_b64_tr_b16 {vr(F+8+4*seg+2*j,2)}, v6 offset:{16384+seg*8192+ks*2048+j*512}' for j in range(2)]
    return [xs[0]] + wrd(0) + [xs[1]] + wrd(1) + wrd(2)
def mfmas(buf):
    F = FR + 20*buf
    L = []
    for seg in range(3):
        for mt in range(2):
            acc = vr(ACC + (seg*2+mt)*16, 16)
            x = vr(F+4*mt, 4); w = vr(F+8+4*seg, 4)
            a, b = (w, x) if seg < 2 else (x, w)
            L.append(f'{MFMA} {acc}, {a}, {b}, {acc}')
    return L

def compute_p1():
    A(f'''v_mov_b32 v12, 0
    v_lshlrev_b32 v13, 2, v0
    ds_write_b32 v13, v12 offset:{L_CNT}
    s_waitcnt lgkmcnt(0)
    s_barrier''')
    A(f'''s_or_b32 s{sT}, s2, s{sW}
    s_cmp_lg_u32 s{sT}, 0
    s_cbranch_scc1 L_noinit
    v_lshlrev_b32 v1, 4, v0
    v_mov_b32 v4, 0
    v_mov_b32 v5, 0
    v_mov_b32 v6, 0
    v_mov_b32 v7, 0
    s_mov_b32 s{sT}, {WS_FL}
    L_init:
    buffer_store_dwordx4 v[4:7], v1, {srd(WS)}, s{sT} offen sc1
    s_add_u32 s{sT}, s{sT}, 1024
    s_cmp_lt_u32 s{sT}, {WS_FL+12288}
    s_cbranch_scc1 L_init
    v_mov_b32 v2, 1
    s_waitcnt vmcnt(0)
    buffer_store_dword v2, v4, {srd(DBG)}, 0 offen sc1
    L_noinit:''')
    A(f'''v_and_b32 v7, 31, v0
    v_lshrrev_b32 v8, 5, v0
    v_lshrrev_b32 v9, 1, v7
    v_and_b32 v9, 7, v9
    v_xor_b32 v9, v9, v8
    v_lshlrev_b32 v9, 4, v9
    v_lshl_add_u32 v2, v7, 7, v9
    s_lshr_b32 s{sT}, s{sW}, 1
    s_lshl_b32 s{sT}, s{sT}, 13
    s_add_u32 s{sT}, s{sT}, {RING0+SLOT}
    v_add_u32 v2, s{sT}, v2
    v_xor_b32 v3, 32, v2
    v_xor_b32 v4, 64, v2
    v_xor_b32 v5, 96, v2
    v_bfe_u32 v9, v0, 2, 2
    v_lshl_add_u32 v9, v8, 3, v9
    v_lshlrev_b32 v6, 7, v9
    v_bfe_u32 v9, v0, 4, 1
    v_lshlrev_b32 v9, 1, v9
    v_bfe_u32 v10, v0, 1, 1
    v_or_b32 v9, v9, v10
    v_bfe_u32 v10, v0, 3, 1
    s_and_b32 s{sT}, s{sW}, 1
    v_xor_b32 v10, s{sT}, v10
    v_lshl_or_b32 v9, v10, 2, v9
    v_lshl_add_u32 v6, v9, 4, v6
    v_and_b32 v9, 1, v0
    v_lshl_add_u32 v6, v9, 3, v6
    v_add_u32 v6, {RING0+SLOT}, v6
    s_lshl_b32 s{sT}, s{sW}, 2
    v_mov_b32 v13, s{sT}''')
    epi_addr()
    for i in range(96): A(f'v_mov_b32 v{ACC+i}, 0')
    preset_ones()
    common_consts()
    A(f's_mov_b32 s{sIt}, 0\ns_mov_b32 s69, 1\nL_c_spin0:')
    lds_min4(sT2, 8, 12, L_CNT)
    A(f's_cmp_lt_u32 s{sT2}, 1\ns_cbranch_scc1 L_c_spin0')
    stamp(1)
    Q = []
    def ds(txt, tag): A(txt); Q.append(tag)
    def wait(tag):
        n = len(Q) - 1 - max(i for i, t in enumerate(Q) if t == tag)
        A(f's_waitcnt lgkmcnt({n})')
        del Q[:len(Q)-n]
    TAGS = ['x0', 'wq', 'wq', 'x1', 'wk', 'wk', 'wv', 'wv']
    for r, t in zip(frag_reads(0, 0), TAGS): ds(r, (0, t))
    A('L_p1_loop:')
    for ks in range(4):
        cur = ks & 1
        M = mfmas(cur)
        nk = (ks+1) & 3
        R = [(r, (nk, t)) for r, t in zip(frag_reads(cur ^ 1, nk), TAGS)]
        if ks < 3:
            wait((ks, 'wq')); A(M[0]); ds(*R[0]); ds(*R[1])
            wait((ks, 'x1')); A(M[1]); ds(*R[2]); ds(*R[3])
            wait((ks, 'wk')); A(M[2]); ds(*R[4]); ds(*R[5])
            A(M[3]); ds(*R[6]); ds(*R[7])
            wait((ks, 'wv')); A(M[4])
            if ks == 2: ds(f'ds_read_b128 v[8:11], v12 offset:{L_CNT}', 'cnt')
            A(M[5])
        else:
            wait((ks, 'wq')); A(M[0])
            A(f"""s_add_u32 s{sIt}, s{sIt}, 1
            s_add_u32 s69, s69, 1
            s_mov_b32 s{sT}, {SLOT}
            s_cmp_eq_u32 s69, 3
            s_cselect_b32 s{sT}, {-2*SLOT & 0xffffffff}, s{sT}
            s_cselect_b32 s69, 0, s69
            v_mov_b32 v14, s{sIt}""")
            wait((ks, 'x1')); A(M[1])
            for i in range(2, 7): A(f'v_add_u32 v{i}, s{sT}, v{i}')
            wait('cnt')
            A(f'ds_write_b32 v13, v14 offset:{L_CNT+16}')
            min4(sT2, 8)
            A(M[2])
            A(f"""s_min_u32 s{sT3}, s{sIt}, 7
            s_cmp_gt_u32 s{sT2}, s{sT3}
            s_cbranch_scc1 L_c_ok
            L_c_spin:""")
            lds_min4(sT2, 8, 12, L_CNT)
            A(f"""s_cmp_le_u32 s{sT2}, s{sT3}
            s_cbranch_scc1 L_c_spin
            L_c_ok:""")
            Q[:] = []
            ds(*R[0]); ds(*R[1])
            A(M[3]); ds(*R[2]); ds(*R[3]); ds(*R[4])
            A(M[4]); ds(*R[5]); ds(*R[6]); ds(*R[7])
            A(f's_cmp_lt_u32 s{sIt}, 8')
            A(M[5])
            A('s_cbranch_scc1 L_p1_loop')
    stamp(2)
    A('L_c_spin2:')
    lds_min4(sT2, 8, 12, L_CNT+16)
    A(f's_cmp_lt_u32 s{sT2}, 7\ns_cbranch_scc1 L_c_spin2')
    tmp = FR
    def cvt8(acc, dst):
        for i in range(8): A(f'v_cvt_pk_bf16_f32 v{dst+i}, v{acc+2*i}, v{acc+2*i+1}')
    n = 0
    for mt in range(2):
        acc = ACC + (1*2+mt)*16; d = tmp + 8*(n % 5); n += 1
        cvt8(acc, d)
        for e in range(2):
            A(f'buffer_store_dwordx4 {vr(d+4*e,4)}, v152, {srd(WS)}, s{sE2 if e else sE1} offen offset:{mt*1024} sc1')
            A(f'ds_write_b128 v155, {vr(d+4*e,4)} offset:{e*4096+mt*1024}')
    for mt in range(2):
        acc = ACC + (2*2+mt)*16; d = tmp + 8*(n % 5); n += 1
        cvt8(acc, d)
        for a in range(2):
            A(f'buffer_store_dwordx4 {vr(d+4*a,4)}, v154, {srd(WS)}, s{sE3} offen offset:{mt*1024+a*512} sc1')
            A(f'ds_write_b128 v153, {vr(d+4*a,4)} offset:{16384+mt*1024+a*512}')
    for mt in range(2):
        acc = ACC + mt*16
        for i in range(8): A(f'v_pk_mul_f32 {vr(acc+2*i,2)}, {vr(acc+2*i,2)}, s[{sC}:{sC+1}] op_sel_hi:[1,0]')
        cvt8(acc, acc)
        for e in range(2):
            A(f'ds_write_b128 v155, {vr(acc+4*e,4)} offset:{32768+e*4096+mt*1024}')
    nb_setup()
    A('s_waitcnt lgkmcnt(0)\ns_barrier')
    stamp(3)

def epi_addr():
    A(f'''v_lshlrev_b32 v152, 4, v0
    v_bfe_u32 v10, v0, 4, 1
    v_and_b32 v11, 15, v0
    v_lshrrev_b32 v7, 5, v0
    v_lshl_or_b32 v11, v7, 4, v11
    v_lshlrev_b32 v11, 4, v11
    v_lshl_add_u32 v153, v10, 12, v11
    v_lshl_add_u32 v154, v10, 13, v11
    s_and_b32 s{sT}, s{sW}, 1
    s_lshr_b32 s{sT2}, s{sW}, 1
    s_lshl_b32 s{sN1}, s{sT}, 13
    s_lshl_b32 s{sT3}, s{sT2}, 11
    s_add_u32 s{sN1}, s{sN1}, s{sT3}
    s_add_u32 s{sN1}, s{sN1}, {L_B}
    v_add_u32 v155, s{sN1}, v152
    v_add_u32 v153, s{sN1}, v153
    s_lshl_b32 s{sE1}, s{sWG}, 15
    s_lshl_b32 s{sT}, s{sT}, 14
    s_add_u32 s{sE1}, s{sE1}, s{sT}
    s_add_u32 s{sE1}, s{sE1}, s{sT3}
    s_add_u32 s{sE2}, s{sE1}, 8192
    s_add_u32 s{sE3}, s{sE1}, 4096''')

UNITS = {0: dict(tiles=[0, 3, -1, -2, -5, -8], keep=(0, 1),
                 own=[(0,0,1),(1,0,0),(2,0,0),(3,0,0),(3,3,1)],
                 C=[(0,-5,0),(1,-5,0),(2,-5,0),(3,-5,1),(0,-8,1)]),
         1: dict(tiles=[1, 2, -3, -4, -6, -7], keep=(2, 3),
                 own=[(1,1,1),(2,1,0),(3,1,0),(2,2,1),(3,2,0)],
                 C=[(0,-6,0),(1,-6,0),(2,-6,1),(0,-7,0),(1,-7,1)])}
for U in UNITS.values(): U['B'] = [(q, t, 0) for t in U['tiles'][2:4] for q in range(4)]
CT = [None]
def kf(t): return KF + 4*CT[0].index(t)
def vf(t, a): return VF + 8*CT[0].index(t) + 4*a
def qk(u, sb):
    q, t, m = u
    return f'{MFMA} {vr(sb,16)}, {vr(kf(t),4)}, {vr(QF+4*q,4)}, {vr(MK,16) if m else "0"}'
def pv(u, sb, a, first):
    q, t, m = u
    o = vr(OA+16*q, 16)
    return f'{MFMA} {o}, {vr(vf(t,a),4)}, {vr(sb+8*a,4)}, {"0" if first else o}'
def segment(units, started, pre_qk=None, pre_pv=None, mid=None):
    n = len(units)
    def QK(i):
        if pre_qk: pre_qk(units[i])
        A(qk(units[i], SB+16*(i & 1)))
    def PV(i, a):
        u = units[i]
        if pre_pv: pre_pv(u)
        first = (u[0] not in started)
        started.add(u[0])
        A(pv(u, SB+16*(i & 1), a, first))
    QK(0)
    if n > 1: QK(1)
    for i in range(n):
        S = SB + 16*(i & 1)
        e = lambda r: A(f'v_exp_f32 v{S+r}, v{S+r}')
        def c(j):
            d = S + j if j < 4 else S + 4 + j
            A(f'v_cvt_pk_bf16_f32 v{d}, v{S+2*j}, v{S+2*j+1}')
        if mid and i in mid: mid[i]()
        e(0); e(1)
        if i > 0:
            PV(i-1, 1)
            if i+1 < n: QK(i+1)
        for j in range(7):
            e(2*j+2); c(j); e(2*j+3)
            if j == 4: PV(i, 0)
        A('s_nop 0'); c(7)
    PV(n-1, 1)

def nb_setup():
    A(f'''s_and_b32 s{sT}, s{sW}, 3
    s_lshl_b32 s{sT2}, s{sT}, 12
    s_add_u32 s{sT2}, s{sT2}, {L_B}
    v_lshlrev_b32 v2, 4, v0
    v_add_u32 v7, s{sT2}, v2
    v_and_b32 v11, 15, v0
    v_lshrrev_b32 v12, 5, v0
    v_lshl_or_b32 v11, v12, 4, v11
    v_lshlrev_b32 v3, 4, v11
    v_add_u32 v8, s{sT2}, v3
    v_add_u32 v3, 4096, v3
    s_lshl_b32 s{sKB1}, s{sWG}, 2
    s_add_u32 s{sKB1}, s{sKB1}, s{sT}
    s_lshl_b32 s{sKB1}, s{sKB1}, 13
    s_sub_u32 s{sKB2}, s{sKB1}, {2*32*8192}
    s_sub_u32 s{sKB1}, s{sKB1}, {32*8192}
    s_lshl_b32 s{sOb}, s{sWG}, 14
    s_lshl_b32 s{sT2}, s{sT}, 10
    s_add_u32 s{sOb}, s{sOb}, s{sT2}
    s_add_u32 s{sOb}, s{sOb}, {WS_O}
    s_lshl_b32 s{sT2}, s{sB}, 3
    s_add_u32 s{sT2}, s{sT2}, s{sHG}
    s_lshl_b32 s{sT2}, s{sT2}, 1
    s_lshr_b32 s{sT}, s{sT}, 1
    s_add_u32 s{sT2}, s{sT2}, s{sT}
    s_lshl_b32 s{sT2}, s{sT2}, 7
    s_max_u32 s{sT}, s{sRB}, 2
    s_lshl_b32 s{sT}, s{sT}, 3
    s_add_u32 s{sT2}, s{sT2}, s{sT}
    s_add_u32 s{sT2}, s{sT2}, {WS_FL-16}
    s_cmp_ge_u32 s{sRB}, 2
    s_cselect_b32 s{sT}, 3, 1
    v_and_b32 v4, s{sT}, v0
    v_lshl_add_u32 v4, v4, 2, s{sT2}
    v_lshrrev_b32 v1, 3, v0
    v_and_b32 v5, 7, v0
    v_bfe_u32 v6, v0, 4, 1
    v_lshlrev_b32 v6, 2, v6
    v_xor_b32 v5, v5, v6
    v_lshlrev_b32 v5, 4, v5
    v_lshl_add_u32 v1, v1, 10, v5
    s_lshl_b32 s{sWm}, s{sW}, 13
    s_add_u32 s{sWm}, s{sWm}, {L_WO}
    s_lshl_b32 s{sWg}, s{sW}, 16
    s_lshl_b32 s{sT}, s{sHG}, 7
    s_add_u32 s{sWg}, s{sWg}, s{sT}
    s_cmp_eq_u32 s{sRB}, 0
    s_cselect_b32 s{sEarly}, 1, 0
    s_mov_b32 s{sFB}, 0
    s_mul_i32 s{sT}, s{sW}, {XCH}
    s_add_u32 s{sT}, s{sT}, {L_X}
    v_add_u32 v5, s{sT}, v2
    v_lshl_add_u32 v10, v0, 2, s{sT}
    s_xor_b32 s{sT}, s{sW}, 4
    s_mul_i32 s{sT}, s{sT}, {XCH}
    s_add_u32 s{sT}, s{sT}, {L_X}
    v_add_u32 v6, s{sT}, v2
    v_lshl_add_u32 v11, v0, 2, s{sT}''')
    A(f'''s_lshr_b32 s{sN1}, s{sWG}, 3
    s_lshl_b32 s{sN1}, s{sN1}, 8
    s_and_b32 s{sT}, s{sW}, 2
    s_lshl_b32 s{sT}, s{sT}, 6
    s_add_u32 s{sN1}, s{sN1}, s{sT}
    s_and_b32 s{sT}, s{sW}, 4
    s_lshl_b32 s{sT}, s{sT}, 4
    s_add_u32 s{sN1}, s{sN1}, s{sT}
    s_add_u32 s{sN1}, s{sN1}, {WS_FL+4096}
    v_and_b32 v9, 15, v0
    v_lshl_add_u32 v9, v9, 2, s{sN1}''')

def wo_dma(j):
    A(f'''s_add_u32 m0, s{sWm}, {j*1024}
    s_add_u32 s{sT}, s{sWg}, {j*8192}
    buffer_load_dwordx4 v1, {srd(WO)}, s{sT} offen lds''')
def poll_issue(va=4, vd=15): A(f'buffer_load_dword v{vd}, v{va}, {srd(WS)}, 0 offen sc1')
def nb_loads(ty, tag):
    CT[0] = UNITS[ty]['tiles']
    def ld(t):
        base = sKB1 if t >= -4 else sKB2
        T = t % 4
        A(f'buffer_load_dwordx4 {vr(kf(t),4)}, v2, {srd(WS)}, s{base} offen offset:{T*1024}{LDSC}')
        A(f's_mov_b64 exec, s[{sHalf}:{sHalf+1}]')
        for a in range(2):
            A(f'buffer_load_dwordx4 {vr(vf(t,a),4)}, v3, {srd(WS)}, s{base} offen offset:{T*1024+a*512}{LDSC}')
        A('s_mov_b64 exec, -1')
    for t in CT[0][2:4]: ld(t)
    A(f's_cmp_eq_u32 s{sRB}, 1\ns_cbranch_scc1 L_nl{ty}{tag}')
    for t in CT[0][4:6]: ld(t)
    A(f'L_nl{ty}{tag}:\ns_mov_b32 s{sEarly}, 1')
def try_load(ty, tag):
    A(f'''s_cmp_lg_u32 s{sEarly}, 0
    s_cbranch_scc1 L_tl{ty}{tag}
    s_waitcnt vmcnt(0)
    v_cmp_ne_u32 vcc, 1, v15
    s_cbranch_vccnz L_tl{ty}{tag}''')
    nb_loads(ty, tag)
    A(f'L_tl{ty}{tag}:')

def set_flag(sa, wait=True):
    A('v_mov_b32 v14, 1\nv_mov_b32 v13, 0')
    if wait: A('s_waitcnt vmcnt(0)')
    else: wait_dyn(wait)
    A(f'''s_mov_b64 exec, 1
    buffer_store_dword v14, v13, {srd(WS)}, s{sa} offen sc1
    s_mov_b64 exec, -1''')

RG = SB
def attention(ty):
    U = UNITS[ty]; CT[0] = U['tiles']
    own = U['tiles'][:2]
    for q in range(4): A(f'ds_read_b128 {vr(QF+4*q,4)}, v7 offset:{32768+q*1024}')
    for t in own: A(f'ds_read_b128 {vr(kf(t),4)}, v7 offset:{t*1024}')
    for g in range(4): A(f'ds_read_b128 {vr(MK+4*g,4)}, v2 offset:{L_M+g*1024}')
    A(f's_mov_b64 exec, s[{sHalf}:{sHalf+1}]')
    for t in own:
        for a in range(2): A(f'ds_read_b128 {vr(vf(t,a),4)}, v8 offset:{16384+t*1024+a*512}')
    A('s_mov_b64 exec, -1')
    if ty == 0:
        set_flag(sFl)
        poll_issue()
    A('s_waitcnt lgkmcnt(4)')
    started = set() if ty == 0 else {0}
    done = [False]
    def pre_pv(u):
        if not done[0]: A('s_waitcnt lgkmcnt(0)'); done[0] = True
    segment(U['own'], started, pre_pv=pre_pv, mid={(3 if ty == 0 else 2): (lambda: try_load(ty, 'm'))})
    stamp(4)
    Lfin = f'L_fin{ty}'
    A(f'''s_cmp_lg_u32 s{sEarly}, 0
    s_cbranch_scc1 L_have{ty}
    s_mov_b32 s{sSpin}, 0
    L_pkv{ty}:''')
    poll_issue()
    A(f'''s_add_u32 s{sSpin}, s{sSpin}, 1
    s_waitcnt vmcnt(0)
    v_cmp_ne_u32 vcc, 1, v15
    s_cmp_ge_u32 s{sSpin}, 0x10000
    s_cbranch_scc1 L_pkv{ty}_ok
    s_cbranch_vccz L_pkv{ty}_ok
    s_sleep {SLP}
    s_branch L_pkv{ty}
    L_pkv{ty}_ok:''')
    nb_loads(ty, 'b')
    A(f'L_have{ty}:')
    stamp(5)
    A(f's_cmp_eq_u32 s{sRB}, 0\ns_cbranch_scc1 L_z{ty}')
    LB = f'L_B{ty}'
    nd = [0]
    def dm(j):
        def f(): wo_dma(j); nd[0] += 1
        return f
    A(f's_cmp_eq_u32 s{sRB}, 1\ns_cbranch_scc1 {LB}_only')
    def mk_wait(order):
        seen = set()
        def w(u):
            t = u[1]
            if t not in seen:
                seen.add(t)
                A(f's_waitcnt vmcnt({3*(len(order)-1-order.index(t))+nd[0]})')
        return w
    for r in range(16): A(f'v_sub_f32 v{MK+r}, {f2u(-BIG)}, v{MK+r}')
    segment(U['B'] + U['C'], set(started), pre_qk=mk_wait(U['tiles'][2:6]), mid={i+1: dm(i) for i in range(8)})
    A(f's_branch {Lfin}\nL_z{ty}:')
    for j in range(8): wo_dma(j)
    A(f's_branch {Lfin}')
    nd[0] = 0
    A(f'{LB}_only:')
    segment(U['B'], set(started), pre_qk=mk_wait(U['tiles'][2:4]), mid={i: dm(i) for i in range(8)})
    A(f'{Lfin}:')
    poll_issue(9)
    A('s_nop 9')
    stamp(6)
    send = [q for q in range(4) if q not in U['keep']]
    for a, q in enumerate(send):
        o = OA + 16*q
        A(f'ds_write_b128 v5, {vr(o,4)} offset:{a*2048}\nds_write_b128 v5, {vr(o+4,4)} offset:{a*2048+1024}')
        A(f'ds_write_b32 v10, v{o+8} offset:{4096+a*256}')
    A('s_waitcnt vmcnt(1) lgkmcnt(0)\ns_barrier')
    for a in range(2):
        A(f'ds_read_b32 v{RG+16+a}, v11 offset:{4096+a*256}')
        A(f'ds_read_b128 {vr(RG+8*a,4)}, v6 offset:{a*2048}\nds_read_b128 {vr(RG+8*a+4,4)}, v6 offset:{a*2048+1024}')
    for a, q in enumerate(U['keep']):
        o = OA + 16*q
        A(f's_waitcnt lgkmcnt({3-3*a})')
        A(f'v_add_f32 v{RG+16+a}, v{RG+16+a}, v{o+8}')
        for j in range(8): A(f'v_add_f32 v{RG+8*a+j}, v{RG+8*a+j}, v{o+j}')
    if ty == 1:
        for j in range(8): A(f'v_mov_b32 v{QF+j}, v{QF+8+j}')

def finalize():
    A('L_final:')
    for a in range(2):
        o = RG + 8*a; l = RG + 16 + a; m = f's[{70 if a else 58}:{71 if a else 59}]'
        A(f'v_rcp_f32 v{l+2}, v{l}')
        A(f'v_cmp_lt_f32 {m}, s{sLo}, v{l}\nv_cmp_gt_f32 vcc, s{sHi}, v{l}\ns_and_b64 {m}, {m}, vcc')
        for j in range(8): A(f'v_mul_f32 v{o+j}, v{o+j}, v{l+2}')
        for j in range(4): A(f'v_cvt_pk_bf16_f32 v{PK+4*a+j}, v{o+2*j}, v{o+2*j+1}')
        A(f'v_add_f32 v{l+4}, |v{o}|, |v{o+1}|')
        for j in range(2, 8): A(f'v_add_f32 v{l+4}, v{l+4}, |v{o+j}|')
    A(f'''v_add_f32 v{RG+20}, v{RG+20}, v{RG+21}
    s_and_b64 s[58:59], s[58:59], s[70:71]
    s_mov_b32 s{sT}, 0x7f800000
    v_cmp_gt_f32 vcc, s{sT}, v{RG+20}
    s_and_b64 s[58:59], s[58:59], vcc
    s_cmp_eq_u64 s[58:59], -1
    s_cselect_b32 s{sT}, {0 if FORCE_FB else 1}, 0
    s_or_b32 s{sT}, s{sT}, s{sFB}
    s_cbranch_scc0 L_fb
    s_lshr_b32 s{sT}, s{sW}, 2
    s_lshl_b32 s{sT}, s{sT}, 13
    s_add_u32 s{sT}, s{sT}, s{sOb}
    s_add_u32 s{sT2}, s{sT}, 4096''')
    for a in range(2):
        A(f'buffer_store_dwordx4 {vr(PK+4*a,4)}, v2, {srd(WS)}, s{sT2 if a else sT} offen sc1')

def fallback():
    A('L_fb:')
    sG, sG0, sQ, sA, sBv, sAd = 42, 43, 44, 45, 46, 47
    S = OA + 32; CB = OA + 48; MX = 12
    for g in range(4): A(f'ds_read_b128 {vr(MK+4*g,4)}, v2 offset:{L_M+g*1024}')
    A(f'''s_mov_b32 s{sFB}, 1
    s_lshr_b32 s{sQ}, s{sW}, 2
    s_lshl_b32 s{sQ}, s{sQ}, 1
    s_lshl_b32 s{sT}, s{sRB}, 2
    s_add_u32 s{sQ}, s{sQ}, s{sT}
    s_max_u32 s{sG0}, s{sQ}, 8
    s_sub_u32 s{sG0}, s{sG0}, 8
    v_mov_b32 v{MX}, 0xff800000
    v_mov_b32 v{MX+1}, 0xff800000''')
    for r in range(32): A(f'v_mov_b32 v{OA+r}, 0')
    A('s_waitcnt lgkmcnt(0)')
    for ps in range(2):
        A(f'''s_mov_b32 s{sG}, s{sG0}
        L_fbl{ps}:
        s_lshr_b32 s{sT}, s{sG}, 2
        s_sub_u32 s{sT}, s{sT}, s{sRB}
        s_add_u32 s{sT}, s{sT}, 2
        s_lshl_b32 s{sT}, s{sT}, 18
        s_add_u32 s{sAd}, s{sKB2}, s{sT}
        s_and_b32 s{sT}, s{sG}, 3
        s_lshl_b32 s{sT}, s{sT}, 10
        s_add_u32 s{sAd}, s{sAd}, s{sT}
        buffer_load_dwordx4 {vr(KF,4)}, v2, {srd(WS)}, s{sAd} offen sc1
        s_mov_b64 exec, s[{sHalf}:{sHalf+1}]
        buffer_load_dwordx4 {vr(VF,4)}, v3, {srd(WS)}, s{sAd} offen sc1
        buffer_load_dwordx4 {vr(VF+4,4)}, v3, {srd(WS)}, s{sAd} offen offset:512 sc1
        s_mov_b64 exec, -1
        s_waitcnt vmcnt(0)''')
        for a in range(2):
            A(f'''s_sub_u32 s{sT}, s{sQ}, s{sG}
            s_add_u32 s{sT}, s{sT}, {a}
            s_cmp_eq_u32 s{sT}, 0
            s_cselect_b32 s{sA}, 1.0, 0
            s_cmp_eq_u32 s{sT}, 8
            s_cselect_b32 s{sA}, -1.0, s{sA}
            s_cmp_ge_u32 s{sT}, 8
            s_cselect_b32 s{sBv}, {f2u(-BIG)}, 0''')
            A(f'v_mov_b32 v14, s{sBv}')
            for r in range(16): A(f'v_fma_f32 v{CB+r}, v{MK+r}, s{sA}, v14')
            if ps:
                for r in range(16): A(f'v_sub_f32 v{CB+r}, v{CB+r}, v{MX+a}')
            A(f'{MFMA} {vr(S,16)}, {vr(KF,4)}, {vr(QF+4*a,4)}, {vr(CB,16)}')
            if ps == 0:
                for j in range(8): A(f'v_max3_f32 v{MX+a}, v{S+2*j}, v{S+2*j+1}, v{MX+a}')
            else:
                for r in range(16): A(f'v_exp_f32 v{S+r}, v{S+r}')
                for j in range(8): A(f'v_cvt_pk_bf16_f32 v{S+j if j < 4 else S+4+j}, v{S+2*j}, v{S+2*j+1}')
                for h in range(2):
                    A(f'{MFMA} {vr(OA+16*a,16)}, {vr(VF+4*h,4)}, {vr(S+8*h,4)}, {vr(OA+16*a,16)}')
                A('s_nop 7')
        A(f'''s_add_u32 s{sG}, s{sG}, 1
        s_add_u32 s{sT}, s{sQ}, 1
        s_cmp_le_u32 s{sG}, s{sT}
        s_cbranch_scc1 L_fbl{ps}''')
        if ps == 0:
            for a in range(2):
                A(f'v_mov_b32 v14, v{MX+a}\ns_nop 1\nv_permlane32_swap_b32 v{MX+a}, v14\nv_max_f32 v{MX+a}, v{MX+a}, v14')
    A('s_nop 7')
    for a in range(2):
        for j in range(8): A(f'v_mov_b32 v{RG+8*a+j}, v{OA+16*a+j}')
        A(f'v_mov_b32 v{RG+16+a}, v{OA+16*a+8}')
    A('s_branch L_final')

WF = 16; OF = 144; AC3 = 208
def wait_chain(sreg, nmax, per, extra, tag):
    for n in range(nmax, 0, -1):
        A(f's_cmp_ge_u32 s{sreg}, {n}\ns_cbranch_scc1 L_wc{tag}_{n}')
    A(f's_waitcnt vmcnt({extra})')
    for n in range(1, nmax+1):
        A(f'L_wc{tag}_{n}:\ns_waitcnt vmcnt({per*n+extra})')
def wait_dyn(_):
    A(f's_bcnt1_i32_b32 s{sT2}, s{sNew}')
    wait_chain(sT2, 4, 4, 0, 'f')
def o_issue(tag):
    A(f'''v_cmp_eq_u32 vcc, 1, v15
    s_lshr_b32 s{sT}, vcc_lo, 1
    s_and_b32 s{sT}, s{sT}, vcc_lo
    s_lshr_b32 s{sT2}, s{sT}, 2
    s_and_b32 s{sT}, s{sT}, s{sT2}
    s_cmp_ge_u32 s{sSpin}, 0x10000
    s_cselect_b32 s{sT}, -1, s{sT}
    s_and_b32 s{sT}, s{sT}, 0x1111
    s_andn2_b32 s{sNew}, s{sT}, s{sIss}
    s_or_b32 s{sIss}, s{sIss}, s{sNew}''')
    for g in range(4):
        A(f's_bitcmp0_b32 s{sNew}, {4*g}\ns_cbranch_scc1 L_oi{tag}{g}\ns_add_u32 s{sT}, s{sN2}, {g*16384}')
        for j in range(4):
            A(f'buffer_load_dwordx4 {vr(OF+16*g+4*j,4)}, v2, {srd(WS)}, s{sT} offen offset:{j*1024}{LDSC}')
        A(f'L_oi{tag}{g}:')
def phase3():
    A(f'''s_andn2_b32 s{sN2}, s{sWG}, 7
    s_and_b32 s{sT3}, s{sW}, 4
    s_add_u32 s{sN2}, s{sN2}, s{sT3}
    s_lshl_b32 s{sN2}, s{sN2}, 14
    s_and_b32 s{sT3}, s{sW}, 3
    s_lshl_b32 s{sT3}, s{sT3}, 12
    s_add_u32 s{sN2}, s{sN2}, s{sT3}
    s_add_u32 s{sN2}, s{sN2}, {WS_O}
    s_mov_b32 s{sIss}, 0
    s_mov_b32 s{sSpin}, 0
    s_waitcnt vmcnt(2)''')
    o_issue('a')
    stamp(8)
    A(f'''v_bfe_u32 v3, v0, 2, 2
    v_lshrrev_b32 v8, 5, v0
    v_lshl_add_u32 v3, v8, 2, v3
    v_lshlrev_b32 v12, 7, v3
    v_bfe_u32 v3, v0, 4, 1
    v_lshlrev_b32 v3, 1, v3
    v_bfe_u32 v10, v0, 1, 1
    v_or_b32 v3, v3, v10
    v_bfe_u32 v10, v0, 3, 1
    v_lshl_or_b32 v3, v10, 2, v3
    v_lshl_add_u32 v12, v3, 4, v12
    v_and_b32 v3, 1, v0
    v_lshl_add_u32 v12, v3, 3, v12
    s_lshr_b32 s{sT3}, s{sW}, 2
    s_lshl_b32 s{sT3}, s{sT3}, 15
    s_add_u32 s{sT3}, s{sT3}, {L_WO}
    v_add_u32 v12, s{sT3}, v12
    v_xor_b32 v7, 64, v12''')
    def wfr(lo, hi):
        for i in range(lo, hi):
            for nt in range(2):
                for j in range(2):
                    A(f'ds_read_b64_tr_b16 {vr(WF+8*i+4*nt+2*j,2)}, v{7 if nt else 12} offset:{i*2048+j*1024}')
    wfr(0, 4)
    set_flag(sFo, wait=False)
    stamp(7)
    poll_issue(9)
    wfr(4, 16)
    for r in range(32): A(f'v_mov_b32 v{AC3+r}, 0')
    A(f'''v_and_b32 v10, 31, v0
    v_lshlrev_b32 v10, 11, v10
    v_lshl_add_u32 v10, v8, 4, v10
    s_and_b32 s{sT}, s{sW}, 3
    s_lshl_b32 s{sN1}, s{sRB}, 2
    s_add_u32 s{sN1}, s{sN1}, s{sT}
    s_lshl_b32 s{sN1}, s{sN1}, 16
    s_lshl_b32 s{sT}, s{sB}, 10
    s_add_u32 s{sN1}, s{sN1}, s{sT}
    s_lshl_b32 s{sT}, s{sHG}, 7
    s_add_u32 s{sN1}, s{sN1}, s{sT}
    s_and_b32 s{sT}, s{sW}, 4
    s_lshl_b32 s{sT}, s{sT}, 4
    s_add_u32 s{sN1}, s{sN1}, s{sT}
    s_waitcnt lgkmcnt(0)
    L_p3l:''')
    for g in range(4):
        A(f's_bitcmp0_b32 s{sNew}, {4*g}\ns_cbranch_scc1 L_om{g}')
        if g < 3:
            A(f's_lshr_b32 s{sT}, s{sNew}, {4*g+4}\ns_bcnt1_i32_b32 s{sT2}, s{sT}')
        wait_chain(sT2, 3-g, 4, 1, f'm{g}')
        for j in range(4):
            for nt in range(2):
                acc = vr(AC3+16*nt, 16); i = 4*g + j
                A(f'{MFMA} {acc}, {vr(WF+8*i+4*nt,4)}, {vr(OF+4*i,4)}, {acc}')
        A(f'L_om{g}:')
    A(f'''s_cmp_eq_u32 s{sIss}, 0x1111
    s_cbranch_scc1 L_p3d
    s_add_u32 s{sSpin}, s{sSpin}, 1
    s_waitcnt vmcnt(0)''')
    o_issue('b')
    stamp(8)
    A(f's_cmp_lg_u32 s{sNew}, 0\ns_cbranch_scc1 L_p3n\ns_sleep {SLP}\nL_p3n:')
    poll_issue(9)
    A('s_branch L_p3l\nL_p3d:')
    A(f's_lshr_b32 s{sT2}, s{sW}, 2\ns_nop 7\ns_nop 3')
    stamp(9)
    for kh in range(2):
        if kh == 0: A(f's_cmp_lg_u32 s{sT2}, 0\ns_cbranch_scc1 L_x1')
        else: A('L_x1:')
        send = AC3 + 16*(1-kh); keep = AC3 + 16*kh
        for g in range(4): A(f'ds_write_b128 v6, {vr(send+4*g,4)} offset:{g*1024}')
        A('s_waitcnt lgkmcnt(0)\ns_barrier')
        for g in range(4): A(f'ds_read_b128 {vr(16+4*g,4)}, v5 offset:{g*1024}')
        for g in range(4):
            A(f's_waitcnt lgkmcnt({3-g})')
            for r in range(4): A(f'v_add_f32 v{keep+4*g+r}, v{keep+4*g+r}, v{16+4*g+r}')
            for j in range(2): A(f'v_cvt_pk_bf16_f32 v{32+2*g+j}, v{keep+4*g+2*j}, v{keep+4*g+2*j+1}')
        if kh == 0: A('s_branch L_x2')
    A('L_x2:\ns_nop 1')
    for p in range(2):
        A(f'v_permlane32_swap_b32 v{32+4*p}, v{34+4*p}\nv_permlane32_swap_b32 v{33+4*p}, v{35+4*p}')
        A(f'buffer_store_dwordx4 {vr(32+4*p,4)}, v10, {srd(OUT)}, s{sN1} offen offset:{32*p}' + ['', ' sc1', ' nt', ' sc0 sc1', ' sc1 nt'][OST])
    if PROF:
        A('s_waitcnt vmcnt(0)')
        stamp(10)
        A(f'''s_lshl_b32 s{sT}, s2, 3
        s_add_u32 s{sT}, s{sT}, s{sW}
        s_lshl_b32 s{sT}, s{sT}, 7
        s_add_u32 s{sT}, s{sT}, {WS_ST}
        v_mov_b32 v1, 0''')
        for i in range(11):
            A(f'v_mov_b32 v2, s{sST+2*i}\nbuffer_store_dword v2, v1, {srd(WS)}, s{sT} offen offset:{4*i}')
        A(f'v_mov_b32 v2, s100\nbuffer_store_dword v2, v1, {srd(WS)}, s{sT} offen offset:60')
        A('s_mov_b32 s99, s100\ns_memrealtime s[100:101]\ns_waitcnt lgkmcnt(0)')
        A(f'v_mov_b32 v2, s100\nbuffer_store_dword v2, v1, {srd(WS)}, s{sT} offen offset:56')
    if DBGP:
        A(f'''s_mov_b64 exec, 1
        v_mov_b32 v2, s100
        buffer_atomic_umax v2, v1, {srd(DBG)}, 0 offen offset:4
        s_not_b32 s{sT}, s99
        v_mov_b32 v3, s{sT}
        buffer_atomic_umax v3, v1, {srd(DBG)}, 0 offen offset:8
        s_cmp_lg_u32 s2, 77
        s_cbranch_scc1 L_end
        s_cmp_eq_u32 s{sW}, 4
        s_cbranch_scc1 L_dbg4
        s_cmp_lg_u32 s{sW}, 0
        s_cbranch_scc1 L_end''')
        for i in range(1, 11):
            A(f's_sub_u32 s{sT}, s{sST+2*i}, s{sST}\nv_mov_b32 v2, s{sT}\nbuffer_store_dword v2, v1, {srd(DBG)}, 0 offen offset:{8+4*i}')
        A('s_branch L_end\nL_dbg4:')
        for k, i in enumerate((5, 6, 8)):
            A(f's_sub_u32 s{sT}, s{sST+2*i}, s{sST}\nv_mov_b32 v2, s{sT}\nbuffer_store_dword v2, v1, {srd(DBG)}, 0 offen offset:{52+4*k}')
    A('L_end:\ns_endpgm')

prologue()
compute_p1()
attention(0)
A('s_branch L_final')
loader_p1()
stamp(3)
attention(1)
finalize()
phase3()
fallback()
body, nadd = A.finish()
hdr = open('cdna_kernels/' + NAME + '.s.ref').read().split('; Override launch')[0]
out = hdr + f'''; @launch grid=(256,1,1) block=(512,1,1) lds=163840
.amdgcn_target "amdgcn-amd-amdhsa--gfx950"
.text
.globl {NAME}_kernel
.p2align 8
.type {NAME}_kernel,@function
{NAME}_kernel:
{body}.section .rodata,"a"
.p2align 6
.amdhsa_kernel {NAME}_kernel
  .amdhsa_next_free_vgpr 256
  .amdhsa_next_free_sgpr 102
  .amdhsa_accum_offset 256
  .amdhsa_group_segment_fixed_size 0
  .amdhsa_kernarg_size 72
  .amdhsa_user_sgpr_count 2
  .amdhsa_user_sgpr_kernarg_segment_ptr 1
  .amdhsa_system_sgpr_workgroup_id_x 1
.end_amdhsa_kernel
'''
dst = [a for a in sys.argv[1:] if not a.startswith('--')]
open(dst[0] if dst else 'cdna_kernels/' + NAME + '.s', 'w').write(out)
print('nops inserted', nadd, 'lines', body.count('\n'))
```

```python
import sys, struct
from asmlib import Asm
NAME = 'concat_heads__sliding_block__sliding_block__prompt'
DBGP = '--dbg' in sys.argv
PROF = '--prof' in sys.argv or DBGP
def opt(name, d):
    for a in sys.argv:
        if a.startswith('--'+name+'='): return int(a.split('=')[1])
    return d
DEP = opt('dep', 2); ROT = opt('rot', 0); PF = opt('pf', 1); LDSC = ' sc1' if opt('ldsc', 1) else ''
FORCE_FB = '--force-fb' in sys.argv
def f2u(x): return struct.unpack('<I', struct.pack('<f', x))[0]
A = Asm()
SLOT = 40960
WS_O = 8 << 20; WS_FL = 12 << 20; WS_ST = 13 << 20; WS_SZ = 14 << 20
RING0 = 40960; L_M = 0; L_CNT = 4096; L_WO = 4608; L_B = 70144; L_X = 122880
CSC = 0.25 * 1.4426950408889634
BIG = 1e30
sW = 3; X, Wq, WO, WS, OUT, DBG = 4, 8, 12, 16, 20, 24
sB, sRB, sHG, sWG = 28, 29, 30, 31
sXo, sWo, sSl, sIt, sT, sT2, sN1, sN2 = 50, 51, 52, 53, 54, 55, 56, 57
sHalf = 60; sC = 62; sSpin = 63; sFl = 64; sOb = 65; sT3 = 66; sLo = 67; sHi = 68
sST = 72
nst = [0]
def srd(i): return f's[{i}:{i+3}]'
def vr(a, n): return f'v[{a}:{a+n-1}]'
def stamp(idx):
    if PROF:
        A(f's_memtime s[{sST+2*idx}:{sST+2*idx+1}]\ns_waitcnt lgkmcnt(0)')
QF = 16; OA = 32; SB = 96; MK = 128; KF = 144; VF = 168; PK = 240
sEarly, sKB1, sKB2, sIss, sNew, sFB = 32, 33, 34, 35, 36, 37
sE1, sE2, sE3 = 39, 40, 41
sFo, sWm, sWg = 38, 48, 49
SLP = opt('slp', 2)
XCH = 4608
ST2 = opt('st2', 0)
OST = opt('ost', 0)
ACC = 16; FR = 112
MFMA = 'v_mfma_f32_32x32x16_bf16'

def prologue():
    A(f'''s_cmp_ge_u32 s2, 256
    s_cbranch_scc1 L_end
    s_load_dwordx8 s[32:39], s[0:1], 0
    s_load_dwordx8 s[40:47], s[0:1], 32
    s_load_dwordx2 s[48:49], s[0:1], 64''')
    if PROF: A(f's_memrealtime s[100:101]')
    A(f'''v_lshrrev_b32 v1, 6, v0
    v_and_b32 v0, 63, v0
    s_and_b32 s{sT}, s2, 7
    v_readfirstlane_b32 s{sW}, v1
    s_lshr_b32 s{sT2}, s2, 3
    s_lshr_b32 s{sB}, s{sT}, 2
    s_and_b32 s{sT}, s{sT}, 3
    s_lshl_b32 s{sT}, s{sT}, 2
    s_lshr_b32 s{sRB}, s{sT2}, 3
    s_add_u32 s{sRB}, s{sRB}, s{sT}
    s_and_b32 s{sHG}, s{sT2}, 7
    s_lshl_b32 s{sWG}, s{sB}, 4
    s_add_u32 s{sWG}, s{sWG}, s{sRB}
    s_lshl_b32 s{sWG}, s{sWG}, 3
    s_add_u32 s{sWG}, s{sWG}, s{sHG}
    s_mov_b32 s{X+2}, 0x200000
    s_mov_b32 s{X+3}, 0x20000
    s_mov_b32 s{Wq+2}, 0x180000
    s_mov_b32 s{Wq+3}, 0x20000
    s_mov_b32 s{WO+2}, 0x80000
    s_mov_b32 s{WO+3}, 0x20000
    s_mov_b32 s{WS+2}, {WS_SZ}
    s_mov_b32 s{WS+3}, 0x20000
    s_mov_b32 s{OUT+2}, 0x400000
    s_mov_b32 s{OUT+3}, 0x20000
    s_mov_b32 s{DBG+2}, 256
    s_mov_b32 s{DBG+3}, 0x20000
    s_mov_b32 s{sHalf}, 0xffff
    s_mov_b32 s{sHalf+1}, 0xffff
    s_cmp_eq_u32 s{sB}, 0
    s_waitcnt lgkmcnt(0)
    s_cselect_b32 s{X}, s32, s38
    s_cselect_b32 s{X+1}, s33, s39
    s_cselect_b32 s{Wq}, s34, s40
    s_cselect_b32 s{Wq+1}, s35, s41
    s_cselect_b32 s{WO}, s36, s42
    s_cselect_b32 s{WO+1}, s37, s43
    s_mov_b32 s{OUT}, s44
    s_mov_b32 s{OUT+1}, s45
    s_mov_b32 s{DBG}, s46
    s_mov_b32 s{DBG+1}, s47
    s_mov_b32 s{WS}, s48
    s_mov_b32 s{WS+1}, s49''')
    stamp(0)
    A(f'''s_cmp_ge_u32 s{sW}, 4
    s_cbranch_scc1 L_loader''')

def preset_ones():
    A(f'v_mov_b32 v1, 0x3f803f80')
    for i in range(48): A(f'v_mov_b32 v{VF+i}, v1')

def common_consts():
    A(f'''s_lshl_b32 s{sFl}, s{sWG}, 7
    s_lshl_b32 s{sT}, s{sW}, 2
    s_add_u32 s{sFl}, s{sFl}, s{sT}
    s_add_u32 s{sFl}, s{sFl}, {WS_FL}
    s_add_u32 s{sFo}, s{sFl}, 16
    s_mov_b32 s{sC}, {f2u(CSC)}
    s_mov_b32 s{sLo}, {f2u(2.0**-40)}
    s_mov_b32 s{sHi}, {f2u(2.0**40)}''')

def lds_min4(dst_s, vt, addr_v, off, wait=True):
    A(f'ds_read_b128 {vr(vt,4)}, v{addr_v} offset:{off}')
    A('s_waitcnt lgkmcnt(0)')
    min4(dst_s, vt)
def min4(dst_s, vt):
    A(f'v_min3_u32 v{vt}, v{vt}, v{vt+1}, v{vt+2}\nv_min_u32 v{vt}, v{vt}, v{vt+3}\nv_readfirstlane_b32 s{dst_s}, v{vt}')

def loader_p1():
    A('L_loader:')
    A(f"""v_lshrrev_b32 v6, 3, v0
    v_and_b32 v7, 7, v0
    v_lshrrev_b32 v8, 4, v0
    v_xor_b32 v9, v7, v8
    v_lshlrev_b32 v9, 4, v9
    v_lshl_add_u32 v2, v6, 10, v9
    v_xor_b32 v3, 64, v2
    v_and_b32 v8, 1, v8
    v_lshlrev_b32 v8, 2, v8
    v_xor_b32 v9, v7, v8
    v_lshlrev_b32 v9, 4, v9
    v_mul_u32_u24 v4, 3072, v6
    v_add_u32 v4, v4, v9
    v_lshl_add_u32 v5, v6, 10, v9
    s_sub_u32 s{sT}, s{sW}, 4
    s_lshl_b32 s{sXo}, s{sRB}, 17
    s_lshl_b32 s{sT2}, s{sT}, 15
    s_add_u32 s{sXo}, s{sXo}, s{sT2}
    s_mul_i32 s{sWo}, s{sT}, {16*3072}
    s_lshl_b32 s{sT2}, s{sHG}, 7
    s_add_u32 s{sWo}, s{sWo}, s{sT2}
    s_lshl_b32 s{sN1}, s{sT}, 12
    s_add_u32 s{sN1}, s{sN1}, {RING0+SLOT}
    s_lshl_b32 s{sN2}, s{sT}, 11
    s_add_u32 s{sN2}, s{sN2}, {16384+RING0+SLOT}
    s_lshl_b32 s{sT}, s{sT}, 2
    v_mov_b32 v10, 0
    v_mov_b32 v11, s{sT}
    s_mov_b32 s{sIt}, 0
    s_mov_b32 s69, 1
    L_ld_loop:""")
    for j in range(4):
        A(f"""s_add_u32 m0, s{sN1}, {j*1024}
        s_add_u32 s{sT}, s{sXo}, {j*8192}
        buffer_load_dwordx4 v{2+(j&1)}, {srd(X)}, s{sT} offen lds""")
    for seg in range(3):
        for q in range(2):
            A(f"""s_add_u32 m0, s{sN2}, {seg*8192+q*1024}
            s_add_u32 s{sT}, s{sWo}, {seg*1024+q*8*3072}
            buffer_load_dwordx4 v4, {srd(Wq)}, s{sT} offen lds""")
    A(f"""s_add_u32 s{sXo}, s{sXo}, 128
    s_add_u32 s{sWo}, s{sWo}, {64*3072}
    s_add_u32 s69, s69, 1
    s_mov_b32 s{sT}, {SLOT}
    s_cmp_eq_u32 s69, 3
    s_cselect_b32 s{sT}, {-2*SLOT & 0xffffffff}, s{sT}
    s_cselect_b32 s69, 0, s69
    s_add_u32 s{sN1}, s{sN1}, s{sT}
    s_add_u32 s{sN2}, s{sN2}, s{sT}
    s_cmp_lg_u32 s{sIt}, 0
    s_cbranch_scc1 L_ld_sig
    s_barrier
    s_mov_b32 s{sIt}, 1
    s_branch L_ld_loop
    L_ld_sig:
    v_mov_b32 v12, s{sIt}
    s_add_u32 s{sIt}, s{sIt}, 1
    s_waitcnt vmcnt(10)
    ds_write_b32 v11, v12 offset:{L_CNT}
    s_cmp_lt_u32 s{sIt}, 3
    s_cbranch_scc1 L_ld_loop
    s_cmp_eq_u32 s{sIt}, 8
    s_cbranch_scc1 L_ld_done
    s_sub_u32 s{sT3}, s{sIt}, 2""")
    lds_min4(sT2, 16, 10, L_CNT+16)
    A(f"""s_cmp_ge_u32 s{sT2}, s{sT3}
    s_cbranch_scc1 L_ld_loop
    v_mov_b32 v12, s{sIt}
    s_waitcnt vmcnt(0)
    ds_write_b32 v11, v12 offset:{L_CNT}
    L_ld_spin:""")
    lds_min4(sT2, 16, 10, L_CNT+16)
    A(f"""s_cmp_ge_u32 s{sT2}, s{sT3}
    s_cbranch_scc1 L_ld_loop
    s_branch L_ld_spin
    L_ld_done:
    v_and_b32 v13, 3, v0
    v_lshlrev_b32 v13, 2, v13
    buffer_load_dword v7, v13, {srd(DBG)}, 0 offen sc1
    v_mov_b32 v12, 8
    s_waitcnt vmcnt(1)
    ds_write_b32 v11, v12 offset:{L_CNT}""")
    stamp(1)
    A(f"""v_and_b32 v6, 31, v0
    v_lshrrev_b32 v9, 5, v0
    v_lshlrev_b32 v9, 2, v9
    v_sub_u32 v6, v6, v9
    v_cvt_f32_i32 v6, v6
    s_mov_b32 s{sT}, {f2u(-BIG)}
    v_lshlrev_b32 v8, 4, v0""")
    for r in range(16):
        c = 8*(r//4) + r % 4
        A(f'v_sub_f32 v{MK+r}, {f2u(float(c))}, v6')
        A(f'v_med3_f32 v{MK+r}, v{MK+r}, 0, 1.0')
        A(f'v_mul_f32 v{MK+r}, s{sT}, v{MK+r}')
    for g in range(4):
        A(f'ds_write_b128 v8, {vr(MK+4*g,4)} offset:{L_M+g*1024}')
    preset_ones()
    common_consts()
    A(f"""s_mov_b32 s{sSpin}, 0
    s_mov_b32 s{sT}, 1
    s_waitcnt vmcnt(0)
    L_gate:
    v_cmp_ne_u32 vcc, s{sT}, v7
    s_cbranch_vccz L_gate_ok
    s_sleep 4
    buffer_load_dword v7, v13, {srd(DBG)}, 0 offen sc1
    s_add_u32 s{sSpin}, s{sSpin}, 1
    s_cmp_lt_u32 s{sSpin}, 0x10000
    s_waitcnt vmcnt(0)
    s_cbranch_scc1 L_gate
    L_gate_ok:""")
    nb_setup()
    for r in range(16): A(f'v_mov_b32 v{OA+r}, 0')
    poll_issue()
    stamp(2)
    try_load(1, 'a')
    A(f's_cmp_lg_u32 s{sEarly}, 0\ns_cbranch_scc1 L_y_nopoll')
    poll_issue()
    A("""L_y_nopoll:
    s_waitcnt lgkmcnt(0)
    s_barrier""")

def frag_reads(buf, ks):
    F = FR + 20*buf
    xs = [f'ds_read_b128 {vr(F+4*mt,4)}, v{2+ks} offset:{mt*4096}' for mt in range(2)]
    def wrd(seg): return [f'ds_read_b64_tr_b16 {vr(F+8+4*seg+2*j,2)}, v6 offset:{16384+seg*8192+ks*2048+j*512}' for j in range(2)]
    return [xs[0]] + wrd(0) + [xs[1]] + wrd(1) + wrd(2)
def mfmas(buf):
    F = FR + 20*buf
    L = []
    for seg in range(3):
        for mt in range(2):
            acc = vr(ACC + (seg*2+mt)*16, 16)
            x = vr(F+4*mt, 4); w = vr(F+8+4*seg, 4)
            a, b = (w, x) if seg < 2 else (x, w)
            L.append(f'{MFMA} {acc}, {a}, {b}, {acc}')
    return L

def compute_p1():
    A(f'''v_mov_b32 v12, 0
    v_lshlrev_b32 v13, 2, v0
    ds_write_b32 v13, v12 offset:{L_CNT}
    s_waitcnt lgkmcnt(0)
    s_barrier''')
    A(f'''s_cmp_lg_u32 s2, 0
    s_cbranch_scc1 L_noinit
    v_lshlrev_b32 v1, 4, v0
    v_mov_b32 v4, 0
    v_mov_b32 v5, 0
    v_mov_b32 v6, 0
    v_mov_b32 v7, 0
    s_lshl_b32 s{sT}, s{sW}, 13
    s_add_u32 s{sT}, s{sT}, {WS_FL}
    s_add_u32 s{sT2}, s{sT}, 8192
    L_init:
    buffer_store_dwordx4 v[4:7], v1, {srd(WS)}, s{sT} offen sc1
    s_add_u32 s{sT}, s{sT}, 1024
    s_cmp_lt_u32 s{sT}, s{sT2}
    s_cbranch_scc1 L_init
    L_noinit:''')
    A(f'''v_and_b32 v7, 31, v0
    v_lshrrev_b32 v8, 5, v0
    v_lshrrev_b32 v9, 1, v7
    v_and_b32 v9, 7, v9
    v_xor_b32 v9, v9, v8
    v_lshlrev_b32 v9, 4, v9
    v_lshl_add_u32 v2, v7, 7, v9
    s_lshr_b32 s{sT}, s{sW}, 1
    s_lshl_b32 s{sT}, s{sT}, 13
    s_add_u32 s{sT}, s{sT}, {RING0+SLOT}
    v_add_u32 v2, s{sT}, v2
    v_xor_b32 v3, 32, v2
    v_xor_b32 v4, 64, v2
    v_xor_b32 v5, 96, v2
    v_bfe_u32 v9, v0, 2, 2
    v_lshl_add_u32 v9, v8, 3, v9
    v_lshlrev_b32 v6, 7, v9
    v_bfe_u32 v9, v0, 4, 1
    v_lshlrev_b32 v9, 1, v9
    v_bfe_u32 v10, v0, 1, 1
    v_or_b32 v9, v9, v10
    v_bfe_u32 v10, v0, 3, 1
    s_and_b32 s{sT}, s{sW}, 1
    v_xor_b32 v10, s{sT}, v10
    v_lshl_or_b32 v9, v10, 2, v9
    v_lshl_add_u32 v6, v9, 4, v6
    v_and_b32 v9, 1, v0
    v_lshl_add_u32 v6, v9, 3, v6
    v_add_u32 v6, {RING0+SLOT}, v6
    s_lshl_b32 s{sT}, s{sW}, 2
    v_mov_b32 v13, s{sT}''')
    epi_addr()
    for i in range(96): A(f'v_mov_b32 v{ACC+i}, 0')
    preset_ones()
    common_consts()
    A(f's_mov_b32 s{sIt}, 0\ns_mov_b32 s69, 1\nL_c_spin0:')
    lds_min4(sT2, 8, 12, L_CNT)
    A(f's_cmp_lt_u32 s{sT2}, 1\ns_cbranch_scc1 L_c_spin0')
    A(f'''s_cmp_lg_u32 s2, 0
    s_cbranch_scc1 L_noann
    v_mov_b32 v14, 1
    s_mov_b64 exec, 1
    s_waitcnt vmcnt(0)
    buffer_store_dword v14, v13, {srd(DBG)}, 0 offen sc1
    s_mov_b64 exec, -1
    L_noann:''')
    stamp(1)
    Q = []
    def ds(txt, tag): A(txt); Q.append(tag)
    def wait(tag):
        n = len(Q) - 1 - max(i for i, t in enumerate(Q) if t == tag)
        A(f's_waitcnt lgkmcnt({n})')
        del Q[:len(Q)-n]
    TAGS = ['x0', 'wq', 'wq', 'x1', 'wk', 'wk', 'wv', 'wv']
    for r, t in zip(frag_reads(0, 0), TAGS): ds(r, (0, t))
    A('L_p1_loop:')
    for ks in range(4):
        cur = ks & 1
        M = mfmas(cur)
        nk = (ks+1) & 3
        R = [(r, (nk, t)) for r, t in zip(frag_reads(cur ^ 1, nk), TAGS)]
        if ks < 3:
            wait((ks, 'wq')); A(M[0]); ds(*R[0]); ds(*R[1])
            wait((ks, 'x1')); A(M[1]); ds(*R[2]); ds(*R[3])
            wait((ks, 'wk')); A(M[2]); ds(*R[4]); ds(*R[5])
            A(M[3]); ds(*R[6]); ds(*R[7])
            wait((ks, 'wv')); A(M[4])
            if ks == 2: ds(f'ds_read_b128 v[8:11], v12 offset:{L_CNT}', 'cnt')
            A(M[5])
        else:
            wait((ks, 'wq')); A(M[0])
            A(f"""s_add_u32 s{sIt}, s{sIt}, 1
            s_add_u32 s69, s69, 1
            s_mov_b32 s{sT}, {SLOT}
            s_cmp_eq_u32 s69, 3
            s_cselect_b32 s{sT}, {-2*SLOT & 0xffffffff}, s{sT}
            s_cselect_b32 s69, 0, s69
            v_mov_b32 v14, s{sIt}""")
            wait((ks, 'x1')); A(M[1])
            for i in range(2, 7): A(f'v_add_u32 v{i}, s{sT}, v{i}')
            wait('cnt')
            A(f'ds_write_b32 v13, v14 offset:{L_CNT+16}')
            min4(sT2, 8)
            A(M[2])
            A(f"""s_min_u32 s{sT3}, s{sIt}, 7
            s_cmp_gt_u32 s{sT2}, s{sT3}
            s_cbranch_scc1 L_c_ok
            L_c_spin:""")
            lds_min4(sT2, 8, 12, L_CNT)
            A(f"""s_cmp_le_u32 s{sT2}, s{sT3}
            s_cbranch_scc1 L_c_spin
            L_c_ok:""")
            Q[:] = []
            ds(*R[0]); ds(*R[1])
            A(M[3]); ds(*R[2]); ds(*R[3]); ds(*R[4])
            A(M[4]); ds(*R[5]); ds(*R[6]); ds(*R[7])
            A(f's_cmp_lt_u32 s{sIt}, 8')
            A(M[5])
            A('s_cbranch_scc1 L_p1_loop')
    stamp(2)
    A('L_c_spin2:')
    lds_min4(sT2, 8, 12, L_CNT+16)
    A(f's_cmp_lt_u32 s{sT2}, 7\ns_cbranch_scc1 L_c_spin2')
    tmp = FR
    def cvt8(acc, dst):
        for i in range(8): A(f'v_cvt_pk_bf16_f32 v{dst+i}, v{acc+2*i}, v{acc+2*i+1}')
    n = 0
    for mt in range(2):
        acc = ACC + (1*2+mt)*16; d = tmp + 8*(n % 5); n += 1
        cvt8(acc, d)
        for e in range(2):
            A(f'buffer_store_dwordx4 {vr(d+4*e,4)}, v152, {srd(WS)}, s{sE2 if e else sE1} offen offset:{mt*1024} sc1')
            A(f'ds_write_b128 v155, {vr(d+4*e,4)} offset:{e*4096+mt*1024}')
    for mt in range(2):
        acc = ACC + (2*2+mt)*16; d = tmp + 8*(n % 5); n += 1
        cvt8(acc, d)
        for a in range(2):
            A(f'buffer_store_dwordx4 {vr(d+4*a,4)}, v154, {srd(WS)}, s{sE3} offen offset:{mt*1024+a*512} sc1')
            A(f'ds_write_b128 v153, {vr(d+4*a,4)} offset:{16384+mt*1024+a*512}')
    for mt in range(2):
        acc = ACC + mt*16
        for i in range(8): A(f'v_pk_mul_f32 {vr(acc+2*i,2)}, {vr(acc+2*i,2)}, s[{sC}:{sC+1}] op_sel_hi:[1,0]')
        cvt8(acc, acc)
        for e in range(2):
            A(f'ds_write_b128 v155, {vr(acc+4*e,4)} offset:{32768+e*4096+mt*1024}')
    nb_setup()
    A('s_waitcnt lgkmcnt(0)\ns_barrier')
    stamp(3)

def epi_addr():
    A(f'''v_lshlrev_b32 v152, 4, v0
    v_bfe_u32 v10, v0, 4, 1
    v_and_b32 v11, 15, v0
    v_lshrrev_b32 v7, 5, v0
    v_lshl_or_b32 v11, v7, 4, v11
    v_lshlrev_b32 v11, 4, v11
    v_lshl_add_u32 v153, v10, 12, v11
    v_lshl_add_u32 v154, v10, 13, v11
    s_and_b32 s{sT}, s{sW}, 1
    s_lshr_b32 s{sT2}, s{sW}, 1
    s_lshl_b32 s{sN1}, s{sT}, 13
    s_lshl_b32 s{sT3}, s{sT2}, 11
    s_add_u32 s{sN1}, s{sN1}, s{sT3}
    s_add_u32 s{sN1}, s{sN1}, {L_B}
    v_add_u32 v155, s{sN1}, v152
    v_add_u32 v153, s{sN1}, v153
    s_lshl_b32 s{sE1}, s{sWG}, 15
    s_lshl_b32 s{sT}, s{sT}, 14
    s_add_u32 s{sE1}, s{sE1}, s{sT}
    s_add_u32 s{sE1}, s{sE1}, s{sT3}
    s_add_u32 s{sE2}, s{sE1}, 8192
    s_add_u32 s{sE3}, s{sE1}, 4096''')

UNITS = {0: dict(tiles=[0, 3, -1, -2, -5, -8], keep=(0, 1),
                 own=[(0,0,1),(1,0,0),(2,0,0),(3,0,0),(3,3,1)],
                 C=[(0,-5,0),(1,-5,0),(2,-5,0),(3,-5,1),(0,-8,1)]),
         1: dict(tiles=[1, 2, -3, -4, -6, -7], keep=(2, 3),
                 own=[(1,1,1),(2,1,0),(3,1,0),(2,2,1),(3,2,0)],
                 C=[(0,-6,0),(1,-6,0),(2,-6,1),(0,-7,0),(1,-7,1)])}
for U in UNITS.values(): U['B'] = [(q, t, 0) for t in U['tiles'][2:4] for q in range(4)]
CT = [None]
def kf(t): return KF + 4*CT[0].index(t)
def vf(t, a): return VF + 8*CT[0].index(t) + 4*a
def qk(u, sb):
    q, t, m = u
    return f'{MFMA} {vr(sb,16)}, {vr(kf(t),4)}, {vr(QF+4*q,4)}, {vr(MK,16) if m else "0"}'
def pv(u, sb, a, first):
    q, t, m = u
    o = vr(OA+16*q, 16)
    return f'{MFMA} {o}, {vr(vf(t,a),4)}, {vr(sb+8*a,4)}, {"0" if first else o}'
def segment(units, started, pre_qk=None, pre_pv=None, mid=None):
    n = len(units)
    def QK(i):
        if pre_qk: pre_qk(units[i])
        A(qk(units[i], SB+16*(i & 1)))
    def PV(i, a):
        u = units[i]
        if pre_pv: pre_pv(u)
        first = (u[0] not in started)
        started.add(u[0])
        A(pv(u, SB+16*(i & 1), a, first))
    QK(0)
    if n > 1: QK(1)
    for i in range(n):
        S = SB + 16*(i & 1)
        e = lambda r: A(f'v_exp_f32 v{S+r}, v{S+r}')
        def c(j):
            d = S + j if j < 4 else S + 4 + j
            A(f'v_cvt_pk_bf16_f32 v{d}, v{S+2*j}, v{S+2*j+1}')
        if mid and i in mid: mid[i]()
        e(0); e(1)
        if i > 0:
            PV(i-1, 1)
            if i+1 < n: QK(i+1)
        for j in range(7):
            e(2*j+2); c(j); e(2*j+3)
            if j == 4: PV(i, 0)
        A('s_nop 0'); c(7)
    PV(n-1, 1)

def nb_setup():
    A(f'''s_and_b32 s{sT}, s{sW}, 3
    s_lshl_b32 s{sT2}, s{sT}, 12
    s_add_u32 s{sT2}, s{sT2}, {L_B}
    v_lshlrev_b32 v2, 4, v0
    v_add_u32 v7, s{sT2}, v2
    v_and_b32 v11, 15, v0
    v_lshrrev_b32 v12, 5, v0
    v_lshl_or_b32 v11, v12, 4, v11
    v_lshlrev_b32 v3, 4, v11
    v_add_u32 v8, s{sT2}, v3
    v_add_u32 v3, 4096, v3
    s_lshl_b32 s{sKB1}, s{sWG}, 2
    s_add_u32 s{sKB1}, s{sKB1}, s{sT}
    s_lshl_b32 s{sKB1}, s{sKB1}, 13
    s_sub_u32 s{sKB2}, s{sKB1}, {2*32*8192}
    s_sub_u32 s{sKB1}, s{sKB1}, {32*8192}
    s_lshl_b32 s{sOb}, s{sWG}, 14
    s_lshl_b32 s{sT2}, s{sT}, 10
    s_add_u32 s{sOb}, s{sOb}, s{sT2}
    s_add_u32 s{sOb}, s{sOb}, {WS_O}
    s_lshl_b32 s{sT2}, s{sWG}, 7
    s_lshr_b32 s{sT}, s{sT}, 1
    s_lshl_b32 s{sT}, s{sT}, 2
    s_add_u32 s{sT}, s{sT}, s{sT2}
    s_add_u32 s{sT}, s{sT}, {WS_FL-1024}
    s_cmp_ge_u32 s{sRB}, 2
    s_cselect_b32 s{sT2}, 1024, 0
    v_and_b32 v4, 1, v0
    v_lshl_add_u32 v4, v4, 3, s{sT}
    v_bfe_u32 v5, v0, 1, 1
    v_mul_lo_u32 v5, v5, s{sT2}
    v_sub_u32 v4, v4, v5
    v_lshrrev_b32 v1, 3, v0
    v_and_b32 v5, 7, v0
    v_bfe_u32 v6, v0, 4, 1
    v_lshlrev_b32 v6, 2, v6
    v_xor_b32 v5, v5, v6
    v_lshlrev_b32 v5, 4, v5
    v_lshl_add_u32 v1, v1, 10, v5
    s_lshl_b32 s{sWm}, s{sW}, 13
    s_add_u32 s{sWm}, s{sWm}, {L_WO}
    s_lshl_b32 s{sWg}, s{sW}, 16
    s_lshl_b32 s{sT}, s{sHG}, 7
    s_add_u32 s{sWg}, s{sWg}, s{sT}
    s_cmp_eq_u32 s{sRB}, 0
    s_cselect_b32 s{sEarly}, 1, 0
    s_mov_b32 s{sFB}, 0
    s_mul_i32 s{sT}, s{sW}, {XCH}
    s_add_u32 s{sT}, s{sT}, {L_X}
    v_add_u32 v5, s{sT}, v2
    v_lshl_add_u32 v10, v0, 2, s{sT}
    s_xor_b32 s{sT}, s{sW}, 4
    s_mul_i32 s{sT}, s{sT}, {XCH}
    s_add_u32 s{sT}, s{sT}, {L_X}
    v_add_u32 v6, s{sT}, v2
    v_lshl_add_u32 v11, v0, 2, s{sT}''')
    A(f'''s_andn2_b32 s{sN1}, s{sWG}, 7
    s_and_b32 s{sT}, s{sW}, 4
    s_add_u32 s{sN1}, s{sN1}, s{sT}
    s_lshl_b32 s{sN1}, s{sN1}, 7
    s_and_b32 s{sT}, s{sW}, 2
    s_lshl_b32 s{sT}, s{sT}, 3
    s_add_u32 s{sN1}, s{sN1}, s{sT}
    s_add_u32 s{sN1}, s{sN1}, {WS_FL+16}
    v_bfe_u32 v9, v0, 2, 2
    v_lshlrev_b32 v9, 7, v9
    v_and_b32 v12, 3, v0
    v_lshl_add_u32 v9, v12, 2, v9
    v_add_u32 v9, s{sN1}, v9''')

def wo_dma(j):
    A(f'''s_add_u32 m0, s{sWm}, {j*1024}
    s_add_u32 s{sT}, s{sWg}, {j*8192}
    buffer_load_dwordx4 v1, {srd(WO)}, s{sT} offen lds''')
def poll_issue(va=4, vd=15): A(f'buffer_load_dword v{vd}, v{va}, {srd(WS)}, 0 offen sc1')
def nb_loads(ty, tag):
    CT[0] = UNITS[ty]['tiles']
    def ld(t):
        base = sKB1 if t >= -4 else sKB2
        T = t % 4
        A(f'buffer_load_dwordx4 {vr(kf(t),4)}, v2, {srd(WS)}, s{base} offen offset:{T*1024}{LDSC}')
        A(f's_mov_b64 exec, s[{sHalf}:{sHalf+1}]')
        for a in range(2):
            A(f'buffer_load_dwordx4 {vr(vf(t,a),4)}, v3, {srd(WS)}, s{base} offen offset:{T*1024+a*512}{LDSC}')
        A('s_mov_b64 exec, -1')
    for t in CT[0][2:4]: ld(t)
    A(f's_cmp_eq_u32 s{sRB}, 1\ns_cbranch_scc1 L_nl{ty}{tag}')
    for t in CT[0][4:6]: ld(t)
    A(f'L_nl{ty}{tag}:\ns_mov_b32 s{sEarly}, 1')
def try_load(ty, tag):
    A(f'''s_cmp_lg_u32 s{sEarly}, 0
    s_cbranch_scc1 L_tl{ty}{tag}
    s_waitcnt vmcnt(0)
    v_cmp_ne_u32 vcc, 1, v15
    s_cbranch_vccnz L_tl{ty}{tag}''')
    nb_loads(ty, tag)
    A(f'L_tl{ty}{tag}:')

def set_flag(sa, wait=True):
    A(f'v_mov_b32 v14, 1\nv_mov_b32 v13, 0')
    if wait: A('s_waitcnt vmcnt(0)')
    else: wait_dyn(wait)
    A(f'''s_mov_b64 exec, 1
    buffer_store_dword v14, v13, {srd(WS)}, s{sa} offen sc1
    s_mov_b64 exec, -1''')

RG = SB
def attention(ty):
    U = UNITS[ty]; CT[0] = U['tiles']
    own = U['tiles'][:2]
    for q in range(4): A(f'ds_read_b128 {vr(QF+4*q,4)}, v7 offset:{32768+q*1024}')
    for t in own: A(f'ds_read_b128 {vr(kf(t),4)}, v7 offset:{t*1024}')
    for g in range(4): A(f'ds_read_b128 {vr(MK+4*g,4)}, v2 offset:{L_M+g*1024}')
    A(f's_mov_b64 exec, s[{sHalf}:{sHalf+1}]')
    for t in own:
        for a in range(2): A(f'ds_read_b128 {vr(vf(t,a),4)}, v8 offset:{16384+t*1024+a*512}')
    A('s_mov_b64 exec, -1')
    if ty == 0:
        set_flag(sFl)
        poll_issue()
    A('s_waitcnt lgkmcnt(4)')
    started = set() if ty == 0 else {0}
    done = [False]
    def pre_pv(u):
        if not done[0]: A('s_waitcnt lgkmcnt(0)'); done[0] = True
    segment(U['own'], started, pre_pv=pre_pv, mid={(3 if ty == 0 else 2): (lambda: try_load(ty, 'm'))})
    stamp(4)
    Lfin = f'L_fin{ty}'
    A(f'''s_cmp_lg_u32 s{sEarly}, 0
    s_cbranch_scc1 L_have{ty}
    s_mov_b32 s{sSpin}, 0
    L_pkv{ty}:''')
    poll_issue()
    A(f'''s_add_u32 s{sSpin}, s{sSpin}, 1
    s_waitcnt vmcnt(0)
    v_cmp_ne_u32 vcc, 1, v15
    s_cmp_ge_u32 s{sSpin}, 0x10000
    s_cbranch_scc1 L_pkv{ty}_ok
    s_cbranch_vccz L_pkv{ty}_ok
    s_sleep {SLP}
    s_branch L_pkv{ty}
    L_pkv{ty}_ok:''')
    nb_loads(ty, 'b')
    A(f'L_have{ty}:')
    stamp(5)
    A(f's_cmp_eq_u32 s{sRB}, 0\ns_cbranch_scc1 L_z{ty}')
    LB = f'L_B{ty}'
    nd = [0]
    def dm(j):
        def f(): wo_dma(j); nd[0] += 1
        return f
    A(f's_cmp_eq_u32 s{sRB}, 1\ns_cbranch_scc1 {LB}_only')
    def mk_wait(order):
        seen = set()
        def w(u):
            t = u[1]
            if t not in seen:
                seen.add(t)
                A(f's_waitcnt vmcnt({3*(len(order)-1-order.index(t))+nd[0]})')
        return w
    for r in range(16): A(f'v_sub_f32 v{MK+r}, {f2u(-BIG)}, v{MK+r}')
    segment(U['B'] + U['C'], set(started), pre_qk=mk_wait(U['tiles'][2:6]), mid={i+1: dm(i) for i in range(8)})
    A(f's_branch {Lfin}\nL_z{ty}:')
    for j in range(8): wo_dma(j)
    A(f's_branch {Lfin}')
    nd[0] = 0
    A(f'{LB}_only:')
    segment(U['B'], set(started), pre_qk=mk_wait(U['tiles'][2:4]), mid={i: dm(i) for i in range(8)})
    A(f'{Lfin}:')
    poll_issue(9)
    A('s_nop 9')
    stamp(6)
    send = [q for q in range(4) if q not in U['keep']]
    for a, q in enumerate(send):
        o = OA + 16*q
        A(f'ds_write_b128 v5, {vr(o,4)} offset:{a*2048}\nds_write_b128 v5, {vr(o+4,4)} offset:{a*2048+1024}')
        A(f'ds_write_b32 v10, v{o+8} offset:{4096+a*256}')
    A('s_waitcnt vmcnt(1) lgkmcnt(0)')
    if ST2: stamp(1)
    A('s_barrier')
    if ST2: stamp(2)
    for a in range(2):
        A(f'ds_read_b32 v{RG+16+a}, v11 offset:{4096+a*256}')
        A(f'ds_read_b128 {vr(RG+8*a,4)}, v6 offset:{a*2048}\nds_read_b128 {vr(RG+8*a+4,4)}, v6 offset:{a*2048+1024}')
    for a, q in enumerate(U['keep']):
        o = OA + 16*q
        A(f's_waitcnt lgkmcnt({3-3*a})')
        A(f'v_add_f32 v{RG+16+a}, v{RG+16+a}, v{o+8}')
        for j in range(8): A(f'v_add_f32 v{RG+8*a+j}, v{RG+8*a+j}, v{o+j}')
    if ty == 1:
        for j in range(8): A(f'v_mov_b32 v{QF+j}, v{QF+8+j}')

def finalize():
    A('L_final:')
    for a in range(2):
        o = RG + 8*a; l = RG + 16 + a; m = f's[{70 if a else 58}:{71 if a else 59}]'
        A(f'v_rcp_f32 v{l+2}, v{l}')
        A(f'v_cmp_lt_f32 {m}, s{sLo}, v{l}\nv_cmp_gt_f32 vcc, s{sHi}, v{l}\ns_and_b64 {m}, {m}, vcc')
        for j in range(8): A(f'v_mul_f32 v{o+j}, v{o+j}, v{l+2}')
        for j in range(4): A(f'v_cvt_pk_bf16_f32 v{PK+4*a+j}, v{o+2*j}, v{o+2*j+1}')
        A(f'v_add_f32 v{l+4}, |v{o}|, |v{o+1}|')
        for j in range(2, 8): A(f'v_add_f32 v{l+4}, v{l+4}, |v{o+j}|')
    A(f'''v_add_f32 v{RG+20}, v{RG+20}, v{RG+21}
    s_and_b64 s[58:59], s[58:59], s[70:71]
    s_mov_b32 s{sT}, 0x7f800000
    v_cmp_gt_f32 vcc, s{sT}, v{RG+20}
    s_and_b64 s[58:59], s[58:59], vcc
    s_cmp_eq_u64 s[58:59], -1
    s_cselect_b32 s{sT}, {0 if FORCE_FB else 1}, 0
    s_or_b32 s{sT}, s{sT}, s{sFB}
    s_cbranch_scc0 L_fb
    s_lshr_b32 s{sT}, s{sW}, 2
    s_lshl_b32 s{sT}, s{sT}, 13
    s_add_u32 s{sT}, s{sT}, s{sOb}
    s_add_u32 s{sT2}, s{sT}, 4096''')
    for a in range(2):
        A(f'buffer_store_dwordx4 {vr(PK+4*a,4)}, v2, {srd(WS)}, s{sT2 if a else sT} offen sc1')

    if ST2: stamp(3)

def fallback():
    A('L_fb:')
    sG, sG0, sQ, sA, sBv, sAd = 42, 43, 44, 45, 46, 47
    S = OA + 32; CB = OA + 48; MX = 12
    for g in range(4): A(f'ds_read_b128 {vr(MK+4*g,4)}, v2 offset:{L_M+g*1024}')
    A(f'''s_mov_b32 s{sFB}, 1
    s_lshr_b32 s{sQ}, s{sW}, 2
    s_lshl_b32 s{sQ}, s{sQ}, 1
    s_lshl_b32 s{sT}, s{sRB}, 2
    s_add_u32 s{sQ}, s{sQ}, s{sT}
    s_max_u32 s{sG0}, s{sQ}, 8
    s_sub_u32 s{sG0}, s{sG0}, 8
    v_mov_b32 v{MX}, 0xff800000
    v_mov_b32 v{MX+1}, 0xff800000''')
    for r in range(32): A(f'v_mov_b32 v{OA+r}, 0')
    A('s_waitcnt lgkmcnt(0)')
    for ps in range(2):
        A(f'''s_mov_b32 s{sG}, s{sG0}
        L_fbl{ps}:
        s_lshr_b32 s{sT}, s{sG}, 2
        s_sub_u32 s{sT}, s{sT}, s{sRB}
        s_add_u32 s{sT}, s{sT}, 2
        s_lshl_b32 s{sT}, s{sT}, 18
        s_add_u32 s{sAd}, s{sKB2}, s{sT}
        s_and_b32 s{sT}, s{sG}, 3
        s_lshl_b32 s{sT}, s{sT}, 10
        s_add_u32 s{sAd}, s{sAd}, s{sT}
        buffer_load_dwordx4 {vr(KF,4)}, v2, {srd(WS)}, s{sAd} offen sc1
        s_mov_b64 exec, s[{sHalf}:{sHalf+1}]
        buffer_load_dwordx4 {vr(VF,4)}, v3, {srd(WS)}, s{sAd} offen sc1
        buffer_load_dwordx4 {vr(VF+4,4)}, v3, {srd(WS)}, s{sAd} offen offset:512 sc1
        s_mov_b64 exec, -1
        s_waitcnt vmcnt(0)''')
        for a in range(2):
            A(f'''s_sub_u32 s{sT}, s{sQ}, s{sG}
            s_add_u32 s{sT}, s{sT}, {a}
            s_cmp_eq_u32 s{sT}, 0
            s_cselect_b32 s{sA}, 1.0, 0
            s_cmp_eq_u32 s{sT}, 8
            s_cselect_b32 s{sA}, -1.0, s{sA}
            s_cmp_ge_u32 s{sT}, 8
            s_cselect_b32 s{sBv}, {f2u(-BIG)}, 0''')
            A(f'v_mov_b32 v14, s{sBv}')
            for r in range(16): A(f'v_fma_f32 v{CB+r}, v{MK+r}, s{sA}, v14')
            if ps:
                for r in range(16): A(f'v_sub_f32 v{CB+r}, v{CB+r}, v{MX+a}')
            A(f'{MFMA} {vr(S,16)}, {vr(KF,4)}, {vr(QF+4*a,4)}, {vr(CB,16)}')
            if ps == 0:
                for j in range(8): A(f'v_max3_f32 v{MX+a}, v{S+2*j}, v{S+2*j+1}, v{MX+a}')
            else:
                for r in range(16): A(f'v_exp_f32 v{S+r}, v{S+r}')
                for j in range(8): A(f'v_cvt_pk_bf16_f32 v{S+j if j < 4 else S+4+j}, v{S+2*j}, v{S+2*j+1}')
                for h in range(2):
                    A(f'{MFMA} {vr(OA+16*a,16)}, {vr(VF+4*h,4)}, {vr(S+8*h,4)}, {vr(OA+16*a,16)}')
                A('s_nop 7')
        A(f'''s_add_u32 s{sG}, s{sG}, 1
        s_add_u32 s{sT}, s{sQ}, 1
        s_cmp_le_u32 s{sG}, s{sT}
        s_cbranch_scc1 L_fbl{ps}''')
        if ps == 0:
            for a in range(2):
                A(f'v_mov_b32 v14, v{MX+a}\ns_nop 1\nv_permlane32_swap_b32 v{MX+a}, v14\nv_max_f32 v{MX+a}, v{MX+a}, v14')
    A('s_nop 7')
    for a in range(2):
        for j in range(8): A(f'v_mov_b32 v{RG+8*a+j}, v{OA+16*a+j}')
        A(f'v_mov_b32 v{RG+16+a}, v{OA+16*a+8}')
    A('s_branch L_final')

WF = 16; OF = 144; AC3 = 208
def wait_chain(sreg, nmax, per, extra, tag):
    for n in range(nmax, 0, -1):
        A(f's_cmp_ge_u32 s{sreg}, {n}\ns_cbranch_scc1 L_wc{tag}_{n}')
    A(f's_waitcnt vmcnt({extra})')
    for n in range(1, nmax+1):
        A(f'L_wc{tag}_{n}:\ns_waitcnt vmcnt({per*n+extra})')
def wait_dyn(_):
    A(f's_bcnt1_i32_b32 s{sT2}, s{sNew}')
    wait_chain(sT2, 4, 4, 0, 'f')
def o_issue(tag):
    A(f'''v_cmp_eq_u32 vcc, 1, v15
    s_lshr_b32 s{sT}, vcc_lo, 1
    s_and_b32 s{sT}, s{sT}, vcc_lo
    s_lshr_b32 s{sT2}, s{sT}, 2
    s_and_b32 s{sT}, s{sT}, s{sT2}
    s_cmp_ge_u32 s{sSpin}, 0x10000
    s_cselect_b32 s{sT}, -1, s{sT}
    s_and_b32 s{sT}, s{sT}, 0x1111
    s_andn2_b32 s{sNew}, s{sT}, s{sIss}
    s_or_b32 s{sIss}, s{sIss}, s{sNew}''')
    for g in range(4):
        A(f's_bitcmp0_b32 s{sNew}, {4*g}\ns_cbranch_scc1 L_oi{tag}{g}\ns_add_u32 s{sT}, s{sN2}, {g*16384}')
        for j in range(4):
            A(f'buffer_load_dwordx4 {vr(OF+16*g+4*j,4)}, v2, {srd(WS)}, s{sT} offen offset:{j*1024}{LDSC}')
        A(f'L_oi{tag}{g}:')
def phase3():
    A(f'''s_andn2_b32 s{sN2}, s{sWG}, 7
    s_and_b32 s{sT3}, s{sW}, 4
    s_add_u32 s{sN2}, s{sN2}, s{sT3}
    s_lshl_b32 s{sN2}, s{sN2}, 14
    s_and_b32 s{sT3}, s{sW}, 3
    s_lshl_b32 s{sT3}, s{sT3}, 12
    s_add_u32 s{sN2}, s{sN2}, s{sT3}
    s_add_u32 s{sN2}, s{sN2}, {WS_O}
    s_mov_b32 s{sIss}, 0
    s_mov_b32 s{sSpin}, 0''')
    A(f'''v_bfe_u32 v3, v0, 2, 2
    v_lshrrev_b32 v8, 5, v0
    v_lshl_add_u32 v3, v8, 2, v3
    v_lshlrev_b32 v12, 7, v3
    v_bfe_u32 v3, v0, 4, 1
    v_lshlrev_b32 v3, 1, v3
    v_bfe_u32 v10, v0, 1, 1
    v_or_b32 v3, v3, v10
    v_bfe_u32 v10, v0, 3, 1
    v_lshl_or_b32 v3, v10, 2, v3
    v_lshl_add_u32 v12, v3, 4, v12
    v_and_b32 v3, 1, v0
    v_lshl_add_u32 v12, v3, 3, v12
    s_lshr_b32 s{sT3}, s{sW}, 2
    s_lshl_b32 s{sT3}, s{sT3}, 15
    s_add_u32 s{sT3}, s{sT3}, {L_WO}
    v_add_u32 v12, s{sT3}, v12
    v_xor_b32 v7, 64, v12''')
    def wfr(lo, hi):
        for i in range(lo, hi):
            for nt in range(2):
                for j in range(2):
                    A(f'ds_read_b64_tr_b16 {vr(WF+8*i+4*nt+2*j,2)}, v{7 if nt else 12} offset:{i*2048+j*1024}')
    for r in range(32): A(f'v_mov_b32 v{AC3+r}, 0')
    A(f'''v_and_b32 v10, 31, v0
    v_lshlrev_b32 v10, 11, v10
    v_lshl_add_u32 v10, v8, 4, v10
    s_and_b32 s{sT}, s{sW}, 3
    s_lshl_b32 s{sN1}, s{sRB}, 2
    s_add_u32 s{sN1}, s{sN1}, s{sT}
    s_lshl_b32 s{sN1}, s{sN1}, 16
    s_lshl_b32 s{sT}, s{sB}, 10
    s_add_u32 s{sN1}, s{sN1}, s{sT}
    s_lshl_b32 s{sT}, s{sHG}, 7
    s_add_u32 s{sN1}, s{sN1}, s{sT}
    s_and_b32 s{sT}, s{sW}, 4
    s_lshl_b32 s{sT}, s{sT}, 4
    s_add_u32 s{sN1}, s{sN1}, s{sT}''')
    if ST2: stamp(4)
    set_flag(sFo)
    stamp(7)
    o_issue('a')
    stamp(8)
    poll_issue(9)
    wfr(0, 16)
    A('s_waitcnt lgkmcnt(0)\nL_p3l:')
    for g in range(4):
        A(f's_bitcmp0_b32 s{sNew}, {4*g}\ns_cbranch_scc1 L_om{g}')
        if g < 3:
            A(f's_lshr_b32 s{sT}, s{sNew}, {4*g+4}\ns_bcnt1_i32_b32 s{sT2}, s{sT}')
        wait_chain(sT2, 3-g, 4, 1, f'm{g}')
        for j in range(4):
            for nt in range(2):
                acc = vr(AC3+16*nt, 16); i = 4*g + j
                A(f'{MFMA} {acc}, {vr(WF+8*i+4*nt,4)}, {vr(OF+4*i,4)}, {acc}')
        A(f'L_om{g}:')
    A(f'''s_cmp_eq_u32 s{sIss}, 0x1111
    s_cbranch_scc1 L_p3d
    s_add_u32 s{sSpin}, s{sSpin}, 1
    s_waitcnt vmcnt(0)''')
    o_issue('b')
    stamp(8)
    A(f's_cmp_lg_u32 s{sNew}, 0\ns_cbranch_scc1 L_p3n\ns_sleep {SLP}\nL_p3n:')
    poll_issue(9)
    A('s_branch L_p3l\nL_p3d:')
    A(f's_lshr_b32 s{sT2}, s{sW}, 2\ns_nop 7\ns_nop 3')
    stamp(9)
    for kh in range(2):
        if kh == 0: A(f's_cmp_lg_u32 s{sT2}, 0\ns_cbranch_scc1 L_x1')
        else: A('L_x1:')
        send = AC3 + 16*(1-kh); keep = AC3 + 16*kh
        for g in range(4): A(f'ds_write_b128 v6, {vr(send+4*g,4)} offset:{g*1024}')
        A('s_waitcnt lgkmcnt(0)\ns_barrier')
        for g in range(4): A(f'ds_read_b128 {vr(16+4*g,4)}, v5 offset:{g*1024}')
        for g in range(4):
            A(f's_waitcnt lgkmcnt({3-g})')
            for r in range(4): A(f'v_add_f32 v{keep+4*g+r}, v{keep+4*g+r}, v{16+4*g+r}')
            for j in range(2): A(f'v_cvt_pk_bf16_f32 v{32+2*g+j}, v{keep+4*g+2*j}, v{keep+4*g+2*j+1}')
        if kh == 0: A('s_branch L_x2')
    A('L_x2:\ns_nop 1')
    for p in range(2):
        A(f'v_permlane32_swap_b32 v{32+4*p}, v{34+4*p}\nv_permlane32_swap_b32 v{33+4*p}, v{35+4*p}')
        A(f'buffer_store_dwordx4 {vr(32+4*p,4)}, v10, {srd(OUT)}, s{sN1} offen offset:{32*p}' + ['', ' sc1', ' nt', ' sc0 sc1', ' sc1 nt'][OST])
    if PROF:
        A('s_waitcnt vmcnt(0)')
        stamp(10)
        A(f'''s_lshl_b32 s{sT}, s2, 3
        s_add_u32 s{sT}, s{sT}, s{sW}
        s_lshl_b32 s{sT}, s{sT}, 7
        s_add_u32 s{sT}, s{sT}, {WS_ST}
        v_mov_b32 v1, 0''')
        for i in range(11):
            A(f'v_mov_b32 v2, s{sST+2*i}\nbuffer_store_dword v2, v1, {srd(WS)}, s{sT} offen offset:{4*i}')
        A(f'v_mov_b32 v2, s100\nbuffer_store_dword v2, v1, {srd(WS)}, s{sT} offen offset:60')
        A('s_mov_b32 s99, s100\ns_memrealtime s[100:101]\ns_waitcnt lgkmcnt(0)')
        A(f'v_mov_b32 v2, s100\nbuffer_store_dword v2, v1, {srd(WS)}, s{sT} offen offset:56')
    if DBGP:
        A(f'''s_mov_b64 exec, 1
        v_mov_b32 v2, s100
        buffer_atomic_umax v2, v1, {srd(DBG)}, 0 offen offset:4
        s_not_b32 s{sT}, s99
        v_mov_b32 v3, s{sT}
        buffer_atomic_umax v3, v1, {srd(DBG)}, 0 offen offset:8
        s_cmp_lg_u32 s2, 77
        s_cbranch_scc1 L_end
        s_cmp_eq_u32 s{sW}, 4
        s_cbranch_scc1 L_dbg4
        s_cmp_lg_u32 s{sW}, 0
        s_cbranch_scc1 L_end''')
        for i in range(1, 11):
            A(f's_sub_u32 s{sT}, s{sST+2*i}, s{sST}\nv_mov_b32 v2, s{sT}\nbuffer_store_dword v2, v1, {srd(DBG)}, 0 offen offset:{8+4*i}')
        A('s_branch L_end\nL_dbg4:')
        for k, i in enumerate((5, 6, 8)):
            A(f's_sub_u32 s{sT}, s{sST+2*i}, s{sST}\nv_mov_b32 v2, s{sT}\nbuffer_store_dword v2, v1, {srd(DBG)}, 0 offen offset:{52+4*k}')
    A('L_end:\ns_endpgm')

prologue()
compute_p1()
attention(0)
A('s_branch L_final')
loader_p1()
stamp(3)
attention(1)
finalize()
phase3()
fallback()
body, nadd = A.finish()
hdr = open('cdna_kernels/' + NAME + '.s.ref').read().split('; Override launch')[0]
out = hdr + f'''; @launch grid=(256,1,1) block=(512,1,1) lds=163840
.amdgcn_target "amdgcn-amd-amdhsa--gfx950"
.text
.globl {NAME}_kernel
.p2align 8
.type {NAME}_kernel,@function
{NAME}_kernel:
{body}.section .rodata,"a"
.p2align 6
.amdhsa_kernel {NAME}_kernel
  .amdhsa_next_free_vgpr 256
  .amdhsa_next_free_sgpr 102
  .amdhsa_accum_offset 256
  .amdhsa_group_segment_fixed_size 0
  .amdhsa_kernarg_size 72
  .amdhsa_user_sgpr_count 2
  .amdhsa_user_sgpr_kernarg_segment_ptr 1
  .amdhsa_system_sgpr_workgroup_id_x 1
.end_amdhsa_kernel
'''
dst = [a for a in sys.argv[1:] if not a.startswith('--')]
open(dst[0] if dst else 'cdna_kernels/' + NAME + '.s', 'w').write(out)
print('nops inserted', nadd, 'lines', body.count('\n'))
```

```python
import sys, struct
from asmlib import Asm
NAME = 'concat_heads__sliding_block__sliding_block__prompt'
DBGP = '--dbg' in sys.argv
PROF = '--prof' in sys.argv or DBGP
def opt(name, d):
    for a in sys.argv:
        if a.startswith('--'+name+'='): return int(a.split('=')[1])
    return d
DEP = opt('dep', 2); ROT = opt('rot', 0); PF = opt('pf', 1); LDSC = ' sc1' if opt('ldsc', 1) else ''
FORCE_FB = '--force-fb' in sys.argv
def f2u(x): return struct.unpack('<I', struct.pack('<f', x))[0]
A = Asm()
SLOT = 40960
WS_O = 8 << 20; WS_FL = 12 << 20; WS_ST = 13 << 20; WS_SZ = 14 << 20
RING0 = 40960; L_M = 0; L_CNT = 4096; L_WO = 4608; L_B = 70144; L_X = 122880
CSC = 0.25 * 1.4426950408889634
BIG = 1e30
sW = 3; X, Wq, WO, WS, OUT, DBG = 4, 8, 12, 16, 20, 24
sB, sRB, sHG, sWG = 28, 29, 30, 31
sXo, sWo, sSl, sIt, sT, sT2, sN1, sN2 = 50, 51, 52, 53, 54, 55, 56, 57
sHalf = 60; sC = 62; sSpin = 63; sFl = 64; sOb = 65; sT3 = 66; sLo = 67; sHi = 68
sST = 72
nst = [0]
def srd(i): return f's[{i}:{i+3}]'
def vr(a, n): return f'v[{a}:{a+n-1}]'
def stamp(idx):
    if PROF:
        A(f's_memtime s[{sST+2*idx}:{sST+2*idx+1}]\ns_waitcnt lgkmcnt(0)')
QF = 16; OA = 32; SB = 96; MK = 128; KF = 144; VF = 168; PK = 240
sEarly, sKB1, sKB2, sIss, sNew, sFB = 32, 33, 34, 35, 36, 37
sE1, sE2, sE3 = 39, 40, 41
sFo, sWm, sWg = 38, 48, 49
sM, sL = 42, 43
sPoll, sNeed = 50, 51
C_KV, C_O, R_KV, R_O = L_CNT+32, L_CNT+36, L_CNT+48, L_CNT+52
SLP = opt('slp', 2)
XCH = 4608
ST2 = opt('st2', 0)
OST = opt('ost', 0)
ACC = 16; FR = 112
MFMA = 'v_mfma_f32_32x32x16_bf16'

def prologue():
    A(f'''s_cmp_ge_u32 s2, 256
    s_cbranch_scc1 L_end
    s_load_dwordx8 s[32:39], s[0:1], 0
    s_load_dwordx8 s[40:47], s[0:1], 32
    s_load_dwordx2 s[48:49], s[0:1], 64''')
    if PROF: A(f's_memrealtime s[100:101]')
    A(f'''v_lshrrev_b32 v1, 6, v0
    v_and_b32 v0, 63, v0
    s_and_b32 s{sT}, s2, 7
    v_readfirstlane_b32 s{sW}, v1
    s_lshr_b32 s{sT2}, s2, 3
    s_lshr_b32 s{sB}, s{sT}, 2
    s_and_b32 s{sT}, s{sT}, 3
    s_lshl_b32 s{sT}, s{sT}, 2
    s_lshr_b32 s{sRB}, s{sT2}, 3
    s_add_u32 s{sRB}, s{sRB}, s{sT}
    s_and_b32 s{sHG}, s{sT2}, 7
    s_lshl_b32 s{sWG}, s{sB}, 4
    s_add_u32 s{sWG}, s{sWG}, s{sRB}
    s_lshl_b32 s{sWG}, s{sWG}, 3
    s_add_u32 s{sWG}, s{sWG}, s{sHG}
    s_mov_b32 s{X+2}, 0x200000
    s_mov_b32 s{X+3}, 0x20000
    s_mov_b32 s{Wq+2}, 0x180000
    s_mov_b32 s{Wq+3}, 0x20000
    s_mov_b32 s{WO+2}, 0x80000
    s_mov_b32 s{WO+3}, 0x20000
    s_mov_b32 s{WS+2}, {WS_SZ}
    s_mov_b32 s{WS+3}, 0x20000
    s_mov_b32 s{OUT+2}, 0x400000
    s_mov_b32 s{OUT+3}, 0x20000
    s_mov_b32 s{DBG+2}, 256
    s_mov_b32 s{DBG+3}, 0x20000
    s_mov_b32 s{sHalf}, 0xffff
    s_mov_b32 s{sHalf+1}, 0xffff
    s_cmp_eq_u32 s{sB}, 0
    s_waitcnt lgkmcnt(0)
    s_cselect_b32 s{X}, s32, s38
    s_cselect_b32 s{X+1}, s33, s39
    s_cselect_b32 s{Wq}, s34, s40
    s_cselect_b32 s{Wq+1}, s35, s41
    s_cselect_b32 s{WO}, s36, s42
    s_cselect_b32 s{WO+1}, s37, s43
    s_mov_b32 s{OUT}, s44
    s_mov_b32 s{OUT+1}, s45
    s_mov_b32 s{DBG}, s46
    s_mov_b32 s{DBG+1}, s47
    s_mov_b32 s{WS}, s48
    s_mov_b32 s{WS+1}, s49''')
    stamp(0)
    A(f'''s_cmp_ge_u32 s{sW}, 4
    s_cbranch_scc1 L_loader''')

def preset_ones():
    A(f'v_mov_b32 v1, 0x3f803f80')
    for i in range(48): A(f'v_mov_b32 v{VF+i}, v1')

def common_consts():
    A(f'''s_lshl_b32 s{sFl}, s{sWG}, 7
    s_add_u32 s{sFl}, s{sFl}, {WS_FL}
    s_add_u32 s{sFo}, s{sFl}, 64
    s_mov_b32 s{sC}, {f2u(CSC)}
    s_mov_b32 s{sLo}, {f2u(2.0**-40)}
    s_mov_b32 s{sHi}, {f2u(2.0**40)}''')

def lds_min4(dst_s, vt, addr_v, off, wait=True):
    A(f'ds_read_b128 {vr(vt,4)}, v{addr_v} offset:{off}')
    A('s_waitcnt lgkmcnt(0)')
    min4(dst_s, vt)
def min4(dst_s, vt):
    A(f'v_min3_u32 v{vt}, v{vt}, v{vt+1}, v{vt+2}\nv_min_u32 v{vt}, v{vt}, v{vt+3}\nv_readfirstlane_b32 s{dst_s}, v{vt}')

def loader_p1():
    A('L_loader:')
    A(f"""v_lshrrev_b32 v6, 3, v0
    v_and_b32 v7, 7, v0
    v_lshrrev_b32 v8, 4, v0
    v_xor_b32 v9, v7, v8
    v_lshlrev_b32 v9, 4, v9
    v_lshl_add_u32 v2, v6, 10, v9
    v_xor_b32 v3, 64, v2
    v_and_b32 v8, 1, v8
    v_lshlrev_b32 v8, 2, v8
    v_xor_b32 v9, v7, v8
    v_lshlrev_b32 v9, 4, v9
    v_mul_u32_u24 v4, 3072, v6
    v_add_u32 v4, v4, v9
    v_lshl_add_u32 v5, v6, 10, v9
    s_sub_u32 s{sT}, s{sW}, 4
    s_lshl_b32 s{sXo}, s{sRB}, 17
    s_lshl_b32 s{sT2}, s{sT}, 15
    s_add_u32 s{sXo}, s{sXo}, s{sT2}
    s_mul_i32 s{sWo}, s{sT}, {16*3072}
    s_lshl_b32 s{sT2}, s{sHG}, 7
    s_add_u32 s{sWo}, s{sWo}, s{sT2}
    s_lshl_b32 s{sN1}, s{sT}, 12
    s_add_u32 s{sN1}, s{sN1}, {RING0+SLOT}
    s_lshl_b32 s{sN2}, s{sT}, 11
    s_add_u32 s{sN2}, s{sN2}, {16384+RING0+SLOT}
    s_lshl_b32 s{sT}, s{sT}, 2
    v_mov_b32 v10, 0
    v_mov_b32 v11, s{sT}
    s_mov_b32 s{sIt}, 0
    s_mov_b32 s69, 1
    L_ld_loop:""")
    for j in range(4):
        A(f"""s_add_u32 m0, s{sN1}, {j*1024}
        s_add_u32 s{sT}, s{sXo}, {j*8192}
        buffer_load_dwordx4 v{2+(j&1)}, {srd(X)}, s{sT} offen lds""")
    for seg in range(3):
        for q in range(2):
            A(f"""s_add_u32 m0, s{sN2}, {seg*8192+q*1024}
            s_add_u32 s{sT}, s{sWo}, {seg*1024+q*8*3072}
            buffer_load_dwordx4 v4, {srd(Wq)}, s{sT} offen lds""")
    A(f"""s_add_u32 s{sXo}, s{sXo}, 128
    s_add_u32 s{sWo}, s{sWo}, {64*3072}
    s_add_u32 s69, s69, 1
    s_mov_b32 s{sT}, {SLOT}
    s_cmp_eq_u32 s69, 3
    s_cselect_b32 s{sT}, {-2*SLOT & 0xffffffff}, s{sT}
    s_cselect_b32 s69, 0, s69
    s_add_u32 s{sN1}, s{sN1}, s{sT}
    s_add_u32 s{sN2}, s{sN2}, s{sT}
    s_cmp_lg_u32 s{sIt}, 0
    s_cbranch_scc1 L_ld_sig
    s_barrier
    s_mov_b32 s{sIt}, 1
    s_branch L_ld_loop
    L_ld_sig:
    v_mov_b32 v12, s{sIt}
    s_add_u32 s{sIt}, s{sIt}, 1
    s_waitcnt vmcnt(10)
    ds_write_b32 v11, v12 offset:{L_CNT}
    s_cmp_lt_u32 s{sIt}, 3
    s_cbranch_scc1 L_ld_loop
    s_cmp_eq_u32 s{sIt}, 8
    s_cbranch_scc1 L_ld_done
    s_sub_u32 s{sT3}, s{sIt}, 2""")
    lds_min4(sT2, 16, 10, L_CNT+16)
    A(f"""s_cmp_ge_u32 s{sT2}, s{sT3}
    s_cbranch_scc1 L_ld_loop
    v_mov_b32 v12, s{sIt}
    s_waitcnt vmcnt(0)
    ds_write_b32 v11, v12 offset:{L_CNT}
    L_ld_spin:""")
    lds_min4(sT2, 16, 10, L_CNT+16)
    A(f"""s_cmp_ge_u32 s{sT2}, s{sT3}
    s_cbranch_scc1 L_ld_loop
    s_branch L_ld_spin
    L_ld_done:
    v_and_b32 v13, 3, v0
    v_lshlrev_b32 v13, 2, v13
    buffer_load_dword v7, v13, {srd(DBG)}, 0 offen sc1
    v_mov_b32 v12, 8
    s_waitcnt vmcnt(1)
    ds_write_b32 v11, v12 offset:{L_CNT}""")
    stamp(1)
    A(f"""v_and_b32 v6, 31, v0
    v_lshrrev_b32 v9, 5, v0
    v_lshlrev_b32 v9, 2, v9
    v_sub_u32 v6, v6, v9
    v_cvt_f32_i32 v6, v6
    s_mov_b32 s{sT}, {f2u(-BIG)}
    v_lshlrev_b32 v8, 4, v0""")
    for r in range(16):
        c = 8*(r//4) + r % 4
        A(f'v_sub_f32 v{MK+r}, {f2u(float(c))}, v6')
        A(f'v_med3_f32 v{MK+r}, v{MK+r}, 0, 1.0')
        A(f'v_mul_f32 v{MK+r}, s{sT}, v{MK+r}')
    for g in range(4):
        A(f'ds_write_b128 v8, {vr(MK+4*g,4)} offset:{L_M+g*1024}')
    preset_ones()
    common_consts()
    A(f"""s_mov_b32 s{sSpin}, 0
    s_mov_b32 s{sT}, 1
    s_waitcnt vmcnt(0)
    L_gate:
    v_cmp_ne_u32 vcc, s{sT}, v7
    s_cbranch_vccz L_gate_ok
    s_sleep 4
    buffer_load_dword v7, v13, {srd(DBG)}, 0 offen sc1
    s_add_u32 s{sSpin}, s{sSpin}, 1
    s_cmp_lt_u32 s{sSpin}, 0x10000
    s_waitcnt vmcnt(0)
    s_cbranch_scc1 L_gate
    L_gate_ok:""")
    nb_setup()
    for r in range(16): A(f'v_mov_b32 v{OA+r}, 0')
    poll_issue(4, 'y0')
    stamp(2)
    try_load(1, 'a')
    A("""    s_waitcnt lgkmcnt(0)
    s_barrier""")

def frag_reads(buf, ks):
    F = FR + 20*buf
    xs = [f'ds_read_b128 {vr(F+4*mt,4)}, v{2+ks} offset:{mt*4096}' for mt in range(2)]
    def wrd(seg): return [f'ds_read_b64_tr_b16 {vr(F+8+4*seg+2*j,2)}, v6 offset:{16384+seg*8192+ks*2048+j*512}' for j in range(2)]
    return [xs[0]] + wrd(0) + [xs[1]] + wrd(1) + wrd(2)
def mfmas(buf):
    F = FR + 20*buf
    L = []
    for seg in range(3):
        for mt in range(2):
            acc = vr(ACC + (seg*2+mt)*16, 16)
            x = vr(F+4*mt, 4); w = vr(F+8+4*seg, 4)
            a, b = (w, x) if seg < 2 else (x, w)
            L.append(f'{MFMA} {acc}, {a}, {b}, {acc}')
    return L

def compute_p1():
    A(f'''v_mov_b32 v12, 0
    v_lshlrev_b32 v13, 2, v0
    ds_write_b32 v13, v12 offset:{L_CNT}
    s_waitcnt lgkmcnt(0)
    s_barrier''')
    A(f'''s_cmp_lg_u32 s2, 0
    s_cbranch_scc1 L_noinit
    v_lshlrev_b32 v1, 4, v0
    v_mov_b32 v4, 0
    v_mov_b32 v5, 0
    v_mov_b32 v6, 0
    v_mov_b32 v7, 0
    s_lshl_b32 s{sT}, s{sW}, 13
    s_add_u32 s{sT}, s{sT}, {WS_FL}
    s_add_u32 s{sT2}, s{sT}, 8192
    L_init:
    buffer_store_dwordx4 v[4:7], v1, {srd(WS)}, s{sT} offen sc1
    s_add_u32 s{sT}, s{sT}, 1024
    s_cmp_lt_u32 s{sT}, s{sT2}
    s_cbranch_scc1 L_init
    L_noinit:''')
    A(f'''v_and_b32 v7, 31, v0
    v_lshrrev_b32 v8, 5, v0
    v_lshrrev_b32 v9, 1, v7
    v_and_b32 v9, 7, v9
    v_xor_b32 v9, v9, v8
    v_lshlrev_b32 v9, 4, v9
    v_lshl_add_u32 v2, v7, 7, v9
    s_lshr_b32 s{sT}, s{sW}, 1
    s_lshl_b32 s{sT}, s{sT}, 13
    s_add_u32 s{sT}, s{sT}, {RING0+SLOT}
    v_add_u32 v2, s{sT}, v2
    v_xor_b32 v3, 32, v2
    v_xor_b32 v4, 64, v2
    v_xor_b32 v5, 96, v2
    v_bfe_u32 v9, v0, 2, 2
    v_lshl_add_u32 v9, v8, 3, v9
    v_lshlrev_b32 v6, 7, v9
    v_bfe_u32 v9, v0, 4, 1
    v_lshlrev_b32 v9, 1, v9
    v_bfe_u32 v10, v0, 1, 1
    v_or_b32 v9, v9, v10
    v_bfe_u32 v10, v0, 3, 1
    s_and_b32 s{sT}, s{sW}, 1
    v_xor_b32 v10, s{sT}, v10
    v_lshl_or_b32 v9, v10, 2, v9
    v_lshl_add_u32 v6, v9, 4, v6
    v_and_b32 v9, 1, v0
    v_lshl_add_u32 v6, v9, 3, v6
    v_add_u32 v6, {RING0+SLOT}, v6
    s_lshl_b32 s{sT}, s{sW}, 2
    v_mov_b32 v13, s{sT}''')
    epi_addr()
    for i in range(96): A(f'v_mov_b32 v{ACC+i}, 0')
    preset_ones()
    common_consts()
    A(f's_mov_b32 s{sIt}, 0\ns_mov_b32 s69, 1\nL_c_spin0:')
    lds_min4(sT2, 8, 12, L_CNT)
    A(f's_cmp_lt_u32 s{sT2}, 1\ns_cbranch_scc1 L_c_spin0')
    A(f'''s_cmp_lg_u32 s2, 0
    s_cbranch_scc1 L_noann
    v_mov_b32 v14, 1
    s_mov_b64 exec, 1
    s_waitcnt vmcnt(0)
    buffer_store_dword v14, v13, {srd(DBG)}, 0 offen sc1
    s_mov_b64 exec, -1
    L_noann:''')
    stamp(1)
    Q = []
    def ds(txt, tag): A(txt); Q.append(tag)
    def wait(tag):
        n = len(Q) - 1 - max(i for i, t in enumerate(Q) if t == tag)
        A(f's_waitcnt lgkmcnt({n})')
        del Q[:len(Q)-n]
    TAGS = ['x0', 'wq', 'wq', 'x1', 'wk', 'wk', 'wv', 'wv']
    for r, t in zip(frag_reads(0, 0), TAGS): ds(r, (0, t))
    A('L_p1_loop:')
    for ks in range(4):
        cur = ks & 1
        M = mfmas(cur)
        nk = (ks+1) & 3
        R = [(r, (nk, t)) for r, t in zip(frag_reads(cur ^ 1, nk), TAGS)]
        if ks < 3:
            wait((ks, 'wq')); A(M[0]); ds(*R[0]); ds(*R[1])
            wait((ks, 'x1')); A(M[1]); ds(*R[2]); ds(*R[3])
            wait((ks, 'wk')); A(M[2]); ds(*R[4]); ds(*R[5])
            A(M[3]); ds(*R[6]); ds(*R[7])
            wait((ks, 'wv')); A(M[4])
            if ks == 2: ds(f'ds_read_b128 v[8:11], v12 offset:{L_CNT}', 'cnt')
            A(M[5])
        else:
            wait((ks, 'wq')); A(M[0])
            A(f"""s_add_u32 s{sIt}, s{sIt}, 1
            s_add_u32 s69, s69, 1
            s_mov_b32 s{sT}, {SLOT}
            s_cmp_eq_u32 s69, 3
            s_cselect_b32 s{sT}, {-2*SLOT & 0xffffffff}, s{sT}
            s_cselect_b32 s69, 0, s69
            v_mov_b32 v14, s{sIt}""")
            wait((ks, 'x1')); A(M[1])
            for i in range(2, 7): A(f'v_add_u32 v{i}, s{sT}, v{i}')
            wait('cnt')
            A(f'ds_write_b32 v13, v14 offset:{L_CNT+16}')
            min4(sT2, 8)
            A(M[2])
            A(f"""s_min_u32 s{sT3}, s{sIt}, 7
            s_cmp_gt_u32 s{sT2}, s{sT3}
            s_cbranch_scc1 L_c_ok
            L_c_spin:""")
            lds_min4(sT2, 8, 12, L_CNT)
            A(f"""s_cmp_le_u32 s{sT2}, s{sT3}
            s_cbranch_scc1 L_c_spin
            L_c_ok:""")
            Q[:] = []
            ds(*R[0]); ds(*R[1])
            A(M[3]); ds(*R[2]); ds(*R[3]); ds(*R[4])
            A(M[4]); ds(*R[5]); ds(*R[6]); ds(*R[7])
            A(f's_cmp_lt_u32 s{sIt}, 8')
            A(M[5])
            A('s_cbranch_scc1 L_p1_loop')
    stamp(2)
    A('L_c_spin2:')
    lds_min4(sT2, 8, 12, L_CNT+16)
    A(f's_cmp_lt_u32 s{sT2}, 7\ns_cbranch_scc1 L_c_spin2')
    tmp = FR
    def cvt8(acc, dst):
        for i in range(8): A(f'v_cvt_pk_bf16_f32 v{dst+i}, v{acc+2*i}, v{acc+2*i+1}')
    n = 0
    for mt in range(2):
        acc = ACC + (1*2+mt)*16; d = tmp + 8*(n % 5); n += 1
        cvt8(acc, d)
        for e in range(2):
            A(f'buffer_store_dwordx4 {vr(d+4*e,4)}, v152, {srd(WS)}, s{sE2 if e else sE1} offen offset:{mt*1024} sc1')
            A(f'ds_write_b128 v155, {vr(d+4*e,4)} offset:{e*4096+mt*1024}')
    for mt in range(2):
        acc = ACC + (2*2+mt)*16; d = tmp + 8*(n % 5); n += 1
        cvt8(acc, d)
        for a in range(2):
            A(f'buffer_store_dwordx4 {vr(d+4*a,4)}, v154, {srd(WS)}, s{sE3} offen offset:{mt*1024+a*512} sc1')
            A(f'ds_write_b128 v153, {vr(d+4*a,4)} offset:{16384+mt*1024+a*512}')
    for mt in range(2):
        acc = ACC + mt*16
        for i in range(8): A(f'v_pk_mul_f32 {vr(acc+2*i,2)}, {vr(acc+2*i,2)}, s[{sC}:{sC+1}] op_sel_hi:[1,0]')
        cvt8(acc, acc)
        for e in range(2):
            A(f'ds_write_b128 v155, {vr(acc+4*e,4)} offset:{32768+e*4096+mt*1024}')
    nb_setup()
    A('s_waitcnt lgkmcnt(0)\ns_barrier')
    stamp(3)

def epi_addr():
    A(f'''v_lshlrev_b32 v152, 4, v0
    v_bfe_u32 v10, v0, 4, 1
    v_and_b32 v11, 15, v0
    v_lshrrev_b32 v7, 5, v0
    v_lshl_or_b32 v11, v7, 4, v11
    v_lshlrev_b32 v11, 4, v11
    v_lshl_add_u32 v153, v10, 12, v11
    v_lshl_add_u32 v154, v10, 13, v11
    s_and_b32 s{sT}, s{sW}, 1
    s_lshr_b32 s{sT2}, s{sW}, 1
    s_lshl_b32 s{sN1}, s{sT}, 13
    s_lshl_b32 s{sT3}, s{sT2}, 11
    s_add_u32 s{sN1}, s{sN1}, s{sT3}
    s_add_u32 s{sN1}, s{sN1}, {L_B}
    v_add_u32 v155, s{sN1}, v152
    v_add_u32 v153, s{sN1}, v153
    s_lshl_b32 s{sE1}, s{sWG}, 15
    s_lshl_b32 s{sT}, s{sT}, 14
    s_add_u32 s{sE1}, s{sE1}, s{sT}
    s_add_u32 s{sE1}, s{sE1}, s{sT3}
    s_add_u32 s{sE2}, s{sE1}, 8192
    s_add_u32 s{sE3}, s{sE1}, 4096''')

UNITS = {0: dict(tiles=[0, 3, -1, -2, -5, -8], keep=(0, 1),
                 own=[(0,0,1),(1,0,0),(2,0,0),(3,0,0),(3,3,1)],
                 C=[(0,-5,0),(1,-5,0),(2,-5,0),(3,-5,1),(0,-8,1)]),
         1: dict(tiles=[1, 2, -3, -4, -6, -7], keep=(2, 3),
                 own=[(1,1,1),(2,1,0),(3,1,0),(2,2,1),(3,2,0)],
                 C=[(0,-6,0),(1,-6,0),(2,-6,1),(0,-7,0),(1,-7,1)])}
for U in UNITS.values(): U['B'] = [(q, t, 0) for t in U['tiles'][2:4] for q in range(4)]
CT = [None]
def kf(t): return KF + 4*CT[0].index(t)
def vf(t, a): return VF + 8*CT[0].index(t) + 4*a
def qk(u, sb):
    q, t, m = u
    return f'{MFMA} {vr(sb,16)}, {vr(kf(t),4)}, {vr(QF+4*q,4)}, {vr(MK,16) if m else "0"}'
def pv(u, sb, a, first):
    q, t, m = u
    o = vr(OA+16*q, 16)
    return f'{MFMA} {o}, {vr(vf(t,a),4)}, {vr(sb+8*a,4)}, {"0" if first else o}'
def segment(units, started, pre_qk=None, pre_pv=None, mid=None):
    n = len(units)
    def QK(i):
        if pre_qk: pre_qk(units[i])
        A(qk(units[i], SB+16*(i & 1)))
    def PV(i, a):
        u = units[i]
        if pre_pv: pre_pv(u)
        first = (u[0] not in started)
        started.add(u[0])
        A(pv(u, SB+16*(i & 1), a, first))
    QK(0)
    if n > 1: QK(1)
    for i in range(n):
        S = SB + 16*(i & 1)
        e = lambda r: A(f'v_exp_f32 v{S+r}, v{S+r}')
        def c(j):
            d = S + j if j < 4 else S + 4 + j
            A(f'v_cvt_pk_bf16_f32 v{d}, v{S+2*j}, v{S+2*j+1}')
        if mid and i in mid: mid[i]()
        e(0); e(1)
        if i > 0:
            PV(i-1, 1)
            if i+1 < n: QK(i+1)
        for j in range(7):
            e(2*j+2); c(j); e(2*j+3)
            if j == 4: PV(i, 0)
        A('s_nop 0'); c(7)
    PV(n-1, 1)

def nb_setup():
    A(f'''s_and_b32 s{sT}, s{sW}, 3
    s_lshl_b32 s{sT2}, s{sT}, 12
    s_add_u32 s{sT2}, s{sT2}, {L_B}
    v_lshlrev_b32 v2, 4, v0
    v_add_u32 v7, s{sT2}, v2
    v_and_b32 v11, 15, v0
    v_lshrrev_b32 v12, 5, v0
    v_lshl_or_b32 v11, v12, 4, v11
    v_lshlrev_b32 v3, 4, v11
    v_add_u32 v8, s{sT2}, v3
    v_add_u32 v3, 4096, v3
    s_lshl_b32 s{sKB1}, s{sWG}, 2
    s_add_u32 s{sKB1}, s{sKB1}, s{sT}
    s_lshl_b32 s{sKB1}, s{sKB1}, 13
    s_sub_u32 s{sKB2}, s{sKB1}, {2*32*8192}
    s_sub_u32 s{sKB1}, s{sKB1}, {32*8192}
    s_lshl_b32 s{sOb}, s{sWG}, 14
    s_lshl_b32 s{sT2}, s{sT}, 10
    s_add_u32 s{sOb}, s{sOb}, s{sT2}
    s_add_u32 s{sOb}, s{sOb}, {WS_O}
    s_and_b32 s{sT}, s{sW}, 1
    s_lshl_b32 s{sT2}, s{sT}, 10
    s_sub_u32 s{sT2}, s{sFl}, s{sT2}
    s_sub_u32 s{sT2}, s{sT2}, 1024
    v_mov_b32 v4, s{sT2}
    s_min_u32 s{sT2}, s{sRB}, 2
    s_add_u32 s{sT2}, s{sT2}, 4
    s_cmp_lt_u32 s{sW}, s{sT2}
    s_cselect_b32 s{sPoll}, 1, 0
    s_lshl_b32 s{sPoll}, s{sPoll}, s{sT}
    s_cmp_lt_u32 s{sW}, 4
    s_cselect_b32 s{sPoll}, 0, s{sPoll}
    s_cmp_ge_u32 s{sRB}, 2
    s_cselect_b32 s{sNeed}, 3, 1
    v_lshrrev_b32 v1, 3, v0
    v_and_b32 v5, 7, v0
    v_bfe_u32 v6, v0, 4, 1
    v_lshlrev_b32 v6, 2, v6
    v_xor_b32 v5, v5, v6
    v_lshlrev_b32 v5, 4, v5
    v_lshl_add_u32 v1, v1, 10, v5
    s_lshl_b32 s{sWm}, s{sW}, 13
    s_add_u32 s{sWm}, s{sWm}, {L_WO}
    s_lshl_b32 s{sWg}, s{sW}, 16
    s_lshl_b32 s{sT}, s{sHG}, 7
    s_add_u32 s{sWg}, s{sWg}, s{sT}
    s_cmp_eq_u32 s{sRB}, 0
    s_cselect_b32 s{sEarly}, 1, 0
    s_mov_b32 s{sFB}, 0
    s_mul_i32 s{sT}, s{sW}, {XCH}
    s_add_u32 s{sT}, s{sT}, {L_X}
    v_add_u32 v5, s{sT}, v2
    v_lshl_add_u32 v10, v0, 2, s{sT}
    s_xor_b32 s{sT}, s{sW}, 4
    s_mul_i32 s{sT}, s{sT}, {XCH}
    s_add_u32 s{sT}, s{sT}, {L_X}
    v_add_u32 v6, s{sT}, v2
    v_lshl_add_u32 v11, v0, 2, s{sT}''')
    A(f'''s_andn2_b32 s{sN1}, s{sWG}, 7
    s_add_u32 s{sN1}, s{sN1}, s{sW}
    s_lshl_b32 s{sN1}, s{sN1}, 7
    s_add_u32 s{sN1}, s{sN1}, {WS_FL+64}
    v_mov_b32 v9, s{sN1}
    v_mov_b32 v12, 0''')

def wo_dma(j):
    A(f'''s_add_u32 m0, s{sWm}, {j*1024}
    s_add_u32 s{sT}, s{sWg}, {j*8192}
    buffer_load_dwordx4 v1, {srd(WO)}, s{sT} offen lds''')
def poll_issue(va, tag):
    A(f'''s_cmp_eq_u32 s{sPoll}, 0
    s_cbranch_scc1 L_pi{tag}
    s_mov_b64 exec, 1
    buffer_load_dword v15, v{va}, {srd(WS)}, 0 offen sc1
    s_mov_b64 exec, -1
    L_pi{tag}:''')
def poll_check(rdy, tag, wait):
    A(f's_cmp_eq_u32 s{sPoll}, 0\ns_cbranch_scc1 L_pc{tag}')
    wait()
    A(f'''v_readfirstlane_b32 s{sT}, v15
    v_mov_b32 v14, s{sPoll}
    s_cmp_lg_u32 s{sT}, 1
    s_cbranch_scc1 L_pc{tag}
    s_mov_b64 exec, 1
    ds_or_b32 v12, v14 offset:{rdy}
    s_mov_b64 exec, -1
    s_mov_b32 s{sPoll}, 0
    L_pc{tag}:
    ds_read_b32 v14, v12 offset:{rdy}
    s_waitcnt lgkmcnt(0)
    v_readfirstlane_b32 s{sT}, v14''')
def nb_loads(ty, tag):
    CT[0] = UNITS[ty]['tiles']
    def ld(t):
        base = sKB1 if t >= -4 else sKB2
        T = t % 4
        A(f'buffer_load_dwordx4 {vr(kf(t),4)}, v2, {srd(WS)}, s{base} offen offset:{T*1024}{LDSC}')
        A(f's_mov_b64 exec, s[{sHalf}:{sHalf+1}]')
        for a in range(2):
            A(f'buffer_load_dwordx4 {vr(vf(t,a),4)}, v3, {srd(WS)}, s{base} offen offset:{T*1024+a*512}{LDSC}')
        A('s_mov_b64 exec, -1')
    for t in CT[0][2:4]: ld(t)
    A(f's_cmp_eq_u32 s{sRB}, 1\ns_cbranch_scc1 L_nl{ty}{tag}')
    for t in CT[0][4:6]: ld(t)
    A(f'L_nl{ty}{tag}:\ns_mov_b32 s{sEarly}, 1')
def kv_check(ty, tag):
    if ty == 1:
        poll_check(R_KV, f'k{tag}', lambda: A('s_waitcnt vmcnt(0)'))
        poll_issue(4, f'k{tag}')
    else:
        A(f'ds_read_b32 v14, v12 offset:{R_KV}\ns_waitcnt lgkmcnt(0)\nv_readfirstlane_b32 s{sT}, v14')
    A(f's_and_b32 s{sT}, s{sT}, s{sNeed}')
def try_load(ty, tag):
    A(f's_cmp_lg_u32 s{sEarly}, 0\ns_cbranch_scc1 L_tl{ty}{tag}')
    kv_check(ty, tag)
    A(f's_cmp_lg_u32 s{sT}, s{sNeed}\ns_cbranch_scc1 L_tl{ty}{tag}')
    nb_loads(ty, tag)
    A(f'L_tl{ty}{tag}:')

def publish(sa, cnt, last, tag, rdy=None):
    A(f'''v_mov_b32 v14, 1
    s_mov_b64 exec, 1
    s_waitcnt vmcnt(0)
    ds_add_rtn_u32 v13, v12, v14 offset:{cnt}
    s_waitcnt lgkmcnt(0)
    v_readfirstlane_b32 s{sT}, v13
    s_cmp_lg_u32 s{sT}, {last}
    s_cbranch_scc1 L_pub{tag}
    buffer_store_dword v14, v12, {srd(WS)}, s{sa} offen sc1''')
    if rdy:
        A(f's_lshl_b32 s{sT}, s{sHG}, 2\ns_lshl_b32 s{sT}, 1, s{sT}\nv_mov_b32 v13, s{sT}\nds_or_b32 v12, v13 offset:{rdy}')
    A(f'L_pub{tag}:\ns_mov_b64 exec, -1')

RG = SB
def attention(ty):
    U = UNITS[ty]; CT[0] = U['tiles']
    own = U['tiles'][:2]
    for q in range(4): A(f'ds_read_b128 {vr(QF+4*q,4)}, v7 offset:{32768+q*1024}')
    for t in own: A(f'ds_read_b128 {vr(kf(t),4)}, v7 offset:{t*1024}')
    for g in range(4): A(f'ds_read_b128 {vr(MK+4*g,4)}, v2 offset:{L_M+g*1024}')
    A(f's_mov_b64 exec, s[{sHalf}:{sHalf+1}]')
    for t in own:
        for a in range(2): A(f'ds_read_b128 {vr(vf(t,a),4)}, v8 offset:{16384+t*1024+a*512}')
    A('s_mov_b64 exec, -1')
    if ty == 0:
        publish(sFl, C_KV, 3, 'k')
    A('s_waitcnt lgkmcnt(4)')
    started = set() if ty == 0 else {0}
    done = [False]
    def pre_pv(u):
        if not done[0]: A('s_waitcnt lgkmcnt(0)'); done[0] = True
    segment(U['own'], started, pre_pv=pre_pv, mid={(3 if ty == 0 else 2): (lambda: try_load(ty, 'm'))})
    stamp(4)
    Lfin = f'L_fin{ty}'
    A(f'''s_cmp_lg_u32 s{sEarly}, 0
    s_cbranch_scc1 L_have{ty}
    s_mov_b32 s{sSpin}, 0
    L_pkv{ty}:''')
    kv_check(ty, f'b{ty}')
    A(f'''s_cmp_eq_u32 s{sT}, s{sNeed}
    s_cbranch_scc1 L_pkv{ty}_ok
    s_add_u32 s{sSpin}, s{sSpin}, 1
    s_sleep {SLP}
    s_cmp_lt_u32 s{sSpin}, 0x40000
    s_cbranch_scc1 L_pkv{ty}
    L_pkv{ty}_ok:''')
    nb_loads(ty, 'b')
    A(f'L_have{ty}:')
    stamp(5)
    A(f's_cmp_eq_u32 s{sRB}, 0\ns_cbranch_scc1 L_z{ty}')
    LB = f'L_B{ty}'
    nd = [0]
    def dm(j):
        def f(): wo_dma(j); nd[0] += 1
        return f
    A(f's_cmp_eq_u32 s{sRB}, 1\ns_cbranch_scc1 {LB}_only')
    def mk_wait(order):
        seen = set()
        def w(u):
            t = u[1]
            if t not in seen:
                seen.add(t)
                A(f's_waitcnt vmcnt({3*(len(order)-1-order.index(t))+nd[0]})')
        return w
    for r in range(16): A(f'v_sub_f32 v{MK+r}, {f2u(-BIG)}, v{MK+r}')
    segment(U['B'] + U['C'], set(started), pre_qk=mk_wait(U['tiles'][2:6]), mid={i+1: dm(i) for i in range(8)})
    A(f's_branch {Lfin}\nL_z{ty}:')
    for j in range(8): wo_dma(j)
    A(f's_branch {Lfin}')
    nd[0] = 0
    A(f'{LB}_only:')
    segment(U['B'], set(started), pre_qk=mk_wait(U['tiles'][2:4]), mid={i: dm(i) for i in range(8)})
    A(f'{Lfin}:')
    A('s_nop 10')
    stamp(6)
    send = [q for q in range(4) if q not in U['keep']]
    for a, q in enumerate(send):
        o = OA + 16*q
        A(f'ds_write_b128 v5, {vr(o,4)} offset:{a*2048}\nds_write_b128 v5, {vr(o+4,4)} offset:{a*2048+1024}')
        A(f'ds_write_b32 v10, v{o+8} offset:{4096+a*256}')
    A('s_waitcnt vmcnt(0) lgkmcnt(0)')
    if ST2: stamp(1)
    A('s_barrier')
    if ST2: stamp(2)
    A(f's_lshl_b32 s{sT}, s{sW}, 2\ns_lshl_b32 s{sPoll}, 1, s{sT}\ns_cmp_eq_u32 s{sW}, s{sHG}\ns_cselect_b32 s{sPoll}, 0, s{sPoll}')
    poll_issue(9, f'o{ty}')
    for a in range(2):
        A(f'ds_read_b32 v{RG+16+a}, v11 offset:{4096+a*256}')
        A(f'ds_read_b128 {vr(RG+8*a,4)}, v6 offset:{a*2048}\nds_read_b128 {vr(RG+8*a+4,4)}, v6 offset:{a*2048+1024}')
    for a, q in enumerate(U['keep']):
        o = OA + 16*q
        A(f's_waitcnt lgkmcnt({3-3*a})')
        A(f'v_add_f32 v{RG+16+a}, v{RG+16+a}, v{o+8}')
        for j in range(8): A(f'v_add_f32 v{RG+8*a+j}, v{RG+8*a+j}, v{o+j}')
    if ty == 1:
        for j in range(8): A(f'v_mov_b32 v{QF+j}, v{QF+8+j}')

def finalize():
    A('L_final:')
    for a in range(2):
        o = RG + 8*a; l = RG + 16 + a; m = f's[{70 if a else 58}:{71 if a else 59}]'
        A(f'v_rcp_f32 v{l+2}, v{l}')
        A(f'v_cmp_lt_f32 {m}, s{sLo}, v{l}\nv_cmp_gt_f32 vcc, s{sHi}, v{l}\ns_and_b64 {m}, {m}, vcc')
        for j in range(8): A(f'v_mul_f32 v{o+j}, v{o+j}, v{l+2}')
        for j in range(4): A(f'v_cvt_pk_bf16_f32 v{PK+4*a+j}, v{o+2*j}, v{o+2*j+1}')
        A(f'v_add_f32 v{l+4}, |v{o}|, |v{o+1}|')
        for j in range(2, 8): A(f'v_add_f32 v{l+4}, v{l+4}, |v{o+j}|')
    A(f'''v_add_f32 v{RG+20}, v{RG+20}, v{RG+21}
    s_and_b64 s[58:59], s[58:59], s[70:71]
    s_mov_b32 s{sT}, 0x7f800000
    v_cmp_gt_f32 vcc, s{sT}, v{RG+20}
    s_and_b64 s[58:59], s[58:59], vcc
    s_cmp_eq_u64 s[58:59], -1
    s_cselect_b32 s{sT}, {0 if FORCE_FB else 1}, 0
    s_or_b32 s{sT}, s{sT}, s{sFB}
    s_cbranch_scc0 L_fb
    s_lshr_b32 s{sT}, s{sW}, 2
    s_lshl_b32 s{sT}, s{sT}, 13
    s_add_u32 s{sT}, s{sT}, s{sOb}
    s_add_u32 s{sT2}, s{sT}, 4096''')
    for a in range(2):
        A(f'buffer_store_dwordx4 {vr(PK+4*a,4)}, v2, {srd(WS)}, s{sT2 if a else sT} offen sc1')

    if ST2: stamp(3)

def fallback():
    A('L_fb:')
    sG, sG0, sQ, sA, sBv, sAd = 42, 43, 44, 45, 46, 47
    S = OA + 32; CB = OA + 48; MX = 248
    for g in range(4): A(f'ds_read_b128 {vr(MK+4*g,4)}, v2 offset:{L_M+g*1024}')
    A(f'''s_mov_b32 s{sFB}, 1
    s_lshr_b32 s{sQ}, s{sW}, 2
    s_lshl_b32 s{sQ}, s{sQ}, 1
    s_lshl_b32 s{sT}, s{sRB}, 2
    s_add_u32 s{sQ}, s{sQ}, s{sT}
    s_max_u32 s{sG0}, s{sQ}, 8
    s_sub_u32 s{sG0}, s{sG0}, 8
    v_mov_b32 v{MX}, 0xff800000
    v_mov_b32 v{MX+1}, 0xff800000''')
    for r in range(32): A(f'v_mov_b32 v{OA+r}, 0')
    A('s_waitcnt lgkmcnt(0)')
    for ps in range(2):
        A(f'''s_mov_b32 s{sG}, s{sG0}
        L_fbl{ps}:
        s_lshr_b32 s{sT}, s{sG}, 2
        s_sub_u32 s{sT}, s{sT}, s{sRB}
        s_add_u32 s{sT}, s{sT}, 2
        s_lshl_b32 s{sT}, s{sT}, 18
        s_add_u32 s{sAd}, s{sKB2}, s{sT}
        s_and_b32 s{sT}, s{sG}, 3
        s_lshl_b32 s{sT}, s{sT}, 10
        s_add_u32 s{sAd}, s{sAd}, s{sT}
        buffer_load_dwordx4 {vr(KF,4)}, v2, {srd(WS)}, s{sAd} offen sc1
        s_mov_b64 exec, s[{sHalf}:{sHalf+1}]
        buffer_load_dwordx4 {vr(VF,4)}, v3, {srd(WS)}, s{sAd} offen sc1
        buffer_load_dwordx4 {vr(VF+4,4)}, v3, {srd(WS)}, s{sAd} offen offset:512 sc1
        s_mov_b64 exec, -1
        s_waitcnt vmcnt(0)''')
        for a in range(2):
            A(f'''s_sub_u32 s{sT}, s{sQ}, s{sG}
            s_add_u32 s{sT}, s{sT}, {a}
            s_cmp_eq_u32 s{sT}, 0
            s_cselect_b32 s{sA}, 1.0, 0
            s_cmp_eq_u32 s{sT}, 8
            s_cselect_b32 s{sA}, -1.0, s{sA}
            s_cmp_ge_u32 s{sT}, 8
            s_cselect_b32 s{sBv}, {f2u(-BIG)}, 0''')
            A(f'v_mov_b32 v14, s{sBv}')
            for r in range(16): A(f'v_fma_f32 v{CB+r}, v{MK+r}, s{sA}, v14')
            if ps:
                for r in range(16): A(f'v_sub_f32 v{CB+r}, v{CB+r}, v{MX+a}')
            A(f'{MFMA} {vr(S,16)}, {vr(KF,4)}, {vr(QF+4*a,4)}, {vr(CB,16)}')
            if ps == 0:
                for j in range(8): A(f'v_max3_f32 v{MX+a}, v{S+2*j}, v{S+2*j+1}, v{MX+a}')
            else:
                for r in range(16): A(f'v_exp_f32 v{S+r}, v{S+r}')
                for j in range(8): A(f'v_cvt_pk_bf16_f32 v{S+j if j < 4 else S+4+j}, v{S+2*j}, v{S+2*j+1}')
                for h in range(2):
                    A(f'{MFMA} {vr(OA+16*a,16)}, {vr(VF+4*h,4)}, {vr(S+8*h,4)}, {vr(OA+16*a,16)}')
                A('s_nop 7')
        A(f'''s_add_u32 s{sG}, s{sG}, 1
        s_add_u32 s{sT}, s{sQ}, 1
        s_cmp_le_u32 s{sG}, s{sT}
        s_cbranch_scc1 L_fbl{ps}''')
        if ps == 0:
            for a in range(2):
                A(f'v_mov_b32 v14, v{MX+a}\ns_nop 1\nv_permlane32_swap_b32 v{MX+a}, v14\nv_max_f32 v{MX+a}, v{MX+a}, v14')
    A('s_nop 7')
    for a in range(2):
        for j in range(8): A(f'v_mov_b32 v{RG+8*a+j}, v{OA+16*a+j}')
        A(f'v_mov_b32 v{RG+16+a}, v{OA+16*a+8}')
    A('s_branch L_final')

WF = 16; OF = 144; AC3 = 208
def wait_chain(sreg, nmax, per, extra, tag):
    for n in range(nmax, 0, -1):
        A(f's_cmp_ge_u32 s{sreg}, {n}\ns_cbranch_scc1 L_wc{tag}_{n}')
    A(f's_waitcnt vmcnt({extra})')
    for n in range(1, nmax+1):
        A(f'L_wc{tag}_{n}:\ns_waitcnt vmcnt({per*n+extra})')
def wait_dyn(_):
    A(f's_bcnt1_i32_b32 s{sT2}, s{sNew}')
    wait_chain(sT2, 4, 4, 0, 'f')
def o_issue(tag, wait):
    poll_check(R_O, f'o{tag}', wait)
    A(f'''s_and_b32 s{sT2}, s{sW}, 4
    s_lshl_b32 s{sT2}, s{sT2}, 2
    s_lshr_b32 s{sT}, s{sT}, s{sT2}
    s_cmp_ge_u32 s{sSpin}, 0x40000
    s_cselect_b32 s{sT}, -1, s{sT}
    s_and_b32 s{sT}, s{sT}, 0x1111
    s_andn2_b32 s{sNew}, s{sT}, s{sIss}
    s_or_b32 s{sIss}, s{sIss}, s{sNew}''')
    if tag == 'b': A(f's_or_b32 s{sT}, s{sNew}, s{sM}\ns_cbranch_scc1 L_oi{tag}s\ns_sleep {SLP}\nL_oi{tag}s:')
    poll_issue(9, f'o{tag}')
    for g in range(4):
        A(f's_bitcmp0_b32 s{sNew}, {4*g}\ns_cbranch_scc1 L_oi{tag}{g}\ns_add_u32 s{sT}, s{sN2}, {g*16384}')
        for j in range(4):
            A(f'buffer_load_dwordx4 {vr(OF+16*g+4*j,4)}, v2, {srd(WS)}, s{sT} offen offset:{j*1024}{LDSC}')
        A(f'L_oi{tag}{g}:')
def phase3():
    A(f'''s_andn2_b32 s{sN2}, s{sWG}, 7
    s_and_b32 s{sT3}, s{sW}, 4
    s_add_u32 s{sN2}, s{sN2}, s{sT3}
    s_lshl_b32 s{sN2}, s{sN2}, 14
    s_and_b32 s{sT3}, s{sW}, 3
    s_lshl_b32 s{sT3}, s{sT3}, 12
    s_add_u32 s{sN2}, s{sN2}, s{sT3}
    s_add_u32 s{sN2}, s{sN2}, {WS_O}
    s_mov_b32 s{sIss}, 0
    s_mov_b32 s{sSpin}, 0''')
    A(f'''v_bfe_u32 v3, v0, 2, 2
    v_lshrrev_b32 v8, 5, v0
    v_lshl_add_u32 v3, v8, 2, v3
    v_lshlrev_b32 v11, 7, v3
    v_bfe_u32 v3, v0, 4, 1
    v_lshlrev_b32 v3, 1, v3
    v_bfe_u32 v10, v0, 1, 1
    v_or_b32 v3, v3, v10
    v_bfe_u32 v10, v0, 3, 1
    v_lshl_or_b32 v3, v10, 2, v3
    v_lshl_add_u32 v11, v3, 4, v11
    v_and_b32 v3, 1, v0
    v_lshl_add_u32 v11, v3, 3, v11
    s_lshr_b32 s{sT3}, s{sW}, 2
    s_lshl_b32 s{sT3}, s{sT3}, 15
    s_add_u32 s{sT3}, s{sT3}, {L_WO}
    v_add_u32 v11, s{sT3}, v11
    v_xor_b32 v7, 64, v11''')
    def wfr(lo, hi):
        for i in range(lo, hi):
            for nt in range(2):
                for j in range(2):
                    A(f'ds_read_b64_tr_b16 {vr(WF+8*i+4*nt+2*j,2)}, v{7 if nt else 11} offset:{i*2048+j*1024}')
    for r in range(32): A(f'v_mov_b32 v{AC3+r}, 0')
    A(f'''v_and_b32 v10, 31, v0
    v_lshlrev_b32 v10, 11, v10
    v_lshl_add_u32 v10, v8, 4, v10
    s_and_b32 s{sT}, s{sW}, 3
    s_lshl_b32 s{sN1}, s{sRB}, 2
    s_add_u32 s{sN1}, s{sN1}, s{sT}
    s_lshl_b32 s{sN1}, s{sN1}, 16
    s_lshl_b32 s{sT}, s{sB}, 10
    s_add_u32 s{sN1}, s{sN1}, s{sT}
    s_lshl_b32 s{sT}, s{sHG}, 7
    s_add_u32 s{sN1}, s{sN1}, s{sT}
    s_and_b32 s{sT}, s{sW}, 4
    s_lshl_b32 s{sT}, s{sT}, 4
    s_add_u32 s{sN1}, s{sN1}, s{sT}''')
    if ST2: stamp(4)
    publish(sFo, C_O, 7, 'o', R_O)
    stamp(7)
    o_issue('a', lambda: None)
    stamp(8)
    wfr(0, 16)
    A(f'''s_waitcnt lgkmcnt(0)
    L_p3l:
    s_mov_b32 s{sM}, s{sNew}
    s_mov_b32 s{sL}, 0
    s_mov_b32 s{sNew}, 0
    s_cmp_eq_u32 s{sIss}, 0x1111
    s_cbranch_scc1 L_p3m
    s_add_u32 s{sSpin}, s{sSpin}, 1
    s_bcnt1_i32_b32 s{sT2}, s{sM}''')
    o_issue('b', lambda: wait_chain(sT2, 3, 4, 0, 'p'))
    stamp(8)
    A(f's_bcnt1_i32_b32 s{sL}, s{sNew}\nL_p3m:')
    for g in range(4):
        A(f's_bitcmp0_b32 s{sM}, {4*g}\ns_cbranch_scc1 L_om{g}')
        A(f's_lshr_b32 s{sT}, s{sM}, {4*g+4}\ns_bcnt1_i32_b32 s{sT2}, s{sT}\ns_add_u32 s{sT2}, s{sT2}, s{sL}')
        wait_chain(sT2, 3, 4, 0, f'm{g}')
        for j in range(4):
            for nt in range(2):
                acc = vr(AC3+16*nt, 16); i = 4*g + j
                A(f'{MFMA} {acc}, {vr(WF+8*i+4*nt,4)}, {vr(OF+4*i,4)}, {acc}')
        A(f'L_om{g}:')
    A(f'''s_cmp_lg_u32 s{sIss}, 0x1111
    s_cbranch_scc1 L_p3l
    s_cmp_lg_u32 s{sNew}, 0
    s_cbranch_scc1 L_p3l''')
    A(f's_lshr_b32 s{sT2}, s{sW}, 2\ns_nop 7\ns_nop 3')
    stamp(9)
    for kh in range(2):
        if kh == 0: A(f's_cmp_lg_u32 s{sT2}, 0\ns_cbranch_scc1 L_x1')
        else: A('L_x1:')
        send = AC3 + 16*(1-kh); keep = AC3 + 16*kh
        for g in range(4): A(f'ds_write_b128 v6, {vr(send+4*g,4)} offset:{g*1024}')
        A('s_waitcnt lgkmcnt(0)\ns_barrier')
        for g in range(4): A(f'ds_read_b128 {vr(16+4*g,4)}, v5 offset:{g*1024}')
        for g in range(4):
            A(f's_waitcnt lgkmcnt({3-g})')
            for r in range(4): A(f'v_add_f32 v{keep+4*g+r}, v{keep+4*g+r}, v{16+4*g+r}')
            for j in range(2): A(f'v_cvt_pk_bf16_f32 v{32+2*g+j}, v{keep+4*g+2*j}, v{keep+4*g+2*j+1}')
        if kh == 0: A('s_branch L_x2')
    A('L_x2:\ns_nop 1')
    for p in range(2):
        A(f'v_permlane32_swap_b32 v{32+4*p}, v{34+4*p}\nv_permlane32_swap_b32 v{33+4*p}, v{35+4*p}')
        A(f'buffer_store_dwordx4 {vr(32+4*p,4)}, v10, {srd(OUT)}, s{sN1} offen offset:{32*p}' + ['', ' sc1', ' nt', ' sc0 sc1', ' sc1 nt'][OST])
    if PROF:
        A('s_waitcnt vmcnt(0)')
        stamp(10)
        A(f'''s_lshl_b32 s{sT}, s2, 3
        s_add_u32 s{sT}, s{sT}, s{sW}
        s_lshl_b32 s{sT}, s{sT}, 7
        s_add_u32 s{sT}, s{sT}, {WS_ST}
        v_mov_b32 v1, 0''')
        for i in range(11):
            A(f'v_mov_b32 v2, s{sST+2*i}\nbuffer_store_dword v2, v1, {srd(WS)}, s{sT} offen offset:{4*i}')
        A(f'v_mov_b32 v2, s100\nbuffer_store_dword v2, v1, {srd(WS)}, s{sT} offen offset:60')
        A('s_mov_b32 s99, s100\ns_memrealtime s[100:101]\ns_waitcnt lgkmcnt(0)')
        A(f'v_mov_b32 v2, s100\nbuffer_store_dword v2, v1, {srd(WS)}, s{sT} offen offset:56')
    if DBGP:
        A(f'''s_mov_b64 exec, 1
        v_mov_b32 v2, s100
        buffer_atomic_umax v2, v1, {srd(DBG)}, 0 offen offset:4
        s_not_b32 s{sT}, s99
        v_mov_b32 v3, s{sT}
        buffer_atomic_umax v3, v1, {srd(DBG)}, 0 offen offset:8
        s_cmp_lg_u32 s2, 77
        s_cbranch_scc1 L_end
        s_cmp_eq_u32 s{sW}, 4
        s_cbranch_scc1 L_dbg4
        s_cmp_lg_u32 s{sW}, 0
        s_cbranch_scc1 L_end''')
        for i in range(1, 11):
            A(f's_sub_u32 s{sT}, s{sST+2*i}, s{sST}\nv_mov_b32 v2, s{sT}\nbuffer_store_dword v2, v1, {srd(DBG)}, 0 offen offset:{8+4*i}')
        A('s_branch L_end\nL_dbg4:')
        for k, i in enumerate((5, 6, 8)):
            A(f's_sub_u32 s{sT}, s{sST+2*i}, s{sST}\nv_mov_b32 v2, s{sT}\nbuffer_store_dword v2, v1, {srd(DBG)}, 0 offen offset:{52+4*k}')
    A('L_end:\ns_endpgm')

prologue()
compute_p1()
attention(0)
A('s_branch L_final')
loader_p1()
stamp(3)
attention(1)
finalize()
phase3()
fallback()
body, nadd = A.finish()
hdr = open('cdna_kernels/' + NAME + '.s.ref').read().split('; Override launch')[0]
out = hdr + f'''; @launch grid=(256,1,1) block=(512,1,1) lds=163840
.amdgcn_target "amdgcn-amd-amdhsa--gfx950"
.text
.globl {NAME}_kernel
.p2align 8
.type {NAME}_kernel,@function
{NAME}_kernel:
{body}.section .rodata,"a"
.p2align 6
.amdhsa_kernel {NAME}_kernel
  .amdhsa_next_free_vgpr 256
  .amdhsa_next_free_sgpr 102
  .amdhsa_accum_offset 256
  .amdhsa_group_segment_fixed_size 0
  .amdhsa_kernarg_size 72
  .amdhsa_user_sgpr_count 2
  .amdhsa_user_sgpr_kernarg_segment_ptr 1
  .amdhsa_system_sgpr_workgroup_id_x 1
.end_amdhsa_kernel
'''
dst = [a for a in sys.argv[1:] if not a.startswith('--')]
open(dst[0] if dst else 'cdna_kernels/' + NAME + '.s', 'w').write(out)
print('nops inserted', nadd, 'lines', body.count('\n'))
```

```python
import sys, struct
from asmlib import Asm
NAME = 'concat_heads__sliding_block__sliding_block__prompt'
DBGP = '--dbg' in sys.argv
PROF = '--prof' in sys.argv or DBGP
def opt(name, d):
    for a in sys.argv:
        if a.startswith('--'+name+'='): return int(a.split('=')[1])
    return d
DEP = opt('dep', 2); ROT = opt('rot', 0); PF = opt('pf', 1); LDSC = ' sc1' if opt('ldsc', 1) else ''
FORCE_FB = '--force-fb' in sys.argv
def f2u(x): return struct.unpack('<I', struct.pack('<f', x))[0]
A = Asm()
SLOT = 40960
WS_O = 8 << 20; WS_FL = 12 << 20; WS_ST = 13 << 20; WS_SZ = 14 << 20
RING0 = 40960; L_M = 0; L_CNT = 4096; L_WO = 4608; L_B = 70144; L_X = 122880
CSC = 0.25 * 1.4426950408889634
BIG = 1e30
sW = 3; X, Wq, WO, WS, OUT, DBG = 4, 8, 12, 16, 20, 24
sB, sRB, sHG, sWG = 28, 29, 30, 31
sXo, sWo, sSl, sIt, sT, sT2, sN1, sN2 = 50, 51, 52, 53, 54, 55, 56, 57
sHalf = 60; sC = 62; sSpin = 63; sFl = 64; sOb = 65; sT3 = 66; sLo = 67; sHi = 68
sST = 72
nst = [0]
def srd(i): return f's[{i}:{i+3}]'
def vr(a, n): return f'v[{a}:{a+n-1}]'
def stamp(idx):
    if PROF:
        A(f's_memtime s[{sST+2*idx}:{sST+2*idx+1}]\ns_waitcnt lgkmcnt(0)')
QF = 16; OA = 32; SB = 96; MK = 128; KF = 144; VF = 168; PK = 240
sEarly, sKB1, sKB2, sIss, sNew, sFB = 32, 33, 34, 35, 36, 37
sE1, sE2, sE3 = 39, 40, 41
sFo, sWm, sWg = 38, 48, 49
sM, sL = 42, 43
sPoll, sNeed = 50, 51
C_KV, C_O, R_KV, R_O = L_CNT+32, L_CNT+36, L_CNT+48, L_CNT+52
SLP = opt('slp', 2)
XCH = 4608
WARM = opt('warm', 0)
WOE = opt('woe', 0); WOS = opt('wos', 4); CU = opt('cu', 2)
ST2 = opt('st2', 0)
OST = opt('ost', 0)
ACC = 16; FR = 112
MFMA = 'v_mfma_f32_32x32x16_bf16'

def prologue():
    A(f'''s_cmp_ge_u32 s2, 256
    s_cbranch_scc1 L_end
    s_load_dwordx8 s[32:39], s[0:1], 0
    s_load_dwordx8 s[40:47], s[0:1], 32
    s_load_dwordx2 s[48:49], s[0:1], 64''')
    if PROF: A(f's_memrealtime s[100:101]')
    A(f'''v_lshrrev_b32 v1, 6, v0
    v_and_b32 v0, 63, v0
    s_and_b32 s{sT}, s2, 7
    v_readfirstlane_b32 s{sW}, v1
    s_lshr_b32 s{sT2}, s2, 3
    s_lshr_b32 s{sB}, s{sT}, 2
    s_and_b32 s{sT}, s{sT}, 3
    s_lshl_b32 s{sT}, s{sT}, 2
    s_lshr_b32 s{sRB}, s{sT2}, 3
    s_add_u32 s{sRB}, s{sRB}, s{sT}
    s_and_b32 s{sHG}, s{sT2}, 7
    s_lshl_b32 s{sWG}, s{sB}, 4
    s_add_u32 s{sWG}, s{sWG}, s{sRB}
    s_lshl_b32 s{sWG}, s{sWG}, 3
    s_add_u32 s{sWG}, s{sWG}, s{sHG}
    s_mov_b32 s{X+2}, 0x200000
    s_mov_b32 s{X+3}, 0x20000
    s_mov_b32 s{Wq+2}, 0x180000
    s_mov_b32 s{Wq+3}, 0x20000
    s_mov_b32 s{WO+2}, 0x80000
    s_mov_b32 s{WO+3}, 0x20000
    s_mov_b32 s{WS+2}, {WS_SZ}
    s_mov_b32 s{WS+3}, 0x20000
    s_mov_b32 s{OUT+2}, 0x400000
    s_mov_b32 s{OUT+3}, 0x20000
    s_mov_b32 s{DBG+2}, 256
    s_mov_b32 s{DBG+3}, 0x20000
    s_mov_b32 s{sHalf}, 0xffff
    s_mov_b32 s{sHalf+1}, 0xffff
    s_cmp_eq_u32 s{sB}, 0
    s_waitcnt lgkmcnt(0)
    s_cselect_b32 s{X}, s32, s38
    s_cselect_b32 s{X+1}, s33, s39
    s_cselect_b32 s{Wq}, s34, s40
    s_cselect_b32 s{Wq+1}, s35, s41
    s_cselect_b32 s{WO}, s36, s42
    s_cselect_b32 s{WO+1}, s37, s43
    s_mov_b32 s{OUT}, s44
    s_mov_b32 s{OUT+1}, s45
    s_mov_b32 s{DBG}, s46
    s_mov_b32 s{DBG+1}, s47
    s_mov_b32 s{WS}, s48
    s_mov_b32 s{WS+1}, s49''')
    stamp(0)
    A(f'''s_cmp_ge_u32 s{sW}, 4
    s_cbranch_scc1 L_loader''')

def preset_ones():
    A(f'v_mov_b32 v1, 0x3f803f80')
    for i in range(48): A(f'v_mov_b32 v{VF+i}, v1')

def common_consts():
    A(f'''s_lshl_b32 s{sFl}, s{sWG}, 7
    s_add_u32 s{sFl}, s{sFl}, {WS_FL}
    s_add_u32 s{sFo}, s{sFl}, 64
    s_mov_b32 s{sC}, {f2u(CSC)}
    s_mov_b32 s{sLo}, {f2u(2.0**-40)}
    s_mov_b32 s{sHi}, {f2u(2.0**40)}''')

def lds_min4(dst_s, vt, addr_v, off, wait=True):
    A(f'ds_read_b128 {vr(vt,4)}, v{addr_v} offset:{off}')
    A('s_waitcnt lgkmcnt(0)')
    min4(dst_s, vt)
def min4(dst_s, vt):
    A(f'v_min3_u32 v{vt}, v{vt}, v{vt+1}, v{vt+2}\nv_min_u32 v{vt}, v{vt}, v{vt+3}\nv_readfirstlane_b32 s{dst_s}, v{vt}')

def loader_p1():
    A('L_loader:')
    A(f"""v_lshrrev_b32 v6, 3, v0
    v_and_b32 v7, 7, v0
    v_lshrrev_b32 v8, 4, v0
    v_xor_b32 v9, v7, v8
    v_lshlrev_b32 v9, 4, v9
    v_lshl_add_u32 v2, v6, 10, v9
    v_xor_b32 v3, 64, v2
    v_and_b32 v8, 1, v8
    v_lshlrev_b32 v8, 2, v8
    v_xor_b32 v9, v7, v8
    v_lshlrev_b32 v9, 4, v9
    v_mul_u32_u24 v4, 3072, v6
    v_add_u32 v4, v4, v9
    v_lshl_add_u32 v5, v6, 10, v9
    s_sub_u32 s{sT}, s{sW}, 4
    s_lshl_b32 s{sXo}, s{sRB}, 17
    s_lshl_b32 s{sT2}, s{sT}, 15
    s_add_u32 s{sXo}, s{sXo}, s{sT2}
    s_mul_i32 s{sWo}, s{sT}, {16*3072}
    s_lshl_b32 s{sT2}, s{sHG}, 7
    s_add_u32 s{sWo}, s{sWo}, s{sT2}
    s_lshl_b32 s{sN1}, s{sT}, 12
    s_add_u32 s{sN1}, s{sN1}, {RING0+SLOT}
    s_lshl_b32 s{sN2}, s{sT}, 11
    s_add_u32 s{sN2}, s{sN2}, {16384+RING0+SLOT}
    s_lshl_b32 s{sT}, s{sT}, 2
    v_mov_b32 v10, 0
    v_mov_b32 v11, s{sT}
    s_mov_b32 s{sIt}, 0
    s_mov_b32 s69, 1
    L_ld_loop:""")
    for j in range(4):
        A(f"""s_add_u32 m0, s{sN1}, {j*1024}
        s_add_u32 s{sT}, s{sXo}, {j*8192}
        buffer_load_dwordx4 v{2+(j&1)}, {srd(X)}, s{sT} offen lds""")
    for seg in range(3):
        for q in range(2):
            A(f"""s_add_u32 m0, s{sN2}, {seg*8192+q*1024}
            s_add_u32 s{sT}, s{sWo}, {seg*1024+q*8*3072}
            buffer_load_dwordx4 v4, {srd(Wq)}, s{sT} offen lds""")
    A(f"""s_add_u32 s{sXo}, s{sXo}, 128
    s_add_u32 s{sWo}, s{sWo}, {64*3072}
    s_add_u32 s69, s69, 1
    s_mov_b32 s{sT}, {SLOT}
    s_cmp_eq_u32 s69, 3
    s_cselect_b32 s{sT}, {-2*SLOT & 0xffffffff}, s{sT}
    s_cselect_b32 s69, 0, s69
    s_add_u32 s{sN1}, s{sN1}, s{sT}
    s_add_u32 s{sN2}, s{sN2}, s{sT}
    s_cmp_lg_u32 s{sIt}, 0
    s_cbranch_scc1 L_ld_sig
    s_barrier
    s_mov_b32 s{sIt}, 1
    s_branch L_ld_loop
    L_ld_sig:
    v_mov_b32 v12, s{sIt}
    s_add_u32 s{sIt}, s{sIt}, 1
    s_waitcnt vmcnt(10)
    ds_write_b32 v11, v12 offset:{L_CNT}
    s_cmp_lt_u32 s{sIt}, 3
    s_cbranch_scc1 L_ld_loop
    s_cmp_eq_u32 s{sIt}, 8
    s_cbranch_scc1 L_ld_done
    s_sub_u32 s{sT3}, s{sIt}, 2""")
    lds_min4(sT2, 16, 10, L_CNT+16)
    A(f"""s_cmp_ge_u32 s{sT2}, s{sT3}
    s_cbranch_scc1 L_ld_loop
    v_mov_b32 v12, s{sIt}
    s_waitcnt vmcnt(0)
    ds_write_b32 v11, v12 offset:{L_CNT}
    L_ld_spin:""")
    lds_min4(sT2, 16, 10, L_CNT+16)
    A(f"""s_cmp_ge_u32 s{sT2}, s{sT3}
    s_cbranch_scc1 L_ld_loop
    s_branch L_ld_spin
    L_ld_done:
    v_and_b32 v13, 3, v0
    v_lshlrev_b32 v13, 2, v13
    buffer_load_dword v7, v13, {srd(DBG)}, 0 offen sc1
    v_mov_b32 v12, 8
    s_waitcnt vmcnt(1)
    ds_write_b32 v11, v12 offset:{L_CNT}""")
    stamp(1)
    A(f"""v_and_b32 v6, 31, v0
    v_lshrrev_b32 v9, 5, v0
    v_lshlrev_b32 v9, 2, v9
    v_sub_u32 v6, v6, v9
    v_cvt_f32_i32 v6, v6
    s_mov_b32 s{sT}, {f2u(-BIG)}
    v_lshlrev_b32 v8, 4, v0""")
    for r in range(16):
        c = 8*(r//4) + r % 4
        A(f'v_sub_f32 v{MK+r}, {f2u(float(c))}, v6')
        A(f'v_med3_f32 v{MK+r}, v{MK+r}, 0, 1.0')
        A(f'v_mul_f32 v{MK+r}, s{sT}, v{MK+r}')
    for g in range(4):
        A(f'ds_write_b128 v8, {vr(MK+4*g,4)} offset:{L_M+g*1024}')
    preset_ones()
    common_consts()
    A(f"""s_mov_b32 s{sSpin}, 0
    s_mov_b32 s{sT}, 1
    s_waitcnt vmcnt(0)
    L_gate:
    v_cmp_ne_u32 vcc, s{sT}, v7
    s_cbranch_vccz L_gate_ok
    s_sleep 4
    buffer_load_dword v7, v13, {srd(DBG)}, 0 offen sc1
    s_add_u32 s{sSpin}, s{sSpin}, 1
    s_cmp_lt_u32 s{sSpin}, 0x10000
    s_waitcnt vmcnt(0)
    s_cbranch_scc1 L_gate
    L_gate_ok:""")
    nb_setup()
    for r in range(16): A(f'v_mov_b32 v{OA+r}, 0')
    if WOE:
        A('L_wo_spin:')
        lds_min4(sT2, 16, 12, L_CNT+16)
        A(f's_cmp_lt_u32 s{sT2}, 6\ns_cbranch_scc1 L_wo_spin')
        for j in range(16): wo_dma(j)
        stamp(2)
    else:
        poll_issue(4, 'y0')
        stamp(2)
        try_load(1, 'a')
    A("""    s_waitcnt lgkmcnt(0)
    s_barrier""")

def frag_reads(buf, ks):
    F = FR + 20*buf
    xs = [f'ds_read_b128 {vr(F+4*mt,4)}, v{2+ks} offset:{mt*4096}' for mt in range(2)]
    def wrd(seg): return [f'ds_read_b64_tr_b16 {vr(F+8+4*seg+2*j,2)}, v6 offset:{16384+seg*8192+ks*2048+j*512}' for j in range(2)]
    return [xs[0]] + wrd(0) + [xs[1]] + wrd(1) + wrd(2)
def mfmas(buf):
    F = FR + 20*buf
    L = []
    for seg in range(3):
        for mt in range(2):
            acc = vr(ACC + (seg*2+mt)*16, 16)
            x = vr(F+4*mt, 4); w = vr(F+8+4*seg, 4)
            a, b = (w, x) if seg < 2 else (x, w)
            L.append(f'{MFMA} {acc}, {a}, {b}, {acc}')
    return L

def compute_p1():
    A(f'''v_mov_b32 v12, 0
    v_lshlrev_b32 v13, 2, v0
    ds_write_b32 v13, v12 offset:{L_CNT}
    s_waitcnt lgkmcnt(0)
    s_barrier''')
    A(f'''s_cmp_lg_u32 s2, 0
    s_cbranch_scc1 L_noinit
    v_lshlrev_b32 v1, 4, v0
    v_mov_b32 v4, 0
    v_mov_b32 v5, 0
    v_mov_b32 v6, 0
    v_mov_b32 v7, 0
    s_lshl_b32 s{sT}, s{sW}, 13
    s_add_u32 s{sT}, s{sT}, {WS_FL}
    s_add_u32 s{sT2}, s{sT}, 8192
    L_init:
    buffer_store_dwordx4 v[4:7], v1, {srd(WS)}, s{sT} offen sc1
    s_add_u32 s{sT}, s{sT}, 1024
    s_cmp_lt_u32 s{sT}, s{sT2}
    s_cbranch_scc1 L_init
    L_noinit:''')
    A(f'''v_and_b32 v7, 31, v0
    v_lshrrev_b32 v8, 5, v0
    v_lshrrev_b32 v9, 1, v7
    v_and_b32 v9, 7, v9
    v_xor_b32 v9, v9, v8
    v_lshlrev_b32 v9, 4, v9
    v_lshl_add_u32 v2, v7, 7, v9
    s_lshr_b32 s{sT}, s{sW}, 1
    s_lshl_b32 s{sT}, s{sT}, 13
    s_add_u32 s{sT}, s{sT}, {RING0+SLOT}
    v_add_u32 v2, s{sT}, v2
    v_xor_b32 v3, 32, v2
    v_xor_b32 v4, 64, v2
    v_xor_b32 v5, 96, v2
    v_bfe_u32 v9, v0, 2, 2
    v_lshl_add_u32 v9, v8, 3, v9
    v_lshlrev_b32 v6, 7, v9
    v_bfe_u32 v9, v0, 4, 1
    v_lshlrev_b32 v9, 1, v9
    v_bfe_u32 v10, v0, 1, 1
    v_or_b32 v9, v9, v10
    v_bfe_u32 v10, v0, 3, 1
    s_and_b32 s{sT}, s{sW}, 1
    v_xor_b32 v10, s{sT}, v10
    v_lshl_or_b32 v9, v10, 2, v9
    v_lshl_add_u32 v6, v9, 4, v6
    v_and_b32 v9, 1, v0
    v_lshl_add_u32 v6, v9, 3, v6
    v_add_u32 v6, {RING0+SLOT}, v6
    s_lshl_b32 s{sT}, s{sW}, 2
    v_mov_b32 v13, s{sT}''')
    epi_addr()
    for i in range(96): A(f'v_mov_b32 v{ACC+i}, 0')
    preset_ones()
    common_consts()
    A(f's_mov_b32 s{sIt}, 0\ns_mov_b32 s69, 1\nL_c_spin0:')
    lds_min4(sT2, 8, 12, L_CNT)
    A(f's_cmp_lt_u32 s{sT2}, 1\ns_cbranch_scc1 L_c_spin0')
    A(f'''s_cmp_lg_u32 s2, 0
    s_cbranch_scc1 L_noann
    v_mov_b32 v14, 1
    s_mov_b64 exec, 1
    s_waitcnt vmcnt(0)
    buffer_store_dword v14, v13, {srd(DBG)}, 0 offen sc1
    s_mov_b64 exec, -1
    L_noann:''')
    stamp(1)
    Q = []
    def ds(txt, tag): A(txt); Q.append(tag)
    def wait(tag):
        n = len(Q) - 1 - max(i for i, t in enumerate(Q) if t == tag)
        A(f's_waitcnt lgkmcnt({n})')
        del Q[:len(Q)-n]
    TAGS = ['x0', 'wq', 'wq', 'x1', 'wk', 'wk', 'wv', 'wv']
    for r, t in zip(frag_reads(0, 0), TAGS): ds(r, (0, t))
    A('L_p1_loop:')
    for ks in range(4):
        cur = ks & 1
        M = mfmas(cur)
        nk = (ks+1) & 3
        R = [(r, (nk, t)) for r, t in zip(frag_reads(cur ^ 1, nk), TAGS)]
        if ks < 3:
            wait((ks, 'wq')); A(M[0]); ds(*R[0]); ds(*R[1])
            wait((ks, 'x1')); A(M[1]); ds(*R[2]); ds(*R[3])
            wait((ks, 'wk')); A(M[2]); ds(*R[4]); ds(*R[5])
            A(M[3]); ds(*R[6]); ds(*R[7])
            wait((ks, 'wv')); A(M[4])
            if ks == 2: ds(f'ds_read_b128 v[8:11], v12 offset:{L_CNT}', 'cnt')
            A(M[5])
        else:
            wait((ks, 'wq')); A(M[0])
            A(f"""s_add_u32 s{sIt}, s{sIt}, 1
            s_add_u32 s69, s69, 1
            s_mov_b32 s{sT}, {SLOT}
            s_cmp_eq_u32 s69, 3
            s_cselect_b32 s{sT}, {-2*SLOT & 0xffffffff}, s{sT}
            s_cselect_b32 s69, 0, s69
            v_mov_b32 v14, s{sIt}""")
            wait((ks, 'x1')); A(M[1])
            for i in range(2, 7): A(f'v_add_u32 v{i}, s{sT}, v{i}')
            wait('cnt')
            A(f'ds_write_b32 v13, v14 offset:{L_CNT+16}')
            min4(sT2, 8)
            A(M[2])
            A(f"""s_min_u32 s{sT3}, s{sIt}, 7
            s_cmp_gt_u32 s{sT2}, s{sT3}
            s_cbranch_scc1 L_c_ok
            L_c_spin:""")
            lds_min4(sT2, 8, 12, L_CNT)
            A(f"""s_cmp_le_u32 s{sT2}, s{sT3}
            s_cbranch_scc1 L_c_spin
            L_c_ok:""")
            Q[:] = []
            ds(*R[0]); ds(*R[1])
            A(M[3]); ds(*R[2]); ds(*R[3]); ds(*R[4])
            A(M[4]); ds(*R[5]); ds(*R[6]); ds(*R[7])
            A(f's_cmp_lt_u32 s{sIt}, 8')
            A(M[5])
            A('s_cbranch_scc1 L_p1_loop')
    stamp(2)
    A('L_c_spin2:')
    lds_min4(sT2, 8, 12, L_CNT+16)
    A(f's_cmp_lt_u32 s{sT2}, 7\ns_cbranch_scc1 L_c_spin2')
    tmp = FR
    def cvt8(acc, dst):
        for i in range(8): A(f'v_cvt_pk_bf16_f32 v{dst+i}, v{acc+2*i}, v{acc+2*i+1}')
    n = 0
    for mt in range(2):
        acc = ACC + (1*2+mt)*16; d = tmp + 8*(n % 5); n += 1
        cvt8(acc, d)
        for e in range(2):
            A(f'buffer_store_dwordx4 {vr(d+4*e,4)}, v152, {srd(WS)}, s{sE2 if e else sE1} offen offset:{mt*1024} sc1')
            A(f'ds_write_b128 v155, {vr(d+4*e,4)} offset:{e*4096+mt*1024}')
    for mt in range(2):
        acc = ACC + (2*2+mt)*16; d = tmp + 8*(n % 5); n += 1
        cvt8(acc, d)
        for a in range(2):
            A(f'buffer_store_dwordx4 {vr(d+4*a,4)}, v154, {srd(WS)}, s{sE3} offen offset:{mt*1024+a*512} sc1')
            A(f'ds_write_b128 v153, {vr(d+4*a,4)} offset:{16384+mt*1024+a*512}')
    for mt in range(2):
        acc = ACC + mt*16
        for i in range(8): A(f'v_pk_mul_f32 {vr(acc+2*i,2)}, {vr(acc+2*i,2)}, s[{sC}:{sC+1}] op_sel_hi:[1,0]')
        cvt8(acc, acc)
        for e in range(2):
            A(f'ds_write_b128 v155, {vr(acc+4*e,4)} offset:{32768+e*4096+mt*1024}')
    nb_setup()
    A('s_waitcnt lgkmcnt(0)\ns_barrier')
    stamp(3)

def epi_addr():
    A(f'''v_lshlrev_b32 v152, 4, v0
    v_bfe_u32 v10, v0, 4, 1
    v_and_b32 v11, 15, v0
    v_lshrrev_b32 v7, 5, v0
    v_lshl_or_b32 v11, v7, 4, v11
    v_lshlrev_b32 v11, 4, v11
    v_lshl_add_u32 v153, v10, 12, v11
    v_lshl_add_u32 v154, v10, 13, v11
    s_and_b32 s{sT}, s{sW}, 1
    s_lshr_b32 s{sT2}, s{sW}, 1
    s_lshl_b32 s{sN1}, s{sT}, 13
    s_lshl_b32 s{sT3}, s{sT2}, 11
    s_add_u32 s{sN1}, s{sN1}, s{sT3}
    s_add_u32 s{sN1}, s{sN1}, {L_B}
    v_add_u32 v155, s{sN1}, v152
    v_add_u32 v153, s{sN1}, v153
    s_lshl_b32 s{sE1}, s{sWG}, 15
    s_lshl_b32 s{sT}, s{sT}, 14
    s_add_u32 s{sE1}, s{sE1}, s{sT}
    s_add_u32 s{sE1}, s{sE1}, s{sT3}
    s_add_u32 s{sE2}, s{sE1}, 8192
    s_add_u32 s{sE3}, s{sE1}, 4096''')

UNITS = {0: dict(tiles=[0, 3, -1, -2, -5, -8], keep=(0, 1),
                 own=[(0,0,1),(1,0,0),(2,0,0),(3,0,0),(3,3,1)],
                 C=[(0,-5,0),(1,-5,0),(2,-5,0),(3,-5,1),(0,-8,1)]),
         1: dict(tiles=[1, 2, -3, -4, -6, -7], keep=(2, 3),
                 own=[(1,1,1),(2,1,0),(3,1,0),(2,2,1),(3,2,0)],
                 C=[(0,-6,0),(1,-6,0),(2,-6,1),(0,-7,0),(1,-7,1)])}
for U in UNITS.values(): U['B'] = [(q, t, 0) for t in U['tiles'][2:4] for q in range(4)]
CT = [None]
def kf(t): return KF + 4*CT[0].index(t)
def vf(t, a): return VF + 8*CT[0].index(t) + 4*a
def qk(u, sb):
    q, t, m = u
    return f'{MFMA} {vr(sb,16)}, {vr(kf(t),4)}, {vr(QF+4*q,4)}, {vr(MK,16) if m else "0"}'
def pv(u, sb, a, first):
    q, t, m = u
    o = vr(OA+16*q, 16)
    return f'{MFMA} {o}, {vr(vf(t,a),4)}, {vr(sb+8*a,4)}, {"0" if first else o}'
def segment(units, started, pre_qk=None, pre_pv=None, mid=None):
    n = len(units)
    def QK(i):
        if pre_qk: pre_qk(units[i])
        A(qk(units[i], SB+16*(i & 1)))
    def PV(i, a):
        u = units[i]
        if pre_pv: pre_pv(u)
        first = (u[0] not in started)
        started.add(u[0])
        A(pv(u, SB+16*(i & 1), a, first))
    QK(0)
    if n > 1: QK(1)
    for i in range(n):
        S = SB + 16*(i & 1)
        e = lambda r: A(f'v_exp_f32 v{S+r}, v{S+r}')
        def c(j):
            d = S + j if j < 4 else S + 4 + j
            A(f'v_cvt_pk_bf16_f32 v{d}, v{S+2*j}, v{S+2*j+1}')
        if mid and i in mid: mid[i]()
        e(0); e(1)
        if i > 0:
            PV(i-1, 1)
            if i+1 < n: QK(i+1)
        for j in range(7):
            e(2*j+2); c(j); e(2*j+3)
            if j == 4: PV(i, 0)
        A('s_nop 0'); c(7)
    PV(n-1, 1)

def nb_setup():
    A(f'''s_and_b32 s{sT}, s{sW}, 3
    s_lshl_b32 s{sT2}, s{sT}, 12
    s_add_u32 s{sT2}, s{sT2}, {L_B}
    v_lshlrev_b32 v2, 4, v0
    v_add_u32 v7, s{sT2}, v2
    v_and_b32 v11, 15, v0
    v_lshrrev_b32 v12, 5, v0
    v_lshl_or_b32 v11, v12, 4, v11
    v_lshlrev_b32 v3, 4, v11
    v_add_u32 v8, s{sT2}, v3
    v_add_u32 v3, 4096, v3
    s_lshl_b32 s{sKB1}, s{sWG}, 2
    s_add_u32 s{sKB1}, s{sKB1}, s{sT}
    s_lshl_b32 s{sKB1}, s{sKB1}, 13
    s_sub_u32 s{sKB2}, s{sKB1}, {2*32*8192}
    s_sub_u32 s{sKB1}, s{sKB1}, {32*8192}
    s_lshl_b32 s{sOb}, s{sWG}, 14
    s_lshl_b32 s{sT2}, s{sT}, 10
    s_add_u32 s{sOb}, s{sOb}, s{sT2}
    s_add_u32 s{sOb}, s{sOb}, {WS_O}
    s_and_b32 s{sT}, s{sW}, 1
    s_lshl_b32 s{sT2}, s{sT}, 10
    s_sub_u32 s{sT2}, s{sFl}, s{sT2}
    s_sub_u32 s{sT2}, s{sT2}, 1024
    v_mov_b32 v4, s{sT2}
    s_min_u32 s{sT2}, s{sRB}, 2
    s_lshr_b32 s{sNeed}, s{sW}, 1
    s_and_b32 s{sNeed}, s{sNeed}, 2
    s_xor_b32 s{sNeed}, s{sNeed}, s{sW}
    s_and_b32 s{sNeed}, s{sNeed}, 3
    s_cmp_lt_u32 s{sNeed}, s{sT2}
    s_cselect_b32 s{sPoll}, 1, 0
    s_lshl_b32 s{sPoll}, s{sPoll}, s{sT}
    s_mov_b32 s{sNeed}, 1
    v_lshrrev_b32 v1, 3, v0
    v_and_b32 v5, 7, v0
    v_bfe_u32 v6, v0, 4, 1
    v_lshlrev_b32 v6, 2, v6
    v_xor_b32 v5, v5, v6
    v_lshlrev_b32 v5, 4, v5
    v_lshl_add_u32 v1, v1, 10, v5
    s_and_b32 s{sT}, s{sW}, {3 if WOE else 7}
    s_lshl_b32 s{sWm}, s{sT}, {14 if WOE else 13}
    s_add_u32 s{sWm}, s{sWm}, {L_WO}
    s_lshl_b32 s{sWg}, s{sT}, {17 if WOE else 16}
    s_lshl_b32 s{sT}, s{sHG}, 7
    s_add_u32 s{sWg}, s{sWg}, s{sT}
    s_cmp_eq_u32 s{sRB}, 0
    s_cselect_b32 s{sEarly}, 1, 0
    s_mov_b32 s{sFB}, 0
    s_mul_i32 s{sT}, s{sW}, {XCH}
    s_add_u32 s{sT}, s{sT}, {L_X}
    v_add_u32 v5, s{sT}, v2
    v_lshl_add_u32 v10, v0, 2, s{sT}
    s_xor_b32 s{sT}, s{sW}, 4
    s_mul_i32 s{sT}, s{sT}, {XCH}
    s_add_u32 s{sT}, s{sT}, {L_X}
    v_add_u32 v6, s{sT}, v2
    v_lshl_add_u32 v11, v0, 2, s{sT}''')
    A(f'''s_andn2_b32 s{sN1}, s{sWG}, 7
    s_add_u32 s{sN1}, s{sN1}, s{sW}
    s_lshl_b32 s{sN1}, s{sN1}, 7
    s_add_u32 s{sN1}, s{sN1}, {WS_FL+64}
    v_mov_b32 v9, s{sN1}
    v_mov_b32 v12, 0''')

def wo_dma(j):
    A(f'''s_add_u32 m0, s{sWm}, {j*1024}
    s_add_u32 s{sT}, s{sWg}, {j*8192}
    buffer_load_dwordx4 v1, {srd(WO)}, s{sT} offen lds''')
def poll_issue(va, tag):
    A(f'''s_cmp_eq_u32 s{sPoll}, 0
    s_cbranch_scc1 L_pi{tag}
    s_mov_b64 exec, 1
    buffer_load_dword v15, v{va}, {srd(WS)}, 0 offen sc1
    s_mov_b64 exec, -1
    L_pi{tag}:''')
def poll_check(rdy, tag, wait):
    A(f's_cmp_eq_u32 s{sPoll}, 0\ns_cbranch_scc1 L_pc{tag}')
    wait()
    A(f'''v_readfirstlane_b32 s{sT}, v15
    v_mov_b32 v14, s{sPoll}
    s_cmp_lg_u32 s{sT}, 1
    s_cbranch_scc1 L_pc{tag}
    s_mov_b64 exec, 1
    ds_or_b32 v12, v14 offset:{rdy}
    s_mov_b64 exec, -1
    s_mov_b32 s{sPoll}, 0
    L_pc{tag}:
    ds_read_b32 v14, v12 offset:{rdy}
    s_waitcnt lgkmcnt(0)
    v_readfirstlane_b32 s{sT}, v14''')
def nb_loads(ty, tag, far=False):
    CT[0] = UNITS[ty]['tiles']
    def ld(t):
        base = sKB1 if t >= -4 else sKB2
        T = t % 4
        A(f'buffer_load_dwordx4 {vr(kf(t),4)}, v2, {srd(WS)}, s{base} offen offset:{T*1024}{LDSC}')
        A(f's_mov_b64 exec, s[{sHalf}:{sHalf+1}]')
        for a in range(2):
            A(f'buffer_load_dwordx4 {vr(vf(t,a),4)}, v3, {srd(WS)}, s{base} offen offset:{T*1024+a*512}{LDSC}')
        A('s_mov_b64 exec, -1')
    for t in (CT[0][4:6] if far else CT[0][2:4]): ld(t)
    A(f's_mov_b32 s{sEarly}, 1\ns_andn2_b32 s{sPoll}, s{sPoll}, s{sNeed}')
def kv_block(ty, tag):
    A(f's_mov_b32 s{sSpin}, 0\nL_pkv{ty}{tag}:')
    kv_check(ty, f'b{tag}')
    A(f'''s_cmp_eq_u32 s{sT}, s{sNeed}
    s_cbranch_scc1 L_pkv{ty}{tag}_ok
    s_add_u32 s{sSpin}, s{sSpin}, 1
    s_sleep {SLP}
    s_cmp_lt_u32 s{sSpin}, 0x40000
    s_cbranch_scc1 L_pkv{ty}{tag}
    L_pkv{ty}{tag}_ok:''')
def kv_check(ty, tag):
    poll_check(R_KV, f'k{ty}{tag}', lambda: A('s_waitcnt vmcnt(0)'))
    A(f's_andn2_b32 s{sPoll}, s{sPoll}, s{sT}')
    poll_issue(4, f'k{ty}{tag}')
    A(f's_and_b32 s{sT}, s{sT}, s{sNeed}')
def poll_step(ty, tag):
    A(f's_cmp_eq_u32 s{sPoll}, 0\ns_cbranch_scc1 L_ps{ty}{tag}')
    kv_check(ty, tag)
    A(f'L_ps{ty}{tag}:')
def try_load(ty, tag, nopoll=False):
    A(f's_cmp_lg_u32 s{sEarly}, 0\ns_cbranch_scc1 L_tl{ty}{tag}')
    if nopoll: A(f'ds_read_b32 v14, v12 offset:{R_KV}\ns_waitcnt lgkmcnt(0)\nv_readfirstlane_b32 s{sT}, v14\ns_and_b32 s{sT}, s{sT}, s{sNeed}')
    else: kv_check(ty, tag)
    A(f's_cmp_lg_u32 s{sT}, s{sNeed}\ns_cbranch_scc1 L_tl{ty}{tag}')
    nb_loads(ty, tag)
    A(f'L_tl{ty}{tag}:')

def publish(sa, cnt, last, tag, rdy=None):
    A(f'''v_mov_b32 v14, 1
    s_mov_b64 exec, 1
    s_waitcnt vmcnt(0)
    ds_add_rtn_u32 v13, v12, v14 offset:{cnt}
    s_waitcnt lgkmcnt(0)
    v_readfirstlane_b32 s{sT}, v13
    s_cmp_lg_u32 s{sT}, {last}
    s_cbranch_scc1 L_pub{tag}
    buffer_store_dword v14, v12, {srd(WS)}, s{sa} offen sc1''')
    if rdy:
        A(f's_lshl_b32 s{sT}, s{sHG}, 2\ns_lshl_b32 s{sT}, 1, s{sT}\nv_mov_b32 v13, s{sT}\nds_or_b32 v12, v13 offset:{rdy}')
    A(f'L_pub{tag}:\ns_mov_b64 exec, -1')

RG = SB
TRY = {0: (2, 4), 1: (2, 4)}
PRIO = opt('prio', 1)
PV2 = opt('pv', 2)
def attention(ty):
    U = UNITS[ty]; CT[0] = U['tiles']
    own = U['tiles'][:2]
    if ty == 0:
        publish(sFl, C_KV, 3, 'k')
        if ST2 == 2: stamp(1)
        poll_issue(4, 'x0')
        if WARM & 1:
            A(f'''v_and_b32 v13, 15, v0
            v_lshlrev_b32 v13, 7, v13
            v_lshrrev_b32 v14, 4, v0
            v_lshl_add_u32 v13, v14, 12, v13
            buffer_load_dword v250, v13, {srd(WS)}, s{sE1} offen''')
    for q in range(4): A(f'ds_read_b128 {vr(QF+4*q,4)}, v7 offset:{32768+q*1024}')
    for t in own: A(f'ds_read_b128 {vr(kf(t),4)}, v7 offset:{t*1024}')
    for g in range(4): A(f'ds_read_b128 {vr(MK+4*g,4)}, v2 offset:{L_M+g*1024}')
    A(f's_mov_b64 exec, s[{sHalf}:{sHalf+1}]')
    for t in own:
        for a in range(2): A(f'ds_read_b128 {vr(vf(t,a),4)}, v8 offset:{16384+t*1024+a*512}')
    A('s_mov_b64 exec, -1')
    A('s_waitcnt lgkmcnt(4)')
    started = set() if ty == 0 else {0}
    MID = {0: {3: lambda: try_load(0, 'm3'), 4: lambda: try_load(0, 'm4', True)},
           1: {3: lambda: poll_issue(4, 'y3'), 4: lambda: try_load(1, 'm4', PV2 == 0)}}
    if PV2 == 2: MID[0] = {2: lambda: try_load(0, 'm3'), 4: lambda: try_load(0, 'm4')}
    done = [False]
    def pre_pv(u):
        if not done[0]: A('s_waitcnt lgkmcnt(0)'); done[0] = True
    segment(U['own'], started, pre_pv=pre_pv, mid=MID[ty])
    stamp(4)
    Lfin = f'L_fin{ty}'
    A(f'''s_cmp_lg_u32 s{sEarly}, 0
    s_cbranch_scc1 L_have{ty}''')
    kv_block(ty, 'n')
    nb_loads(ty, 'b')
    A(f'L_have{ty}:')
    if opt('exp', 0) and ty == 1: A('s_branch L_have0')
    stamp(5)
    A(f's_cmp_eq_u32 s{sRB}, 0\ns_cbranch_scc1 L_z{ty}')
    LB = f'L_B{ty}'
    nd = [0]
    def dm(j):
        def f():
            if not WOE: wo_dma(j); nd[0] += 1
        return f
    A(f's_cmp_eq_u32 s{sRB}, 1\ns_cbranch_scc1 {LB}_only')
    def mk_wait(order):
        seen = set()
        def w(u):
            t = u[1]
            if t not in seen:
                seen.add(t)
                k = order.index(t)
                A(f's_waitcnt vmcnt({(3 if k == 0 else 3*(len(order)-1-k))+nd[0]})')
        return w
    for r in range(16): A(f'v_sub_f32 v{MK+r}, {f2u(-BIG)}, v{MK+r}')
    if PRIO:
        dm0 = dm
        def dm(j):
            f0 = dm0(j)
            def f():
                f0()
                if PRIO == 1 and ty == 1 and j in (0, 6): A(f's_setprio {1 if j == 0 else 0}')
                if PRIO == 2 and ty == 1: A(f's_setprio {1 - (j & 1)}')
                if PRIO == 3 and ty == 1 and j == 0: A('s_setprio 1')
            return f
    midC = {i+WOS: dm(i) for i in range(8)}
    def farload():
        A(f's_mov_b32 s{sNeed}, 2')
        kv_block(ty, 'f')
        nb_loads(ty, 'f', True)
    midC[CU] = farload
    segment(U['B'] + U['C'], set(started), pre_qk=mk_wait(U['tiles'][2:6]), mid=midC)
    A(f's_branch {Lfin}\nL_z{ty}:')
    for j in range(0 if WOE else 8): wo_dma(j)
    A(f's_branch {Lfin}')
    nd[0] = 0
    A(f'{LB}_only:')
    segment(U['B'], set(started), pre_qk=mk_wait(U['tiles'][2:4]), mid={i: dm(i) for i in range(8)})
    A(f'{Lfin}:')
    if PRIO: A('s_setprio 0')
    A('s_nop 10')
    stamp(6)
    send = [q for q in range(4) if q not in U['keep']]
    for a, q in enumerate(send):
        o = OA + 16*q
        A(f'ds_write_b128 v5, {vr(o,4)} offset:{a*2048}\nds_write_b128 v5, {vr(o+4,4)} offset:{a*2048+1024}')
        A(f'ds_write_b32 v10, v{o+8} offset:{4096+a*256}')
    A('s_waitcnt vmcnt(0) lgkmcnt(0)')
    if ST2 == 1: stamp(1)
    A('s_barrier')
    if ST2 == 1: stamp(2)
    A(f's_lshl_b32 s{sT}, s{sW}, 2\ns_lshl_b32 s{sPoll}, 1, s{sT}\ns_cmp_eq_u32 s{sW}, s{sHG}\ns_cselect_b32 s{sPoll}, 0, s{sPoll}')
    poll_issue(9, f'o{ty}')
    for a in range(2):
        A(f'ds_read_b32 v{RG+16+a}, v11 offset:{4096+a*256}')
        A(f'ds_read_b128 {vr(RG+8*a,4)}, v6 offset:{a*2048}\nds_read_b128 {vr(RG+8*a+4,4)}, v6 offset:{a*2048+1024}')
    for a, q in enumerate(U['keep']):
        o = OA + 16*q
        A(f's_waitcnt lgkmcnt({3-3*a})')
        A(f'v_add_f32 v{RG+16+a}, v{RG+16+a}, v{o+8}')
        for j in range(8): A(f'v_add_f32 v{RG+8*a+j}, v{RG+8*a+j}, v{o+j}')
    if ty == 1:
        for j in range(8): A(f'v_mov_b32 v{QF+j}, v{QF+8+j}')

def finalize():
    A('L_final:')
    for a in range(2):
        o = RG + 8*a; l = RG + 16 + a; m = f's[{70 if a else 58}:{71 if a else 59}]'
        A(f'v_rcp_f32 v{l+2}, v{l}')
        A(f'v_cmp_lt_f32 {m}, s{sLo}, v{l}\nv_cmp_gt_f32 vcc, s{sHi}, v{l}\ns_and_b64 {m}, {m}, vcc')
        for j in range(8): A(f'v_mul_f32 v{o+j}, v{o+j}, v{l+2}')
        for j in range(4): A(f'v_cvt_pk_bf16_f32 v{PK+4*a+j}, v{o+2*j}, v{o+2*j+1}')
        A(f'v_add_f32 v{l+4}, |v{o}|, |v{o+1}|')
        for j in range(2, 8): A(f'v_add_f32 v{l+4}, v{l+4}, |v{o+j}|')
    A(f'''v_add_f32 v{RG+20}, v{RG+20}, v{RG+21}
    s_and_b64 s[58:59], s[58:59], s[70:71]
    s_mov_b32 s{sT}, 0x7f800000
    v_cmp_gt_f32 vcc, s{sT}, v{RG+20}
    s_and_b64 s[58:59], s[58:59], vcc
    s_cmp_eq_u64 s[58:59], -1
    s_cselect_b32 s{sT}, {0 if FORCE_FB else 1}, 0
    s_or_b32 s{sT}, s{sT}, s{sFB}
    s_cbranch_scc0 L_fb
    s_lshr_b32 s{sT}, s{sW}, 2
    s_lshl_b32 s{sT}, s{sT}, 13
    s_add_u32 s{sT}, s{sT}, s{sOb}
    s_add_u32 s{sT2}, s{sT}, 4096''')
    for a in range(2):
        A(f'buffer_store_dwordx4 {vr(PK+4*a,4)}, v2, {srd(WS)}, s{sT2 if a else sT} offen sc1')

    if ST2: stamp(3 if ST2 == 1 else 2)

def fallback():
    A('L_fb:')
    sG, sG0, sQ, sA, sBv, sAd = 42, 43, 44, 45, 46, 47
    S = OA + 32; CB = OA + 48; MX = 248
    for g in range(4): A(f'ds_read_b128 {vr(MK+4*g,4)}, v2 offset:{L_M+g*1024}')
    A(f'''s_mov_b32 s{sFB}, 1
    s_lshr_b32 s{sQ}, s{sW}, 2
    s_lshl_b32 s{sQ}, s{sQ}, 1
    s_lshl_b32 s{sT}, s{sRB}, 2
    s_add_u32 s{sQ}, s{sQ}, s{sT}
    s_max_u32 s{sG0}, s{sQ}, 8
    s_sub_u32 s{sG0}, s{sG0}, 8
    v_mov_b32 v{MX}, 0xff800000
    v_mov_b32 v{MX+1}, 0xff800000''')
    for r in range(32): A(f'v_mov_b32 v{OA+r}, 0')
    A('s_waitcnt lgkmcnt(0)')
    for ps in range(2):
        A(f'''s_mov_b32 s{sG}, s{sG0}
        L_fbl{ps}:
        s_lshr_b32 s{sT}, s{sG}, 2
        s_sub_u32 s{sT}, s{sT}, s{sRB}
        s_add_u32 s{sT}, s{sT}, 2
        s_lshl_b32 s{sT}, s{sT}, 18
        s_add_u32 s{sAd}, s{sKB2}, s{sT}
        s_and_b32 s{sT}, s{sG}, 3
        s_lshl_b32 s{sT}, s{sT}, 10
        s_add_u32 s{sAd}, s{sAd}, s{sT}
        buffer_load_dwordx4 {vr(KF,4)}, v2, {srd(WS)}, s{sAd} offen sc1
        s_mov_b64 exec, s[{sHalf}:{sHalf+1}]
        buffer_load_dwordx4 {vr(VF,4)}, v3, {srd(WS)}, s{sAd} offen sc1
        buffer_load_dwordx4 {vr(VF+4,4)}, v3, {srd(WS)}, s{sAd} offen offset:512 sc1
        s_mov_b64 exec, -1
        s_waitcnt vmcnt(0)''')
        for a in range(2):
            A(f'''s_sub_u32 s{sT}, s{sQ}, s{sG}
            s_add_u32 s{sT}, s{sT}, {a}
            s_cmp_eq_u32 s{sT}, 0
            s_cselect_b32 s{sA}, 1.0, 0
            s_cmp_eq_u32 s{sT}, 8
            s_cselect_b32 s{sA}, -1.0, s{sA}
            s_cmp_ge_u32 s{sT}, 8
            s_cselect_b32 s{sBv}, {f2u(-BIG)}, 0''')
            A(f'v_mov_b32 v14, s{sBv}')
            for r in range(16): A(f'v_fma_f32 v{CB+r}, v{MK+r}, s{sA}, v14')
            if ps:
                for r in range(16): A(f'v_sub_f32 v{CB+r}, v{CB+r}, v{MX+a}')
            A(f'{MFMA} {vr(S,16)}, {vr(KF,4)}, {vr(QF+4*a,4)}, {vr(CB,16)}')
            if ps == 0:
                for j in range(8): A(f'v_max3_f32 v{MX+a}, v{S+2*j}, v{S+2*j+1}, v{MX+a}')
            else:
                for r in range(16): A(f'v_exp_f32 v{S+r}, v{S+r}')
                for j in range(8): A(f'v_cvt_pk_bf16_f32 v{S+j if j < 4 else S+4+j}, v{S+2*j}, v{S+2*j+1}')
                for h in range(2):
                    A(f'{MFMA} {vr(OA+16*a,16)}, {vr(VF+4*h,4)}, {vr(S+8*h,4)}, {vr(OA+16*a,16)}')
                A('s_nop 7')
        A(f'''s_add_u32 s{sG}, s{sG}, 1
        s_add_u32 s{sT}, s{sQ}, 1
        s_cmp_le_u32 s{sG}, s{sT}
        s_cbranch_scc1 L_fbl{ps}''')
        if ps == 0:
            for a in range(2):
                A(f'v_mov_b32 v14, v{MX+a}\ns_nop 1\nv_permlane32_swap_b32 v{MX+a}, v14\nv_max_f32 v{MX+a}, v{MX+a}, v14')
    A('s_nop 7')
    for a in range(2):
        for j in range(8): A(f'v_mov_b32 v{RG+8*a+j}, v{OA+16*a+j}')
        A(f'v_mov_b32 v{RG+16+a}, v{OA+16*a+8}')
    A('s_branch L_final')

WF = 16; OF = 144; AC3 = 208
def wait_chain(sreg, nmax, per, extra, tag):
    for n in range(nmax, 0, -1):
        A(f's_cmp_ge_u32 s{sreg}, {n}\ns_cbranch_scc1 L_wc{tag}_{n}')
    A(f's_waitcnt vmcnt({extra})')
    for n in range(1, nmax+1):
        A(f'L_wc{tag}_{n}:\ns_waitcnt vmcnt({per*n+extra})')
def wait_dyn(_):
    A(f's_bcnt1_i32_b32 s{sT2}, s{sNew}')
    wait_chain(sT2, 4, 4, 0, 'f')
def o_issue(tag, wait):
    poll_check(R_O, f'o{tag}', wait)
    A(f'''s_and_b32 s{sT2}, s{sW}, 4
    s_lshl_b32 s{sT2}, s{sT2}, 2
    s_lshr_b32 s{sT}, s{sT}, s{sT2}
    s_cmp_ge_u32 s{sSpin}, 0x40000
    s_cselect_b32 s{sT}, -1, s{sT}
    s_and_b32 s{sT}, s{sT}, 0x1111
    s_andn2_b32 s{sNew}, s{sT}, s{sIss}
    s_or_b32 s{sIss}, s{sIss}, s{sNew}''')
    if tag == 'b': A(f's_or_b32 s{sT}, s{sNew}, s{sM}\ns_cbranch_scc1 L_oi{tag}s\ns_sleep {SLP}\nL_oi{tag}s:')
    poll_issue(9, f'o{tag}')
    for g in range(4):
        A(f's_bitcmp0_b32 s{sNew}, {4*g}\ns_cbranch_scc1 L_oi{tag}{g}\ns_add_u32 s{sT}, s{sN2}, {g*16384}')
        for j in range(4):
            A(f'buffer_load_dwordx4 {vr(OF+16*g+4*j,4)}, v2, {srd(WS)}, s{sT} offen offset:{j*1024}{LDSC}')
        A(f'L_oi{tag}{g}:')
def phase3():
    A(f'''s_andn2_b32 s{sN2}, s{sWG}, 7
    s_and_b32 s{sT3}, s{sW}, 4
    s_add_u32 s{sN2}, s{sN2}, s{sT3}
    s_lshl_b32 s{sN2}, s{sN2}, 14
    s_and_b32 s{sT3}, s{sW}, 3
    s_lshl_b32 s{sT3}, s{sT3}, 12
    s_add_u32 s{sN2}, s{sN2}, s{sT3}
    s_add_u32 s{sN2}, s{sN2}, {WS_O}
    s_mov_b32 s{sIss}, 0
    s_mov_b32 s{sSpin}, 0''')
    A(f'''v_bfe_u32 v3, v0, 2, 2
    v_lshrrev_b32 v8, 5, v0
    v_lshl_add_u32 v3, v8, 2, v3
    v_lshlrev_b32 v11, 7, v3
    v_bfe_u32 v3, v0, 4, 1
    v_lshlrev_b32 v3, 1, v3
    v_bfe_u32 v10, v0, 1, 1
    v_or_b32 v3, v3, v10
    v_bfe_u32 v10, v0, 3, 1
    v_lshl_or_b32 v3, v10, 2, v3
    v_lshl_add_u32 v11, v3, 4, v11
    v_and_b32 v3, 1, v0
    v_lshl_add_u32 v11, v3, 3, v11
    s_lshr_b32 s{sT3}, s{sW}, 2
    s_lshl_b32 s{sT3}, s{sT3}, 15
    s_add_u32 s{sT3}, s{sT3}, {L_WO}
    v_add_u32 v11, s{sT3}, v11
    v_xor_b32 v7, 64, v11''')
    def wfr(lo, hi):
        for i in range(lo, hi):
            for nt in range(2):
                for j in range(2):
                    A(f'ds_read_b64_tr_b16 {vr(WF+8*i+4*nt+2*j,2)}, v{7 if nt else 11} offset:{i*2048+j*1024}')
    for r in range(32): A(f'v_mov_b32 v{AC3+r}, 0')
    A(f'''v_and_b32 v10, 31, v0
    v_lshlrev_b32 v10, 11, v10
    v_lshl_add_u32 v10, v8, 4, v10
    s_and_b32 s{sT}, s{sW}, 3
    s_lshl_b32 s{sN1}, s{sRB}, 2
    s_add_u32 s{sN1}, s{sN1}, s{sT}
    s_lshl_b32 s{sN1}, s{sN1}, 16
    s_lshl_b32 s{sT}, s{sB}, 10
    s_add_u32 s{sN1}, s{sN1}, s{sT}
    s_lshl_b32 s{sT}, s{sHG}, 7
    s_add_u32 s{sN1}, s{sN1}, s{sT}
    s_and_b32 s{sT}, s{sW}, 4
    s_lshl_b32 s{sT}, s{sT}, 4
    s_add_u32 s{sN1}, s{sN1}, s{sT}''')
    if ST2 == 1: stamp(4)
    publish(sFo, C_O, 7, 'o', R_O)
    if WARM & 2:
        A(f'''v_and_b32 v13, 7, v0
        v_lshlrev_b32 v13, 7, v13
        v_bfe_u32 v14, v0, 3, 1
        v_lshl_add_u32 v13, v14, 12, v13
        s_lshr_b32 s{sT}, s{sW}, 2
        s_lshl_b32 s{sT}, s{sT}, 13
        s_add_u32 s{sT}, s{sT}, s{sOb}
        s_mov_b64 exec, 0xffff
        buffer_load_dword v250, v13, {srd(WS)}, s{sT} offen
        s_mov_b64 exec, -1''')
    stamp(7)
    o_issue('a', lambda: None)
    stamp(8)
    wfr(0, 16)
    if ST2 == 2: stamp(4)
    A(f'''s_waitcnt lgkmcnt(0)
    L_p3l:
    s_mov_b32 s{sM}, s{sNew}
    s_mov_b32 s{sL}, 0
    s_mov_b32 s{sNew}, 0
    s_cmp_eq_u32 s{sIss}, 0x1111
    s_cbranch_scc1 L_p3m
    s_add_u32 s{sSpin}, s{sSpin}, 1
    s_bcnt1_i32_b32 s{sT2}, s{sM}''')
    o_issue('b', lambda: wait_chain(sT2, 3, 4, 0, 'p'))
    stamp(8)
    A(f's_bcnt1_i32_b32 s{sL}, s{sNew}\nL_p3m:')
    for g in range(4):
        A(f's_bitcmp0_b32 s{sM}, {4*g}\ns_cbranch_scc1 L_om{g}')
        A(f's_lshr_b32 s{sT}, s{sM}, {4*g+4}\ns_bcnt1_i32_b32 s{sT2}, s{sT}\ns_add_u32 s{sT2}, s{sT2}, s{sL}')
        wait_chain(sT2, 3, 4, 0, f'm{g}')
        for j in range(4):
            for nt in range(2):
                acc = vr(AC3+16*nt, 16); i = 4*g + j
                A(f'{MFMA} {acc}, {vr(WF+8*i+4*nt,4)}, {vr(OF+4*i,4)}, {acc}')
        A(f'L_om{g}:')
    A(f'''s_cmp_lg_u32 s{sIss}, 0x1111
    s_cbranch_scc1 L_p3l
    s_cmp_lg_u32 s{sNew}, 0
    s_cbranch_scc1 L_p3l''')
    A(f's_lshr_b32 s{sT2}, s{sW}, 2\ns_nop 7\ns_nop 3')
    stamp(9)
    for kh in range(2):
        if kh == 0: A(f's_cmp_lg_u32 s{sT2}, 0\ns_cbranch_scc1 L_x1')
        else: A('L_x1:')
        send = AC3 + 16*(1-kh); keep = AC3 + 16*kh
        for g in range(4): A(f'ds_write_b128 v6, {vr(send+4*g,4)} offset:{g*1024}')
        A('s_waitcnt lgkmcnt(0)\ns_barrier')
        for g in range(4): A(f'ds_read_b128 {vr(16+4*g,4)}, v5 offset:{g*1024}')
        for g in range(4):
            A(f's_waitcnt lgkmcnt({3-g})')
            for r in range(4): A(f'v_add_f32 v{keep+4*g+r}, v{keep+4*g+r}, v{16+4*g+r}')
            for j in range(2): A(f'v_cvt_pk_bf16_f32 v{32+2*g+j}, v{keep+4*g+2*j}, v{keep+4*g+2*j+1}')
        if kh == 0: A('s_branch L_x2')
    A('L_x2:\ns_nop 1')
    for p in range(2):
        A(f'v_permlane32_swap_b32 v{32+4*p}, v{34+4*p}\nv_permlane32_swap_b32 v{33+4*p}, v{35+4*p}')
        A(f'buffer_store_dwordx4 {vr(32+4*p,4)}, v10, {srd(OUT)}, s{sN1} offen offset:{32*p}' + ['', ' sc1', ' nt', ' sc0 sc1', ' sc1 nt'][OST])
    if PROF:
        A('s_waitcnt vmcnt(0)')
        stamp(10)
        A(f'''s_lshl_b32 s{sT}, s2, 3
        s_add_u32 s{sT}, s{sT}, s{sW}
        s_lshl_b32 s{sT}, s{sT}, 7
        s_add_u32 s{sT}, s{sT}, {WS_ST}
        v_mov_b32 v1, 0''')
        for i in range(11):
            A(f'v_mov_b32 v2, s{sST+2*i}\nbuffer_store_dword v2, v1, {srd(WS)}, s{sT} offen offset:{4*i}')
        A(f'v_mov_b32 v2, s100\nbuffer_store_dword v2, v1, {srd(WS)}, s{sT} offen offset:60')
        A('s_mov_b32 s99, s100\ns_memrealtime s[100:101]\ns_waitcnt lgkmcnt(0)')
        A(f'v_mov_b32 v2, s100\nbuffer_store_dword v2, v1, {srd(WS)}, s{sT} offen offset:56')
    if DBGP:
        A(f'''s_mov_b64 exec, 1
        v_mov_b32 v2, s100
        buffer_atomic_umax v2, v1, {srd(DBG)}, 0 offen offset:4
        s_not_b32 s{sT}, s99
        v_mov_b32 v3, s{sT}
        buffer_atomic_umax v3, v1, {srd(DBG)}, 0 offen offset:8
        s_cmp_lg_u32 s2, 77
        s_cbranch_scc1 L_end
        s_cmp_eq_u32 s{sW}, 4
        s_cbranch_scc1 L_dbg4
        s_cmp_lg_u32 s{sW}, 0
        s_cbranch_scc1 L_end''')
        for i in range(1, 11):
            A(f's_sub_u32 s{sT}, s{sST+2*i}, s{sST}\nv_mov_b32 v2, s{sT}\nbuffer_store_dword v2, v1, {srd(DBG)}, 0 offen offset:{8+4*i}')
        A('s_branch L_end\nL_dbg4:')
        for k, i in enumerate((5, 6, 8)):
            A(f's_sub_u32 s{sT}, s{sST+2*i}, s{sST}\nv_mov_b32 v2, s{sT}\nbuffer_store_dword v2, v1, {srd(DBG)}, 0 offen offset:{52+4*k}')
    A('L_end:\ns_endpgm')

prologue()
compute_p1()
attention(0)
A('s_branch L_final')
loader_p1()
stamp(3)
attention(1)
finalize()
phase3()
fallback()
body, nadd = A.finish()
hdr = open('cdna_kernels/' + NAME + '.s.ref').read().split('; Override launch')[0]
out = hdr + f'''; @launch grid=(256,1,1) block=(512,1,1) lds=163840
.amdgcn_target "amdgcn-amd-amdhsa--gfx950"
.text
.globl {NAME}_kernel
.p2align 8
.type {NAME}_kernel,@function
{NAME}_kernel:
{body}.section .rodata,"a"
.p2align 6
.amdhsa_kernel {NAME}_kernel
  .amdhsa_next_free_vgpr 256
  .amdhsa_next_free_sgpr 102
  .amdhsa_accum_offset 256
  .amdhsa_group_segment_fixed_size 0
  .amdhsa_kernarg_size 72
  .amdhsa_user_sgpr_count 2
  .amdhsa_user_sgpr_kernarg_segment_ptr 1
  .amdhsa_system_sgpr_workgroup_id_x 1
.end_amdhsa_kernel
'''
dst = [a for a in sys.argv[1:] if not a.startswith('--')]
open(dst[0] if dst else 'cdna_kernels/' + NAME + '.s', 'w').write(out)
print('nops inserted', nadd, 'lines', body.count('\n'))
```

```python
import sys, struct, re
from asmlib import Asm
NAME = 'concat_heads__sliding_block__sliding_block__prompt'
DBGP = '--dbg' in sys.argv
PROF = '--prof' in sys.argv or DBGP
def opt(name, d):
    for a in sys.argv:
        if a.startswith('--'+name+'='): return int(a.split('=')[1])
    return d
DEP = opt('dep', 2); ROT = opt('rot', 0); PF = opt('pf', 1); LDSC = ' sc1' if opt('ldsc', 1) else ''
FORCE_FB = '--force-fb' in sys.argv
def f2u(x): return struct.unpack('<I', struct.pack('<f', x))[0]
A = Asm()
SLOT = 40960
WS_O = 8 << 20; WS_FL = 12 << 20; WS_ST = 13 << 20; WS_SZ = 14 << 20
RING0 = 40960; L_M = 0; L_CNT = 4096; L_WO = 4608; L_B = 70144; L_X = 122880
CSC = 0.25 * 1.4426950408889634
BIG = 1e30
sW = 3; X, Wq, WO, WS, OUT, DBG = 4, 8, 12, 16, 20, 24
sB, sRB, sHG, sWG = 28, 29, 30, 31
sXo, sWo, sSl, sIt, sT, sT2, sN1, sN2 = 50, 51, 52, 53, 54, 55, 56, 57
sHalf = 60; sC = 62; sSpin = 63; sFl = 64; sOb = 65; sT3 = 66; sLo = 67; sHi = 68
sST = 72
nst = [0]
def srd(i): return f's[{i}:{i+3}]'
def vr(a, n): return f'v[{a}:{a+n-1}]'
def stamp(idx):
    if PROF:
        A(f's_memtime s[{sST+2*idx}:{sST+2*idx+1}]\ns_waitcnt lgkmcnt(0)')
QF = 16; OA = 32; SB = 96; MK = 128; KF = 144; VF = 168; PK = 240
sEarly, sKB1, sKB2, sIss, sNew, sFB = 32, 33, 34, 35, 36, 37
sE1, sE2, sE3 = 39, 40, 41
sFo, sWm, sWg = 38, 48, 49
sM, sL = 42, 43
sPoll, sNeed = 50, 51
C_KV, C_O, R_KV, R_O = L_CNT+32, L_CNT+36, L_CNT+48, L_CNT+52
SLP = opt('slp', 2)
XCH = 4608
WPG = opt('wpg', 1); PSW = opt('psw', 6); MAP = opt('map', 0)
WARM = opt('warm', 0)
WOE = opt('woe', 0); WOS = opt('wos', 4); CU = opt('cu', 2)
ST2 = opt('st2', 0)
OST = opt('ost', 0)
ACC = 16; FR = 112
MFMA = 'v_mfma_f32_32x32x16_bf16'

def prologue():
    A(f'''s_cmp_ge_u32 s2, 256
    s_cbranch_scc1 L_end
    s_load_dwordx8 s[32:39], s[0:1], 0
    s_load_dwordx8 s[40:47], s[0:1], 32
    s_load_dwordx2 s[48:49], s[0:1], 64''')
    if PROF: A(f's_memrealtime s[100:101]')
    A(f'''v_lshrrev_b32 v1, 6, v0
    v_and_b32 v0, 63, v0
    s_and_b32 s{sT}, s2, 7
    v_readfirstlane_b32 s{sW}, v1
    s_lshr_b32 s{sT2}, s2, 3
    s_lshr_b32 s{sB}, s{sT}, 2
    s_and_b32 s{sT}, s{sT}, 3
    s_lshl_b32 s{sT}, s{sT}, 2
    s_lshr_b32 s{sRB}, s{sT2}, 3
    s_add_u32 s{sRB}, s{sRB}, s{sT}
    s_and_b32 s{sHG}, s{sT2}, 7''')
    if MAP: A(f'''s_bfe_u32 s{sRB}, s2, 0x10001
    s_lshl_b32 s{sRB}, s{sRB}, 3
    s_lshr_b32 s{sT}, s{sT2}, 2
    s_add_u32 s{sRB}, s{sRB}, s{sT}
    s_and_b32 s{sHG}, s2, 1
    s_lshl_b32 s{sHG}, s{sHG}, 2
    s_and_b32 s{sT}, s{sT2}, 3
    s_add_u32 s{sHG}, s{sHG}, s{sT}''')
    A(f'''    s_lshl_b32 s{sWG}, s{sB}, 4
    s_add_u32 s{sWG}, s{sWG}, s{sRB}
    s_lshl_b32 s{sWG}, s{sWG}, 3
    s_add_u32 s{sWG}, s{sWG}, s{sHG}
    s_mov_b32 s{X+2}, 0x200000
    s_mov_b32 s{X+3}, 0x20000
    s_mov_b32 s{Wq+2}, 0x180000
    s_mov_b32 s{Wq+3}, 0x20000
    s_mov_b32 s{WO+2}, 0x80000
    s_mov_b32 s{WO+3}, 0x20000
    s_mov_b32 s{WS+2}, {WS_SZ}
    s_mov_b32 s{WS+3}, 0x20000
    s_mov_b32 s{OUT+2}, 0x400000
    s_mov_b32 s{OUT+3}, 0x20000
    s_mov_b32 s{DBG+2}, 256
    s_mov_b32 s{DBG+3}, 0x20000
    s_mov_b32 s{sHalf}, 0xffff
    s_mov_b32 s{sHalf+1}, 0xffff
    s_cmp_eq_u32 s{sB}, 0
    s_waitcnt lgkmcnt(0)
    s_cselect_b32 s{X}, s32, s38
    s_cselect_b32 s{X+1}, s33, s39
    s_cselect_b32 s{Wq}, s34, s40
    s_cselect_b32 s{Wq+1}, s35, s41
    s_cselect_b32 s{WO}, s36, s42
    s_cselect_b32 s{WO+1}, s37, s43
    s_mov_b32 s{OUT}, s44
    s_mov_b32 s{OUT+1}, s45
    s_mov_b32 s{DBG}, s46
    s_mov_b32 s{DBG+1}, s47
    s_mov_b32 s{WS}, s48
    s_mov_b32 s{WS+1}, s49''')
    stamp(0)
    A(f'''s_cmp_ge_u32 s{sW}, 4
    s_cbranch_scc1 L_loader''')

def preset_ones():
    A(f'v_mov_b32 v1, 0x3f803f80')
    for i in range(48): A(f'v_mov_b32 v{VF+i}, v1')

def common_consts():
    A(f'''s_lshl_b32 s{sFl}, s{sWG}, 7
    s_add_u32 s{sFl}, s{sFl}, {WS_FL}
    s_add_u32 s{sFo}, s{sFl}, 64
    s_mov_b32 s{sC}, {f2u(CSC)}
    s_mov_b32 s{sLo}, {f2u(2.0**-40)}
    s_mov_b32 s{sHi}, {f2u(2.0**40)}''')

def lds_min4(dst_s, vt, addr_v, off, wait=True):
    A(f'ds_read_b128 {vr(vt,4)}, v{addr_v} offset:{off}')
    A('s_waitcnt lgkmcnt(0)')
    min4(dst_s, vt)
def min4(dst_s, vt):
    A(f'v_min3_u32 v{vt}, v{vt}, v{vt+1}, v{vt+2}\nv_min_u32 v{vt}, v{vt}, v{vt+3}\nv_readfirstlane_b32 s{dst_s}, v{vt}')

def loader_p1():
    A('L_loader:')
    A(f"""v_lshrrev_b32 v6, 3, v0
    v_and_b32 v7, 7, v0
    v_lshrrev_b32 v8, 4, v0
    v_xor_b32 v9, v7, v8
    v_lshlrev_b32 v9, 4, v9
    v_lshl_add_u32 v2, v6, 10, v9
    v_xor_b32 v3, 64, v2
    v_and_b32 v8, 1, v8
    v_lshlrev_b32 v8, 2, v8
    v_xor_b32 v9, v7, v8
    v_lshlrev_b32 v9, 4, v9
    v_mul_u32_u24 v4, 3072, v6
    v_add_u32 v4, v4, v9
    v_lshl_add_u32 v5, v6, 10, v9
    s_sub_u32 s{sT}, s{sW}, 4
    s_lshl_b32 s{sXo}, s{sRB}, 17
    s_lshl_b32 s{sT2}, s{sT}, 15
    s_add_u32 s{sXo}, s{sXo}, s{sT2}
    s_mul_i32 s{sWo}, s{sT}, {16*3072}
    s_lshl_b32 s{sT2}, s{sHG}, 7
    s_add_u32 s{sWo}, s{sWo}, s{sT2}
    s_lshl_b32 s{sN1}, s{sT}, 12
    s_add_u32 s{sN1}, s{sN1}, {RING0+SLOT}
    s_lshl_b32 s{sN2}, s{sT}, 11
    s_add_u32 s{sN2}, s{sN2}, {16384+RING0+SLOT}
    s_lshl_b32 s{sT}, s{sT}, 2
    v_mov_b32 v10, 0
    v_mov_b32 v11, s{sT}
    s_mov_b32 s{sIt}, 0
    s_mov_b32 s69, 1
    L_ld_loop:""")
    for j in range(4):
        A(f"""s_add_u32 m0, s{sN1}, {j*1024}
        s_add_u32 s{sT}, s{sXo}, {j*8192}
        buffer_load_dwordx4 v{2+(j&1)}, {srd(X)}, s{sT} offen lds""")
    for seg in range(3):
        for q in range(2):
            A(f"""s_add_u32 m0, s{sN2}, {seg*8192+q*1024}
            s_add_u32 s{sT}, s{sWo}, {seg*1024+q*8*3072}
            buffer_load_dwordx4 v4, {srd(Wq)}, s{sT} offen lds""")
    A(f"""s_add_u32 s{sXo}, s{sXo}, 128
    s_add_u32 s{sWo}, s{sWo}, {64*3072}
    s_add_u32 s69, s69, 1
    s_mov_b32 s{sT}, {SLOT}
    s_cmp_eq_u32 s69, 3
    s_cselect_b32 s{sT}, {-2*SLOT & 0xffffffff}, s{sT}
    s_cselect_b32 s69, 0, s69
    s_add_u32 s{sN1}, s{sN1}, s{sT}
    s_add_u32 s{sN2}, s{sN2}, s{sT}
    s_cmp_lg_u32 s{sIt}, 0
    s_cbranch_scc1 L_ld_sig
    s_barrier
    s_mov_b32 s{sIt}, 1
    s_branch L_ld_loop
    L_ld_sig:
    v_mov_b32 v12, s{sIt}
    s_add_u32 s{sIt}, s{sIt}, 1
    s_waitcnt vmcnt(10)
    ds_write_b32 v11, v12 offset:{L_CNT}
    s_cmp_lt_u32 s{sIt}, 3
    s_cbranch_scc1 L_ld_loop
    s_cmp_eq_u32 s{sIt}, 8
    s_cbranch_scc1 L_ld_done
    s_sub_u32 s{sT3}, s{sIt}, 2""")
    lds_min4(sT2, 16, 10, L_CNT+16)
    A(f"""s_cmp_ge_u32 s{sT2}, s{sT3}
    s_cbranch_scc1 L_ld_loop
    v_mov_b32 v12, s{sIt}
    s_waitcnt vmcnt(0)
    ds_write_b32 v11, v12 offset:{L_CNT}
    L_ld_spin:""")
    lds_min4(sT2, 16, 10, L_CNT+16)
    A(f"""s_cmp_ge_u32 s{sT2}, s{sT3}
    s_cbranch_scc1 L_ld_loop
    s_branch L_ld_spin
    L_ld_done:
    v_and_b32 v13, 3, v0
    v_lshlrev_b32 v13, 2, v13
    buffer_load_dword v7, v13, {srd(DBG)}, 0 offen sc1
    v_mov_b32 v12, 8
    s_waitcnt vmcnt(1)
    ds_write_b32 v11, v12 offset:{L_CNT}""")
    stamp(1)
    A(f"""v_and_b32 v6, 31, v0
    v_lshrrev_b32 v9, 5, v0
    v_lshlrev_b32 v9, 2, v9
    v_sub_u32 v6, v6, v9
    v_cvt_f32_i32 v6, v6
    s_mov_b32 s{sT}, {f2u(-BIG)}
    v_lshlrev_b32 v8, 4, v0""")
    for r in range(16):
        c = 8*(r//4) + r % 4
        A(f'v_sub_f32 v{MK+r}, {f2u(float(c))}, v6')
        A(f'v_med3_f32 v{MK+r}, v{MK+r}, 0, 1.0')
        A(f'v_mul_f32 v{MK+r}, s{sT}, v{MK+r}')
    for g in range(4):
        A(f'ds_write_b128 v8, {vr(MK+4*g,4)} offset:{L_M+g*1024}')
    preset_ones()
    common_consts()
    A(f"""s_mov_b32 s{sSpin}, 0
    s_mov_b32 s{sT}, 1
    s_waitcnt vmcnt(0)
    L_gate:
    v_cmp_ne_u32 vcc, s{sT}, v7
    s_cbranch_vccz L_gate_ok
    s_sleep 4
    buffer_load_dword v7, v13, {srd(DBG)}, 0 offen sc1
    s_add_u32 s{sSpin}, s{sSpin}, 1
    s_cmp_lt_u32 s{sSpin}, 0x10000
    s_waitcnt vmcnt(0)
    s_cbranch_scc1 L_gate
    L_gate_ok:""")
    nb_setup()
    for r in range(16): A(f'v_mov_b32 v{OA+r}, 0')
    if WOE:
        A('L_wo_spin:')
        lds_min4(sT2, 16, 12, L_CNT+16)
        A(f's_cmp_lt_u32 s{sT2}, 6\ns_cbranch_scc1 L_wo_spin')
        for j in range(16): wo_dma(j)
        stamp(2)
    else:
        poll_issue(4, 'y0')
        stamp(2)
        try_load(1, 'a')
    A("""    s_waitcnt lgkmcnt(0)
    s_barrier""")

def frag_reads(buf, ks):
    F = FR + 20*buf
    xs = [f'ds_read_b128 {vr(F+4*mt,4)}, v{2+ks} offset:{mt*4096}' for mt in range(2)]
    def wrd(seg): return [f'ds_read_b64_tr_b16 {vr(F+8+4*seg+2*j,2)}, v6 offset:{16384+seg*8192+ks*2048+j*512}' for j in range(2)]
    return [xs[0]] + wrd(0) + [xs[1]] + wrd(1) + wrd(2)
def mfmas(buf):
    F = FR + 20*buf
    L = []
    for seg in range(3):
        for mt in range(2):
            acc = vr(ACC + (seg*2+mt)*16, 16)
            x = vr(F+4*mt, 4); w = vr(F+8+4*seg, 4)
            a, b = (w, x) if seg < 2 else (x, w)
            L.append(f'{MFMA} {acc}, {a}, {b}, {acc}')
    return L

def compute_p1():
    A(f'''v_mov_b32 v12, 0
    v_lshlrev_b32 v13, 2, v0
    ds_write_b32 v13, v12 offset:{L_CNT}
    s_waitcnt lgkmcnt(0)
    s_barrier''')
    A(f'''s_cmp_lg_u32 s2, 0
    s_cbranch_scc1 L_noinit
    v_lshlrev_b32 v1, 4, v0
    v_mov_b32 v4, 0
    v_mov_b32 v5, 0
    v_mov_b32 v6, 0
    v_mov_b32 v7, 0
    s_lshl_b32 s{sT}, s{sW}, 13
    s_add_u32 s{sT}, s{sT}, {WS_FL}
    s_add_u32 s{sT2}, s{sT}, 8192
    L_init:
    buffer_store_dwordx4 v[4:7], v1, {srd(WS)}, s{sT} offen sc1
    s_add_u32 s{sT}, s{sT}, 1024
    s_cmp_lt_u32 s{sT}, s{sT2}
    s_cbranch_scc1 L_init
    L_noinit:''')
    A(f'''v_and_b32 v7, 31, v0
    v_lshrrev_b32 v8, 5, v0
    v_lshrrev_b32 v9, 1, v7
    v_and_b32 v9, 7, v9
    v_xor_b32 v9, v9, v8
    v_lshlrev_b32 v9, 4, v9
    v_lshl_add_u32 v2, v7, 7, v9
    s_lshr_b32 s{sT}, s{sW}, 1
    s_lshl_b32 s{sT}, s{sT}, 13
    s_add_u32 s{sT}, s{sT}, {RING0+SLOT}
    v_add_u32 v2, s{sT}, v2
    v_xor_b32 v3, 32, v2
    v_xor_b32 v4, 64, v2
    v_xor_b32 v5, 96, v2
    v_bfe_u32 v9, v0, 2, 2
    v_lshl_add_u32 v9, v8, 3, v9
    v_lshlrev_b32 v6, 7, v9
    v_bfe_u32 v9, v0, 4, 1
    v_lshlrev_b32 v9, 1, v9
    v_bfe_u32 v10, v0, 1, 1
    v_or_b32 v9, v9, v10
    v_bfe_u32 v10, v0, 3, 1
    s_and_b32 s{sT}, s{sW}, 1
    v_xor_b32 v10, s{sT}, v10
    v_lshl_or_b32 v9, v10, 2, v9
    v_lshl_add_u32 v6, v9, 4, v6
    v_and_b32 v9, 1, v0
    v_lshl_add_u32 v6, v9, 3, v6
    v_add_u32 v6, {RING0+SLOT}, v6
    s_lshl_b32 s{sT}, s{sW}, 2
    v_mov_b32 v13, s{sT}''')
    epi_addr()
    for i in range(96): A(f'v_mov_b32 v{ACC+i}, 0')
    preset_ones()
    common_consts()
    nb_setup(True)
    A(f's_mov_b32 s{sIt}, 0\ns_mov_b32 s69, 1\nL_c_spin0:')
    lds_min4(sT2, 8, 12, L_CNT)
    A(f's_cmp_lt_u32 s{sT2}, 1\ns_cbranch_scc1 L_c_spin0')
    A(f'''s_cmp_lg_u32 s2, 0
    s_cbranch_scc1 L_noann
    v_mov_b32 v14, 1
    s_mov_b64 exec, 1
    s_waitcnt vmcnt(0)
    buffer_store_dword v14, v13, {srd(DBG)}, 0 offen sc1
    s_mov_b64 exec, -1
    L_noann:''')
    stamp(1)
    Q = []
    def ds(txt, tag): A(txt); Q.append(tag)
    def wait(tag):
        n = len(Q) - 1 - max(i for i, t in enumerate(Q) if t == tag)
        A(f's_waitcnt lgkmcnt({n})')
        del Q[:len(Q)-n]
    TAGS = ['x0', 'wq', 'wq', 'x1', 'wk', 'wk', 'wv', 'wv']
    for r, t in zip(frag_reads(0, 0), TAGS): ds(r, (0, t))
    A('L_p1_loop:')
    for ks in range(4):
        cur = ks & 1
        M = mfmas(cur)
        nk = (ks+1) & 3
        R = [(r, (nk, t)) for r, t in zip(frag_reads(cur ^ 1, nk), TAGS)]
        if ks < 3:
            wait((ks, 'wq')); A(M[0]); ds(*R[0]); ds(*R[1])
            wait((ks, 'x1')); A(M[1]); ds(*R[2]); ds(*R[3])
            wait((ks, 'wk')); A(M[2]); ds(*R[4]); ds(*R[5])
            A(M[3]); ds(*R[6]); ds(*R[7])
            wait((ks, 'wv')); A(M[4])
            if ks == 2: ds(f'ds_read_b128 v[8:11], v12 offset:{L_CNT}', 'cnt')
            A(M[5])
        else:
            wait((ks, 'wq')); A(M[0])
            A(f"""s_add_u32 s{sIt}, s{sIt}, 1
            s_add_u32 s69, s69, 1
            s_mov_b32 s{sT}, {SLOT}
            s_cmp_eq_u32 s69, 3
            s_cselect_b32 s{sT}, {-2*SLOT & 0xffffffff}, s{sT}
            s_cselect_b32 s69, 0, s69
            v_mov_b32 v14, s{sIt}""")
            wait((ks, 'x1')); A(M[1])
            for i in range(2, 7): A(f'v_add_u32 v{i}, s{sT}, v{i}')
            wait('cnt')
            A(f'ds_write_b32 v13, v14 offset:{L_CNT+16}')
            min4(sT2, 8)
            A(M[2])
            A(f"""s_min_u32 s{sT3}, s{sIt}, 7
            s_cmp_gt_u32 s{sT2}, s{sT3}
            s_cbranch_scc1 L_c_ok
            L_c_spin:""")
            lds_min4(sT2, 8, 12, L_CNT)
            A(f"""s_cmp_le_u32 s{sT2}, s{sT3}
            s_cbranch_scc1 L_c_spin
            L_c_ok:""")
            Q[:] = []
            ds(*R[0]); ds(*R[1])
            A(M[3]); ds(*R[2]); ds(*R[3]); ds(*R[4])
            A(M[4]); ds(*R[5]); ds(*R[6]); ds(*R[7])
            A(f's_cmp_lt_u32 s{sIt}, 8')
            A(M[5])
            A('s_cbranch_scc1 L_p1_loop')
    stamp(2)
    A('L_c_spin2:')
    lds_min4(sT2, 8, 12, L_CNT+16)
    A(f's_cmp_lt_u32 s{sT2}, 7\ns_cbranch_scc1 L_c_spin2')
    tmp = FR
    def cvt8(acc, dst):
        for i in range(8): A(f'v_cvt_pk_bf16_f32 v{dst+i}, v{acc+2*i}, v{acc+2*i+1}')
    n = 0
    for mt in range(2):
        acc = ACC + (1*2+mt)*16; d = tmp + 8*(n % 5); n += 1
        cvt8(acc, d)
        for e in range(2):
            A(f'buffer_store_dwordx4 {vr(d+4*e,4)}, v152, {srd(WS)}, s{sE2 if e else sE1} offen offset:{mt*1024} sc1')
            A(f'ds_write_b128 v155, {vr(d+4*e,4)} offset:{e*4096+mt*1024}')
    for mt in range(2):
        acc = ACC + (2*2+mt)*16; d = tmp + 8*(n % 5); n += 1
        cvt8(acc, d)
        for a in range(2):
            A(f'buffer_store_dwordx4 {vr(d+4*a,4)}, v154, {srd(WS)}, s{sE3} offen offset:{mt*1024+a*512} sc1')
            A(f'ds_write_b128 v153, {vr(d+4*a,4)} offset:{16384+mt*1024+a*512}')
    for mt in range(2):
        acc = ACC + mt*16
        for i in range(8): A(f'v_pk_mul_f32 {vr(acc+2*i,2)}, {vr(acc+2*i,2)}, s[{sC}:{sC+1}] op_sel_hi:[1,0]')
        cvt8(acc, acc)
        for e in range(2):
            A(f'ds_write_b128 v155, {vr(acc+4*e,4)} offset:{32768+e*4096+mt*1024}')
    for i in range(1, 13): A(f'v_mov_b32 v{i}, v{216+i}')
    A('s_waitcnt lgkmcnt(0)\ns_barrier')
    stamp(3)

def epi_addr():
    A(f'''v_lshlrev_b32 v152, 4, v0
    v_bfe_u32 v10, v0, 4, 1
    v_and_b32 v11, 15, v0
    v_lshrrev_b32 v7, 5, v0
    v_lshl_or_b32 v11, v7, 4, v11
    v_lshlrev_b32 v11, 4, v11
    v_lshl_add_u32 v153, v10, 12, v11
    v_lshl_add_u32 v154, v10, 13, v11
    s_and_b32 s{sT}, s{sW}, 1
    s_lshr_b32 s{sT2}, s{sW}, 1
    s_lshl_b32 s{sN1}, s{sT}, 13
    s_lshl_b32 s{sT3}, s{sT2}, 11
    s_add_u32 s{sN1}, s{sN1}, s{sT3}
    s_add_u32 s{sN1}, s{sN1}, {L_B}
    v_add_u32 v155, s{sN1}, v152
    v_add_u32 v153, s{sN1}, v153
    s_lshl_b32 s{sE1}, s{sWG}, 15
    s_lshl_b32 s{sT}, s{sT}, 14
    s_add_u32 s{sE1}, s{sE1}, s{sT}
    s_add_u32 s{sE1}, s{sE1}, s{sT3}
    s_add_u32 s{sE2}, s{sE1}, 8192
    s_add_u32 s{sE3}, s{sE1}, 4096''')

UNITS = {0: dict(tiles=[0, 3, -1, -2, -5, -8], keep=(0, 1),
                 own=[(0,0,1),(1,0,0),(2,0,0),(3,0,0),(3,3,1)],
                 C=[(0,-5,0),(1,-5,0),(2,-5,0),(3,-5,1),(0,-8,1)]),
         1: dict(tiles=[1, 2, -3, -4, -6, -7], keep=(2, 3),
                 own=[(1,1,1),(2,1,0),(3,1,0),(2,2,1),(3,2,0)],
                 C=[(0,-6,0),(1,-6,0),(2,-6,1),(0,-7,0),(1,-7,1)])}
for U in UNITS.values(): U['B'] = [(q, t, 0) for t in U['tiles'][2:4] for q in range(4)]
CT = [None]
def kf(t): return KF + 4*CT[0].index(t)
def vf(t, a): return VF + 8*CT[0].index(t) + 4*a
def qk(u, sb):
    q, t, m = u
    return f'{MFMA} {vr(sb,16)}, {vr(kf(t),4)}, {vr(QF+4*q,4)}, {vr(MK,16) if m else "0"}'
def pv(u, sb, a, first):
    q, t, m = u
    o = vr(OA+16*q, 16)
    return f'{MFMA} {o}, {vr(vf(t,a),4)}, {vr(sb+8*a,4)}, {"0" if first else o}'
def segment(units, started, pre_qk=None, pre_pv=None, mid=None):
    n = len(units)
    def QK(i):
        if pre_qk: pre_qk(units[i])
        A(qk(units[i], SB+16*(i & 1)))
    def PV(i, a):
        u = units[i]
        if pre_pv: pre_pv(u)
        first = (u[0] not in started)
        started.add(u[0])
        A(pv(u, SB+16*(i & 1), a, first))
    QK(0)
    if n > 1: QK(1)
    for i in range(n):
        S = SB + 16*(i & 1)
        e = lambda r: A(f'v_exp_f32 v{S+r}, v{S+r}')
        def c(j):
            d = S + j if j < 4 else S + 4 + j
            A(f'v_cvt_pk_bf16_f32 v{d}, v{S+2*j}, v{S+2*j+1}')
        if mid and i in mid: mid[i]()
        e(0); e(1)
        if i > 0:
            PV(i-1, 1)
            if i+1 < n: QK(i+1)
        for j in range(7):
            e(2*j+2); c(j); e(2*j+3)
            if j == 4: PV(i, 0)
        A('s_nop 0'); c(7)
    PV(n-1, 1)

def nb_setup(hoist=False):
    n0 = len(A.L)
    A(f'''s_and_b32 s{sT}, s{sW}, 3
    s_lshl_b32 s{sT2}, s{sT}, 12
    s_add_u32 s{sT2}, s{sT2}, {L_B}
    v_lshlrev_b32 v2, 4, v0
    v_add_u32 v7, s{sT2}, v2
    v_and_b32 v11, 15, v0
    v_lshrrev_b32 v12, 5, v0
    v_lshl_or_b32 v11, v12, 4, v11
    v_lshlrev_b32 v3, 4, v11
    v_add_u32 v8, s{sT2}, v3
    v_add_u32 v3, 4096, v3
    s_lshl_b32 s{sKB1}, s{sWG}, 2
    s_add_u32 s{sKB1}, s{sKB1}, s{sT}
    s_lshl_b32 s{sKB1}, s{sKB1}, 13
    s_sub_u32 s{sKB2}, s{sKB1}, {2*32*8192}
    s_sub_u32 s{sKB1}, s{sKB1}, {32*8192}
    s_lshl_b32 s{sOb}, s{sWG}, 14
    s_lshl_b32 s{sT2}, s{sT}, 10
    s_add_u32 s{sOb}, s{sOb}, s{sT2}
    s_add_u32 s{sOb}, s{sOb}, {WS_O}
    s_and_b32 s{sT}, s{sW}, 1
    s_lshl_b32 s{sT2}, s{sT}, 10
    s_sub_u32 s{sT2}, s{sFl}, s{sT2}
    s_sub_u32 s{sT2}, s{sT2}, 1024
    v_mov_b32 v4, s{sT2}
    s_min_u32 s{sT2}, s{sRB}, 2
    s_lshr_b32 s{sNeed}, s{sW}, 1
    s_and_b32 s{sNeed}, s{sNeed}, 2
    s_xor_b32 s{sNeed}, s{sNeed}, s{sW}
    s_and_b32 s{sNeed}, s{sNeed}, 3
    s_cmp_lt_u32 s{sNeed}, s{sT2}
    s_cselect_b32 s{sPoll}, 1, 0
    s_lshl_b32 s{sPoll}, s{sPoll}, s{sT}
    s_mov_b32 s{sNeed}, 1
    v_lshrrev_b32 v1, 3, v0
    v_and_b32 v5, 7, v0
    v_bfe_u32 v6, v0, 4, 1
    v_lshlrev_b32 v6, 2, v6
    v_xor_b32 v5, v5, v6
    v_lshlrev_b32 v5, 4, v5
    v_lshl_add_u32 v1, v1, 10, v5
    s_and_b32 s{sT}, s{sW}, {3 if WOE else 7}
    s_lshl_b32 s{sWm}, s{sT}, {14 if WOE else 13}
    s_add_u32 s{sWm}, s{sWm}, {L_WO}
    s_lshl_b32 s{sWg}, s{sT}, {17 if WOE else 16}
    s_lshl_b32 s{sT}, s{sHG}, 7
    s_add_u32 s{sWg}, s{sWg}, s{sT}
    s_cmp_eq_u32 s{sRB}, 0
    s_cselect_b32 s{sEarly}, 1, 0
    s_mov_b32 s{sFB}, 0
    s_mul_i32 s{sT}, s{sW}, {XCH}
    s_add_u32 s{sT}, s{sT}, {L_X}
    v_add_u32 v5, s{sT}, v2
    v_lshl_add_u32 v10, v0, 2, s{sT}
    s_xor_b32 s{sT}, s{sW}, 4
    s_mul_i32 s{sT}, s{sT}, {XCH}
    s_add_u32 s{sT}, s{sT}, {L_X}
    v_add_u32 v6, s{sT}, v2
    v_lshl_add_u32 v11, v0, 2, s{sT}''')
    A(f'''s_andn2_b32 s{sN1}, s{sWG}, 7
    s_add_u32 s{sN1}, s{sN1}, s{sW}
    s_lshl_b32 s{sN1}, s{sN1}, 7
    s_add_u32 s{sN1}, s{sN1}, {WS_FL+64}
    v_mov_b32 v9, s{sN1}
    v_mov_b32 v12, 0''')
    if hoist: A.L[n0:] = [re.sub(r'\bv(1[0-2]|[1-9])\b', lambda m: f'v{216+int(m.group(1))}', l) for l in A.L[n0:]]

def wo_dma(j):
    A(f'''s_add_u32 m0, s{sWm}, {j*1024}
    s_add_u32 s{sT}, s{sWg}, {j*8192}
    buffer_load_dwordx4 v1, {srd(WO)}, s{sT} offen lds''')
def poll_issue(va, tag):
    A(f'''s_cmp_eq_u32 s{sPoll}, 0
    s_cbranch_scc1 L_pi{tag}
    s_mov_b64 exec, 1
    buffer_load_dword v15, v{va}, {srd(WS)}, 0 offen sc1
    s_mov_b64 exec, -1
    L_pi{tag}:''')
def poll_check(rdy, tag, wait):
    A(f's_cmp_eq_u32 s{sPoll}, 0\ns_cbranch_scc1 L_pc{tag}')
    wait()
    A(f'''v_readfirstlane_b32 s{sT}, v15
    v_mov_b32 v14, s{sPoll}
    s_cmp_lg_u32 s{sT}, 1
    s_cbranch_scc1 L_pc{tag}
    s_mov_b64 exec, 1
    ds_or_b32 v12, v14 offset:{rdy}
    s_mov_b64 exec, -1
    s_mov_b32 s{sPoll}, 0
    L_pc{tag}:
    ds_read_b32 v14, v12 offset:{rdy}
    s_waitcnt lgkmcnt(0)
    v_readfirstlane_b32 s{sT}, v14''')
def nb_loads(ty, tag, far=False):
    CT[0] = UNITS[ty]['tiles']
    def ld(t):
        base = sKB1 if t >= -4 else sKB2
        T = t % 4
        A(f'buffer_load_dwordx4 {vr(kf(t),4)}, v2, {srd(WS)}, s{base} offen offset:{T*1024}{LDSC}')
        A(f's_mov_b64 exec, s[{sHalf}:{sHalf+1}]')
        for a in range(2):
            A(f'buffer_load_dwordx4 {vr(vf(t,a),4)}, v3, {srd(WS)}, s{base} offen offset:{T*1024+a*512}{LDSC}')
        A('s_mov_b64 exec, -1')
    for t in (CT[0][4:6] if far else CT[0][2:4]): ld(t)
    A(f's_mov_b32 s{sEarly}, 1\ns_andn2_b32 s{sPoll}, s{sPoll}, s{sNeed}')
def kv_block(ty, tag):
    A(f's_mov_b32 s{sSpin}, 0\nL_pkv{ty}{tag}:')
    kv_check(ty, f'b{tag}')
    A(f'''s_cmp_eq_u32 s{sT}, s{sNeed}
    s_cbranch_scc1 L_pkv{ty}{tag}_ok
    s_add_u32 s{sSpin}, s{sSpin}, 1
    s_sleep {SLP}
    s_cmp_lt_u32 s{sSpin}, 0x40000
    s_cbranch_scc1 L_pkv{ty}{tag}
    L_pkv{ty}{tag}_ok:''')
def kv_check(ty, tag):
    poll_check(R_KV, f'k{ty}{tag}', lambda: A('s_waitcnt vmcnt(0)'))
    A(f's_andn2_b32 s{sPoll}, s{sPoll}, s{sT}')
    poll_issue(4, f'k{ty}{tag}')
    A(f's_and_b32 s{sT}, s{sT}, s{sNeed}')
def poll_step(ty, tag):
    A(f's_cmp_eq_u32 s{sPoll}, 0\ns_cbranch_scc1 L_ps{ty}{tag}')
    kv_check(ty, tag)
    A(f'L_ps{ty}{tag}:')
def try_load(ty, tag, nopoll=False):
    A(f's_cmp_lg_u32 s{sEarly}, 0\ns_cbranch_scc1 L_tl{ty}{tag}')
    if nopoll: A(f'ds_read_b32 v14, v12 offset:{R_KV}\ns_waitcnt lgkmcnt(0)\nv_readfirstlane_b32 s{sT}, v14\ns_and_b32 s{sT}, s{sT}, s{sNeed}')
    else: kv_check(ty, tag)
    A(f's_cmp_lg_u32 s{sT}, s{sNeed}\ns_cbranch_scc1 L_tl{ty}{tag}')
    nb_loads(ty, tag)
    A(f'L_tl{ty}{tag}:')

def publish(sa, cnt, last, tag, rdy=None):
    A(f'''v_mov_b32 v14, 1
    s_mov_b64 exec, 1
    s_waitcnt vmcnt(0)
    ds_add_rtn_u32 v13, v12, v14 offset:{cnt}
    s_waitcnt lgkmcnt(0)
    v_readfirstlane_b32 s{sT}, v13
    s_cmp_lg_u32 s{sT}, {last}
    s_cbranch_scc1 L_pub{tag}
    buffer_store_dword v14, v12, {srd(WS)}, s{sa} offen sc1''')
    if rdy:
        A(f's_lshl_b32 s{sT}, s{sHG}, 2\ns_lshl_b32 s{sT}, 1, s{sT}\nv_mov_b32 v13, s{sT}\nds_or_b32 v12, v13 offset:{rdy}')
    A(f'L_pub{tag}:\ns_mov_b64 exec, -1')

RG = SB
TRY = {0: (2, 4), 1: (2, 4)}
PRIO = opt('prio', 1)
PV2 = opt('pv', 2)
def attention(ty):
    U = UNITS[ty]; CT[0] = U['tiles']
    own = U['tiles'][:2]
    if ty == 0:
        publish(sFl, C_KV, 3, 'k')
        if ST2 == 2: stamp(1)
        poll_issue(4, 'x0')
        if WARM & 1:
            A(f'''v_and_b32 v13, 15, v0
            v_lshlrev_b32 v13, 7, v13
            v_lshrrev_b32 v14, 4, v0
            v_lshl_add_u32 v13, v14, 12, v13
            buffer_load_dword v250, v13, {srd(WS)}, s{sE1} offen''')
    for q in range(4): A(f'ds_read_b128 {vr(QF+4*q,4)}, v7 offset:{32768+q*1024}')
    for t in own: A(f'ds_read_b128 {vr(kf(t),4)}, v7 offset:{t*1024}')
    for g in range(4): A(f'ds_read_b128 {vr(MK+4*g,4)}, v2 offset:{L_M+g*1024}')
    A(f's_mov_b64 exec, s[{sHalf}:{sHalf+1}]')
    for t in own:
        for a in range(2): A(f'ds_read_b128 {vr(vf(t,a),4)}, v8 offset:{16384+t*1024+a*512}')
    A('s_mov_b64 exec, -1')
    A('s_waitcnt lgkmcnt(4)')
    started = set() if ty == 0 else {0}
    MID = {0: {3: lambda: try_load(0, 'm3'), 4: lambda: try_load(0, 'm4', True)},
           1: {3: lambda: poll_issue(4, 'y3'), 4: lambda: try_load(1, 'm4', PV2 == 0)}}
    if PV2 == 2: MID[0] = {2: lambda: try_load(0, 'm3'), 4: lambda: try_load(0, 'm4')}
    done = [False]
    def pre_pv(u):
        if not done[0]: A('s_waitcnt lgkmcnt(0)'); done[0] = True
    segment(U['own'], started, pre_pv=pre_pv, mid=MID[ty])
    stamp(4)
    Lfin = f'L_fin{ty}'
    A(f'''s_cmp_lg_u32 s{sEarly}, 0
    s_cbranch_scc1 L_have{ty}''')
    kv_block(ty, 'n')
    nb_loads(ty, 'b')
    A(f'L_have{ty}:')
    if opt('exp', 0) and ty == 1: A('s_branch L_have0')
    stamp(5)
    A(f's_cmp_eq_u32 s{sRB}, 0\ns_cbranch_scc1 L_z{ty}')
    LB = f'L_B{ty}'
    nd = [0]
    def dm(j):
        def f():
            if not WOE: wo_dma(j); nd[0] += 1
        return f
    A(f's_cmp_eq_u32 s{sRB}, 1\ns_cbranch_scc1 {LB}_only')
    def mk_wait(order):
        seen = set()
        def w(u):
            t = u[1]
            if t not in seen:
                seen.add(t)
                k = order.index(t)
                A(f's_waitcnt vmcnt({(3 if k == 0 else 3*(len(order)-1-k))+nd[0]})')
        return w
    for r in range(16): A(f'v_sub_f32 v{MK+r}, {f2u(-BIG)}, v{MK+r}')
    if PRIO:
        dm0 = dm
        def dm(j):
            f0 = dm0(j)
            def f():
                f0()
                if PRIO == 1 and ty == 1 and j in (0, PSW): A(f's_setprio {1 if j == 0 else 0}')
                if PRIO == 2 and ty == 1: A(f's_setprio {1 - (j & 1)}')
                if PRIO == 3 and ty == 1 and j == 0: A('s_setprio 1')
            return f
    midC = {i+WOS: dm(i) for i in range(8)}
    def farload():
        A(f's_mov_b32 s{sNeed}, 2')
        kv_block(ty, 'f')
        nb_loads(ty, 'f', True)
    midC[CU] = farload
    segment(U['B'] + U['C'], set(started), pre_qk=mk_wait(U['tiles'][2:6]), mid=midC)
    A(f's_branch {Lfin}\nL_z{ty}:')
    for j in range(0 if WOE else 8): wo_dma(j)
    A(f's_branch {Lfin}')
    nd[0] = 0
    A(f'{LB}_only:')
    segment(U['B'], set(started), pre_qk=mk_wait(U['tiles'][2:4]), mid={i: dm(i) for i in range(8)})
    A(f'{Lfin}:')
    if PRIO: A('s_setprio 0')
    A('s_nop 10')
    stamp(6)
    send = [q for q in range(4) if q not in U['keep']]
    for a, q in enumerate(send):
        o = OA + 16*q
        A(f'ds_write_b128 v5, {vr(o,4)} offset:{a*2048}\nds_write_b128 v5, {vr(o+4,4)} offset:{a*2048+1024}')
        A(f'ds_write_b32 v10, v{o+8} offset:{4096+a*256}')
    A('s_waitcnt vmcnt(0) lgkmcnt(0)')
    if ST2 == 1: stamp(1)
    A('s_barrier')
    if ST2 == 1: stamp(2)
    A(f's_lshl_b32 s{sT}, s{sW}, 2\ns_lshl_b32 s{sPoll}, 1, s{sT}\ns_cmp_eq_u32 s{sW}, s{sHG}\ns_cselect_b32 s{sPoll}, 0, s{sPoll}')
    poll_issue(9, f'o{ty}')
    for a in range(2):
        A(f'ds_read_b32 v{RG+16+a}, v11 offset:{4096+a*256}')
        A(f'ds_read_b128 {vr(RG+8*a,4)}, v6 offset:{a*2048}\nds_read_b128 {vr(RG+8*a+4,4)}, v6 offset:{a*2048+1024}')
    for a, q in enumerate(U['keep']):
        o = OA + 16*q
        A(f's_waitcnt lgkmcnt({3-3*a})')
        A(f'v_add_f32 v{RG+16+a}, v{RG+16+a}, v{o+8}')
        for j in range(8): A(f'v_add_f32 v{RG+8*a+j}, v{RG+8*a+j}, v{o+j}')
    if ty == 1:
        for j in range(8): A(f'v_mov_b32 v{QF+j}, v{QF+8+j}')

def finalize():
    A(f'''L_final:
    v_rcp_f32 v{RG+18}, v{RG+16}
    v_rcp_f32 v{RG+19}, v{RG+17}
    s_lshr_b32 s{sT}, s{sW}, 2
    s_lshl_b32 s{sT}, s{sT}, 13
    s_add_u32 s{sT}, s{sT}, s{sOb}
    s_add_u32 s{sT2}, s{sT}, 4096''')
    for a in range(2):
        o = RG + 8*a
        for j in range(8): A(f'v_mul_f32 v{o+j}, v{o+j}, v{RG+18+a}')
        for j in range(4): A(f'v_cvt_pk_bf16_f32 v{PK+4*a+j}, v{o+2*j}, v{o+2*j+1}')
        A(f'buffer_store_dwordx4 {vr(PK+4*a,4)}, v2, {srd(WS)}, s{sT2 if a else sT} offen sc1')
    for a in range(2):
        o = RG + 8*a; l = RG + 16 + a; m = f's[{70 if a else 58}:{71 if a else 59}]'
        A(f'v_cmp_lt_f32 {m}, s{sLo}, v{l}\nv_cmp_gt_f32 vcc, s{sHi}, v{l}\ns_and_b64 {m}, {m}, vcc')
        A(f'v_add_f32 v{l+4}, |v{o}|, |v{o+1}|')
        for j in range(2, 8): A(f'v_add_f32 v{l+4}, v{l+4}, |v{o+j}|')
    A(f'''v_add_f32 v{RG+20}, v{RG+20}, v{RG+21}
    s_and_b64 s[58:59], s[58:59], s[70:71]
    s_mov_b32 s{sT}, 0x7f800000
    v_cmp_gt_f32 vcc, s{sT}, v{RG+20}
    s_and_b64 s[58:59], s[58:59], vcc
    s_cmp_eq_u64 s[58:59], -1
    s_cselect_b32 s{sT}, {0 if FORCE_FB else 1}, 0
    s_or_b32 s{sT}, s{sT}, s{sFB}
    s_cbranch_scc0 L_fb''')
    if ST2: stamp(3 if ST2 == 1 else 2)

def fallback():
    A('L_fb:')
    sG, sG0, sQ, sA, sBv, sAd = 42, 43, 44, 45, 46, 47
    S = OA + 32; CB = OA + 48; MX = 248
    for g in range(4): A(f'ds_read_b128 {vr(MK+4*g,4)}, v2 offset:{L_M+g*1024}')
    A(f'''s_mov_b32 s{sFB}, 1
    s_lshr_b32 s{sQ}, s{sW}, 2
    s_lshl_b32 s{sQ}, s{sQ}, 1
    s_lshl_b32 s{sT}, s{sRB}, 2
    s_add_u32 s{sQ}, s{sQ}, s{sT}
    s_max_u32 s{sG0}, s{sQ}, 8
    s_sub_u32 s{sG0}, s{sG0}, 8
    v_mov_b32 v{MX}, 0xff800000
    v_mov_b32 v{MX+1}, 0xff800000''')
    for r in range(32): A(f'v_mov_b32 v{OA+r}, 0')
    A('s_waitcnt lgkmcnt(0)')
    for ps in range(2):
        A(f'''s_mov_b32 s{sG}, s{sG0}
        L_fbl{ps}:
        s_lshr_b32 s{sT}, s{sG}, 2
        s_sub_u32 s{sT}, s{sT}, s{sRB}
        s_add_u32 s{sT}, s{sT}, 2
        s_lshl_b32 s{sT}, s{sT}, 18
        s_add_u32 s{sAd}, s{sKB2}, s{sT}
        s_and_b32 s{sT}, s{sG}, 3
        s_lshl_b32 s{sT}, s{sT}, 10
        s_add_u32 s{sAd}, s{sAd}, s{sT}
        buffer_load_dwordx4 {vr(KF,4)}, v2, {srd(WS)}, s{sAd} offen sc1
        s_mov_b64 exec, s[{sHalf}:{sHalf+1}]
        buffer_load_dwordx4 {vr(VF,4)}, v3, {srd(WS)}, s{sAd} offen sc1
        buffer_load_dwordx4 {vr(VF+4,4)}, v3, {srd(WS)}, s{sAd} offen offset:512 sc1
        s_mov_b64 exec, -1
        s_waitcnt vmcnt(0)''')
        for a in range(2):
            A(f'''s_sub_u32 s{sT}, s{sQ}, s{sG}
            s_add_u32 s{sT}, s{sT}, {a}
            s_cmp_eq_u32 s{sT}, 0
            s_cselect_b32 s{sA}, 1.0, 0
            s_cmp_eq_u32 s{sT}, 8
            s_cselect_b32 s{sA}, -1.0, s{sA}
            s_cmp_ge_u32 s{sT}, 8
            s_cselect_b32 s{sBv}, {f2u(-BIG)}, 0''')
            A(f'v_mov_b32 v14, s{sBv}')
            for r in range(16): A(f'v_fma_f32 v{CB+r}, v{MK+r}, s{sA}, v14')
            if ps:
                for r in range(16): A(f'v_sub_f32 v{CB+r}, v{CB+r}, v{MX+a}')
            A(f'{MFMA} {vr(S,16)}, {vr(KF,4)}, {vr(QF+4*a,4)}, {vr(CB,16)}')
            if ps == 0:
                for j in range(8): A(f'v_max3_f32 v{MX+a}, v{S+2*j}, v{S+2*j+1}, v{MX+a}')
            else:
                for r in range(16): A(f'v_exp_f32 v{S+r}, v{S+r}')
                for j in range(8): A(f'v_cvt_pk_bf16_f32 v{S+j if j < 4 else S+4+j}, v{S+2*j}, v{S+2*j+1}')
                for h in range(2):
                    A(f'{MFMA} {vr(OA+16*a,16)}, {vr(VF+4*h,4)}, {vr(S+8*h,4)}, {vr(OA+16*a,16)}')
                A('s_nop 7')
        A(f'''s_add_u32 s{sG}, s{sG}, 1
        s_add_u32 s{sT}, s{sQ}, 1
        s_cmp_le_u32 s{sG}, s{sT}
        s_cbranch_scc1 L_fbl{ps}''')
        if ps == 0:
            for a in range(2):
                A(f'v_mov_b32 v14, v{MX+a}\ns_nop 1\nv_permlane32_swap_b32 v{MX+a}, v14\nv_max_f32 v{MX+a}, v{MX+a}, v14')
    A('s_nop 7')
    for a in range(2):
        for j in range(8): A(f'v_mov_b32 v{RG+8*a+j}, v{OA+16*a+j}')
        A(f'v_mov_b32 v{RG+16+a}, v{OA+16*a+8}')
    A('s_branch L_final')

WF = 16; OF = 144; AC3 = 208
def wait_chain(sreg, nmax, per, extra, tag):
    for n in range(nmax, 0, -1):
        A(f's_cmp_ge_u32 s{sreg}, {n}\ns_cbranch_scc1 L_wc{tag}_{n}')
    A(f's_waitcnt vmcnt({extra})')
    for n in range(1, nmax+1):
        A(f'L_wc{tag}_{n}:\ns_waitcnt vmcnt({per*n+extra})')
def wait_dyn(_):
    A(f's_bcnt1_i32_b32 s{sT2}, s{sNew}')
    wait_chain(sT2, 4, 4, 0, 'f')
def o_issue(tag, wait):
    poll_check(R_O, f'o{tag}', wait)
    A(f'''s_and_b32 s{sT2}, s{sW}, 4
    s_lshl_b32 s{sT2}, s{sT2}, 2
    s_lshr_b32 s{sT}, s{sT}, s{sT2}
    s_cmp_ge_u32 s{sSpin}, 0x40000
    s_cselect_b32 s{sT}, -1, s{sT}
    s_and_b32 s{sT}, s{sT}, 0x1111
    s_andn2_b32 s{sNew}, s{sT}, s{sIss}
    s_or_b32 s{sIss}, s{sIss}, s{sNew}''')
    if tag == 'b': A(f's_or_b32 s{sT}, s{sNew}, s{sM}\ns_cbranch_scc1 L_oi{tag}s\ns_sleep {SLP}\nL_oi{tag}s:')
    poll_issue(9, f'o{tag}')
    for g in range(4):
        A(f's_bitcmp0_b32 s{sNew}, {4*g}\ns_cbranch_scc1 L_oi{tag}{g}\ns_add_u32 s{sT}, s{sN2}, {g*16384}')
        for j in range(4):
            A(f'buffer_load_dwordx4 {vr(OF+16*g+4*j,4)}, v2, {srd(WS)}, s{sT} offen offset:{j*1024}{LDSC}')
        A(f'L_oi{tag}{g}:')
def phase3():
    A(f'''s_andn2_b32 s{sN2}, s{sWG}, 7
    s_and_b32 s{sT3}, s{sW}, 4
    s_add_u32 s{sN2}, s{sN2}, s{sT3}
    s_lshl_b32 s{sN2}, s{sN2}, 14
    s_and_b32 s{sT3}, s{sW}, 3
    s_lshl_b32 s{sT3}, s{sT3}, 12
    s_add_u32 s{sN2}, s{sN2}, s{sT3}
    s_add_u32 s{sN2}, s{sN2}, {WS_O}
    s_mov_b32 s{sIss}, 0
    s_mov_b32 s{sSpin}, 0''')
    A(f'''v_bfe_u32 v3, v0, 2, 2
    v_lshrrev_b32 v8, 5, v0
    v_lshl_add_u32 v3, v8, 2, v3
    v_lshlrev_b32 v11, 7, v3
    v_bfe_u32 v3, v0, 4, 1
    v_lshlrev_b32 v3, 1, v3
    v_bfe_u32 v10, v0, 1, 1
    v_or_b32 v3, v3, v10
    v_bfe_u32 v10, v0, 3, 1
    v_lshl_or_b32 v3, v10, 2, v3
    v_lshl_add_u32 v11, v3, 4, v11
    v_and_b32 v3, 1, v0
    v_lshl_add_u32 v11, v3, 3, v11
    s_lshr_b32 s{sT3}, s{sW}, 2
    s_lshl_b32 s{sT3}, s{sT3}, 15
    s_add_u32 s{sT3}, s{sT3}, {L_WO}
    v_add_u32 v11, s{sT3}, v11
    v_xor_b32 v7, 64, v11''')
    def wfr(lo, hi):
        for i in range(lo, hi):
            for nt in range(2):
                for j in range(2):
                    A(f'ds_read_b64_tr_b16 {vr(WF+8*i+4*nt+2*j,2)}, v{7 if nt else 11} offset:{i*2048+j*1024}')
    for r in range(32): A(f'v_mov_b32 v{AC3+r}, 0')
    A(f'''v_and_b32 v10, 31, v0
    v_lshlrev_b32 v10, 11, v10
    v_lshl_add_u32 v10, v8, 4, v10
    s_and_b32 s{sT}, s{sW}, 3
    s_lshl_b32 s{sN1}, s{sRB}, 2
    s_add_u32 s{sN1}, s{sN1}, s{sT}
    s_lshl_b32 s{sN1}, s{sN1}, 16
    s_lshl_b32 s{sT}, s{sB}, 10
    s_add_u32 s{sN1}, s{sN1}, s{sT}
    s_lshl_b32 s{sT}, s{sHG}, 7
    s_add_u32 s{sN1}, s{sN1}, s{sT}
    s_and_b32 s{sT}, s{sW}, 4
    s_lshl_b32 s{sT}, s{sT}, 4
    s_add_u32 s{sN1}, s{sN1}, s{sT}''')
    if ST2 == 1: stamp(4)
    publish(sFo, C_O, 7, 'o', R_O)
    if WARM & 2:
        A(f'''v_and_b32 v13, 7, v0
        v_lshlrev_b32 v13, 7, v13
        v_bfe_u32 v14, v0, 3, 1
        v_lshl_add_u32 v13, v14, 12, v13
        s_lshr_b32 s{sT}, s{sW}, 2
        s_lshl_b32 s{sT}, s{sT}, 13
        s_add_u32 s{sT}, s{sT}, s{sOb}
        s_mov_b64 exec, 0xffff
        buffer_load_dword v250, v13, {srd(WS)}, s{sT} offen
        s_mov_b64 exec, -1''')
    stamp(7)
    o_issue('a', lambda: None)
    stamp(8)
    if not WPG: wfr(0, 16)
    if ST2 == 2: stamp(4)
    A(f'''s_waitcnt lgkmcnt(0)
    L_p3l:
    s_mov_b32 s{sM}, s{sNew}
    s_mov_b32 s{sL}, 0
    s_mov_b32 s{sNew}, 0
    s_cmp_eq_u32 s{sIss}, 0x1111
    s_cbranch_scc1 L_p3m
    s_add_u32 s{sSpin}, s{sSpin}, 1
    s_bcnt1_i32_b32 s{sT2}, s{sM}''')
    o_issue('b', lambda: wait_chain(sT2, 3, 4, 0, 'p'))
    stamp(8)
    A(f's_bcnt1_i32_b32 s{sL}, s{sNew}\nL_p3m:')
    for g in range(4):
        A(f's_bitcmp0_b32 s{sM}, {4*g}\ns_cbranch_scc1 L_om{g}')
        A(f's_lshr_b32 s{sT}, s{sM}, {4*g+4}\ns_bcnt1_i32_b32 s{sT2}, s{sT}\ns_add_u32 s{sT2}, s{sT2}, s{sL}')
        if WPG: wfr(4*g, 4*g+4)
        wait_chain(sT2, 3, 4, 0, f'm{g}')
        for j in range(4):
            for nt in range(2):
                acc = vr(AC3+16*nt, 16); i = 4*g + j
                if WPG: A(f's_waitcnt lgkmcnt({14-4*j-2*nt})')
                A(f'{MFMA} {acc}, {vr(WF+8*i+4*nt,4)}, {vr(OF+4*i,4)}, {acc}')
        A(f'L_om{g}:')
    A(f'''s_cmp_lg_u32 s{sIss}, 0x1111
    s_cbranch_scc1 L_p3l
    s_cmp_lg_u32 s{sNew}, 0
    s_cbranch_scc1 L_p3l''')
    A(f's_lshr_b32 s{sT2}, s{sW}, 2\ns_nop 7\ns_nop 3')
    stamp(9)
    for kh in range(2):
        if kh == 0: A(f's_cmp_lg_u32 s{sT2}, 0\ns_cbranch_scc1 L_x1')
        else: A('L_x1:')
        send = AC3 + 16*(1-kh); keep = AC3 + 16*kh
        for g in range(4): A(f'ds_write_b128 v6, {vr(send+4*g,4)} offset:{g*1024}')
        A('s_waitcnt lgkmcnt(0)\ns_barrier')
        for g in range(4): A(f'ds_read_b128 {vr(16+4*g,4)}, v5 offset:{g*1024}')
        for g in range(4):
            A(f's_waitcnt lgkmcnt({3-g})')
            for r in range(4): A(f'v_add_f32 v{keep+4*g+r}, v{keep+4*g+r}, v{16+4*g+r}')
            for j in range(2): A(f'v_cvt_pk_bf16_f32 v{32+2*g+j}, v{keep+4*g+2*j}, v{keep+4*g+2*j+1}')
        if kh == 0: A('s_branch L_x2')
    A('L_x2:\ns_nop 1')
    for p in range(2):
        A(f'v_permlane32_swap_b32 v{32+4*p}, v{34+4*p}\nv_permlane32_swap_b32 v{33+4*p}, v{35+4*p}')
        A(f'buffer_store_dwordx4 {vr(32+4*p,4)}, v10, {srd(OUT)}, s{sN1} offen offset:{32*p}' + ['', ' sc1', ' nt', ' sc0 sc1', ' sc1 nt'][OST])
    if PROF:
        A('s_waitcnt vmcnt(0)')
        stamp(10)
        A(f'''s_lshl_b32 s{sT}, s2, 3
        s_add_u32 s{sT}, s{sT}, s{sW}
        s_lshl_b32 s{sT}, s{sT}, 7
        s_add_u32 s{sT}, s{sT}, {WS_ST}
        v_mov_b32 v1, 0''')
        for i in range(11):
            A(f'v_mov_b32 v2, s{sST+2*i}\nbuffer_store_dword v2, v1, {srd(WS)}, s{sT} offen offset:{4*i}')
        A(f'v_mov_b32 v2, s100\nbuffer_store_dword v2, v1, {srd(WS)}, s{sT} offen offset:60')
        A('s_mov_b32 s99, s100\ns_memrealtime s[100:101]\ns_waitcnt lgkmcnt(0)')
        A(f'v_mov_b32 v2, s100\nbuffer_store_dword v2, v1, {srd(WS)}, s{sT} offen offset:56')
    if DBGP:
        A(f'''s_mov_b64 exec, 1
        v_mov_b32 v2, s100
        buffer_atomic_umax v2, v1, {srd(DBG)}, 0 offen offset:4
        s_not_b32 s{sT}, s99
        v_mov_b32 v3, s{sT}
        buffer_atomic_umax v3, v1, {srd(DBG)}, 0 offen offset:8
        s_cmp_lg_u32 s2, 77
        s_cbranch_scc1 L_end
        s_cmp_eq_u32 s{sW}, 4
        s_cbranch_scc1 L_dbg4
        s_cmp_lg_u32 s{sW}, 0
        s_cbranch_scc1 L_end''')
        for i in range(1, 11):
            A(f's_sub_u32 s{sT}, s{sST+2*i}, s{sST}\nv_mov_b32 v2, s{sT}\nbuffer_store_dword v2, v1, {srd(DBG)}, 0 offen offset:{8+4*i}')
        A('s_branch L_end\nL_dbg4:')
        for k, i in enumerate((5, 6, 8)):
            A(f's_sub_u32 s{sT}, s{sST+2*i}, s{sST}\nv_mov_b32 v2, s{sT}\nbuffer_store_dword v2, v1, {srd(DBG)}, 0 offen offset:{52+4*k}')
    A('L_end:\ns_endpgm')

prologue()
compute_p1()
attention(0)
A('s_branch L_final')
loader_p1()
stamp(3)
attention(1)
finalize()
phase3()
fallback()
body, nadd = A.finish()
hdr = open('cdna_kernels/' + NAME + '.s.ref').read().split('; Override launch')[0]
out = hdr + f'''; @launch grid=(256,1,1) block=(512,1,1) lds=163840
.amdgcn_target "amdgcn-amd-amdhsa--gfx950"
.text
.globl {NAME}_kernel
.p2align 8
.type {NAME}_kernel,@function
{NAME}_kernel:
{body}.section .rodata,"a"
.p2align 6
.amdhsa_kernel {NAME}_kernel
  .amdhsa_next_free_vgpr 256
  .amdhsa_next_free_sgpr 102
  .amdhsa_accum_offset 256
  .amdhsa_group_segment_fixed_size 0
  .amdhsa_kernarg_size 72
  .amdhsa_user_sgpr_count 2
  .amdhsa_user_sgpr_kernarg_segment_ptr 1
  .amdhsa_system_sgpr_workgroup_id_x 1
.end_amdhsa_kernel
'''
dst = [a for a in sys.argv[1:] if not a.startswith('--')]
open(dst[0] if dst else 'cdna_kernels/' + NAME + '.s', 'w').write(out)
print('nops inserted', nadd, 'lines', body.count('\n'))
```

```python
import sys, struct, re
from asmlib import Asm
NAME = 'concat_heads__sliding_block__sliding_block__prompt'
DBGP = '--dbg' in sys.argv
PROF = '--prof' in sys.argv or DBGP
def opt(name, d):
    for a in sys.argv:
        if a.startswith('--'+name+'='): return int(a.split('=')[1])
    return d
DEP = opt('dep', 2); ROT = opt('rot', 0); PF = opt('pf', 1); LDSC = ' sc1' if opt('ldsc', 1) else ''
FORCE_FB = '--force-fb' in sys.argv
def f2u(x): return struct.unpack('<I', struct.pack('<f', x))[0]
A = Asm()
SLOT = 40960
WS_O = 8 << 20; WS_FL = 12 << 20; WS_ST = 13 << 20; WS_SZ = 14 << 20
RING0 = 40960; L_M = 0; L_CNT = 4096; L_WO = 4608; L_B = 70144; L_X = 122880
CSC = 0.25 * 1.4426950408889634
BIG = 1e30
sW = 3; X, Wq, WO, WS, OUT, DBG = 4, 8, 12, 16, 20, 24
sB, sRB, sHG, sWG = 28, 29, 30, 31
sXo, sWo, sSl, sIt, sT, sT2, sN1, sN2 = 50, 51, 52, 53, 54, 55, 56, 57
sHalf = 60; sC = 62; sSpin = 63; sFl = 64; sOb = 65; sT3 = 66; sLo = 67; sHi = 68
sST = 72
nst = [0]
def srd(i): return f's[{i}:{i+3}]'
def vr(a, n): return f'v[{a}:{a+n-1}]'
def stamp(idx):
    if PROF:
        A(f's_memtime s[{sST+2*idx}:{sST+2*idx+1}]\ns_waitcnt lgkmcnt(0)')
QF = 16; OA = 32; SB = 96; MK = 128; KF = 144; VF = 168; PK = 240
sEarly, sKB1, sKB2, sIss, sNew, sFB = 32, 33, 34, 35, 36, 37
sE1, sE2, sE3 = 39, 40, 41
sFo, sWm, sWg = 38, 48, 49
sM, sL = 42, 43
sPoll, sNeed = 50, 51
C_KV, C_O, R_KV, R_O = L_CNT+32, L_CNT+36, L_CNT+48, L_CNT+52
SLP = opt('slp', 2)
XCH = 4608
WPG = opt('wpg', 1); PSW = opt('psw', 6); MAP = opt('map', 0)
WARM = opt('warm', 0)
WOE = opt('woe', 0); WOS = opt('wos', 4); CU = opt('cu', 2)
ST2 = opt('st2', 0)
OST = opt('ost', 0)
ACC = 16; FR = 112
MFMA = 'v_mfma_f32_32x32x16_bf16'

def prologue():
    A(f'''s_cmp_ge_u32 s2, 256
    s_cbranch_scc1 L_end
    s_load_dwordx8 s[32:39], s[0:1], 0
    s_load_dwordx8 s[40:47], s[0:1], 32
    s_load_dwordx2 s[48:49], s[0:1], 64''')
    if PROF: A(f's_memrealtime s[100:101]')
    A(f'''v_lshrrev_b32 v1, 6, v0
    v_and_b32 v0, 63, v0
    s_and_b32 s{sT}, s2, 7
    v_readfirstlane_b32 s{sW}, v1
    s_lshr_b32 s{sT2}, s2, 3
    s_lshr_b32 s{sB}, s{sT}, 2
    s_and_b32 s{sT}, s{sT}, 3
    s_lshl_b32 s{sT}, s{sT}, 2
    s_lshr_b32 s{sRB}, s{sT2}, 3
    s_add_u32 s{sRB}, s{sRB}, s{sT}
    s_and_b32 s{sHG}, s{sT2}, 7''')
    if MAP: A(f'''s_bfe_u32 s{sRB}, s2, 0x10001
    s_lshl_b32 s{sRB}, s{sRB}, 3
    s_lshr_b32 s{sT}, s{sT2}, 2
    s_add_u32 s{sRB}, s{sRB}, s{sT}
    s_and_b32 s{sHG}, s2, 1
    s_lshl_b32 s{sHG}, s{sHG}, 2
    s_and_b32 s{sT}, s{sT2}, 3
    s_add_u32 s{sHG}, s{sHG}, s{sT}''')
    A(f'''    s_lshl_b32 s{sWG}, s{sB}, 4
    s_add_u32 s{sWG}, s{sWG}, s{sRB}
    s_lshl_b32 s{sWG}, s{sWG}, 3
    s_add_u32 s{sWG}, s{sWG}, s{sHG}
    s_mov_b32 s{X+2}, 0x200000
    s_mov_b32 s{X+3}, 0x20000
    s_mov_b32 s{Wq+2}, 0x180000
    s_mov_b32 s{Wq+3}, 0x20000
    s_mov_b32 s{WO+2}, 0x80000
    s_mov_b32 s{WO+3}, 0x20000
    s_mov_b32 s{WS+2}, {WS_SZ}
    s_mov_b32 s{WS+3}, 0x20000
    s_mov_b32 s{OUT+2}, 0x400000
    s_mov_b32 s{OUT+3}, 0x20000
    s_mov_b32 s{DBG+2}, 256
    s_mov_b32 s{DBG+3}, 0x20000
    s_mov_b32 s{sHalf}, 0xffff
    s_mov_b32 s{sHalf+1}, 0xffff
    s_cmp_eq_u32 s{sB}, 0
    s_waitcnt lgkmcnt(0)
    s_cselect_b32 s{X}, s32, s38
    s_cselect_b32 s{X+1}, s33, s39
    s_cselect_b32 s{Wq}, s34, s40
    s_cselect_b32 s{Wq+1}, s35, s41
    s_cselect_b32 s{WO}, s36, s42
    s_cselect_b32 s{WO+1}, s37, s43
    s_mov_b32 s{OUT}, s44
    s_mov_b32 s{OUT+1}, s45
    s_mov_b32 s{DBG}, s46
    s_mov_b32 s{DBG+1}, s47
    s_mov_b32 s{WS}, s48
    s_mov_b32 s{WS+1}, s49''')
    stamp(0)
    A(f'''s_cmp_ge_u32 s{sW}, 4
    s_cbranch_scc1 L_loader''')

def preset_ones():
    A(f'v_mov_b32 v1, 0x3f803f80')
    for i in range(48): A(f'v_mov_b32 v{VF+i}, v1')

def common_consts():
    A(f'''s_lshl_b32 s{sFl}, s{sWG}, 7
    s_add_u32 s{sFl}, s{sFl}, {WS_FL}
    s_add_u32 s{sFo}, s{sFl}, 64
    s_mov_b32 s{sC}, {f2u(CSC)}
    s_mov_b32 s{sLo}, {f2u(2.0**-40)}
    s_mov_b32 s{sHi}, {f2u(2.0**40)}''')

def lds_min4(dst_s, vt, addr_v, off, wait=True):
    A(f'ds_read_b128 {vr(vt,4)}, v{addr_v} offset:{off}')
    A('s_waitcnt lgkmcnt(0)')
    min4(dst_s, vt)
def min4(dst_s, vt):
    A(f'v_min3_u32 v{vt}, v{vt}, v{vt+1}, v{vt+2}\nv_min_u32 v{vt}, v{vt}, v{vt+3}\nv_readfirstlane_b32 s{dst_s}, v{vt}')

def loader_p1():
    A('L_loader:')
    A(f"""v_lshrrev_b32 v6, 3, v0
    v_and_b32 v7, 7, v0
    v_lshrrev_b32 v8, 4, v0
    v_xor_b32 v9, v7, v8
    v_lshlrev_b32 v9, 4, v9
    v_lshl_add_u32 v2, v6, 10, v9
    v_xor_b32 v3, 64, v2
    v_and_b32 v8, 1, v8
    v_lshlrev_b32 v8, 2, v8
    v_xor_b32 v9, v7, v8
    v_lshlrev_b32 v9, 4, v9
    v_mul_u32_u24 v4, 3072, v6
    v_add_u32 v4, v4, v9
    v_lshl_add_u32 v5, v6, 10, v9
    s_sub_u32 s{sT}, s{sW}, 4
    s_lshl_b32 s{sXo}, s{sRB}, 17
    s_lshl_b32 s{sT2}, s{sT}, 15
    s_add_u32 s{sXo}, s{sXo}, s{sT2}
    s_mul_i32 s{sWo}, s{sT}, {16*3072}
    s_lshl_b32 s{sT2}, s{sHG}, 7
    s_add_u32 s{sWo}, s{sWo}, s{sT2}
    s_lshl_b32 s{sN1}, s{sT}, 12
    s_add_u32 s{sN1}, s{sN1}, {RING0+SLOT}
    s_lshl_b32 s{sN2}, s{sT}, 11
    s_add_u32 s{sN2}, s{sN2}, {16384+RING0+SLOT}
    s_lshl_b32 s{sT}, s{sT}, 2
    v_mov_b32 v10, 0
    v_mov_b32 v11, s{sT}
    s_mov_b32 s{sIt}, 0
    s_mov_b32 s69, 1
    L_ld_loop:""")
    for j in range(4):
        A(f"""s_add_u32 m0, s{sN1}, {j*1024}
        s_add_u32 s{sT}, s{sXo}, {j*8192}
        buffer_load_dwordx4 v{2+(j&1)}, {srd(X)}, s{sT} offen lds""")
    for seg in range(3):
        for q in range(2):
            A(f"""s_add_u32 m0, s{sN2}, {seg*8192+q*1024}
            s_add_u32 s{sT}, s{sWo}, {seg*1024+q*8*3072}
            buffer_load_dwordx4 v4, {srd(Wq)}, s{sT} offen lds""")
    A(f"""s_add_u32 s{sXo}, s{sXo}, 128
    s_add_u32 s{sWo}, s{sWo}, {64*3072}
    s_add_u32 s69, s69, 1
    s_mov_b32 s{sT}, {SLOT}
    s_cmp_eq_u32 s69, 3
    s_cselect_b32 s{sT}, {-2*SLOT & 0xffffffff}, s{sT}
    s_cselect_b32 s69, 0, s69
    s_add_u32 s{sN1}, s{sN1}, s{sT}
    s_add_u32 s{sN2}, s{sN2}, s{sT}
    s_cmp_lg_u32 s{sIt}, 0
    s_cbranch_scc1 L_ld_sig
    s_barrier
    s_mov_b32 s{sIt}, 1
    s_branch L_ld_loop
    L_ld_sig:
    v_mov_b32 v12, s{sIt}
    s_add_u32 s{sIt}, s{sIt}, 1
    s_waitcnt vmcnt(10)
    ds_write_b32 v11, v12 offset:{L_CNT}
    s_cmp_lt_u32 s{sIt}, 3
    s_cbranch_scc1 L_ld_loop
    s_cmp_eq_u32 s{sIt}, 8
    s_cbranch_scc1 L_ld_done
    s_sub_u32 s{sT3}, s{sIt}, 2""")
    lds_min4(sT2, 16, 10, L_CNT+16)
    A(f"""s_cmp_ge_u32 s{sT2}, s{sT3}
    s_cbranch_scc1 L_ld_loop
    v_mov_b32 v12, s{sIt}
    s_waitcnt vmcnt(0)
    ds_write_b32 v11, v12 offset:{L_CNT}
    L_ld_spin:""")
    lds_min4(sT2, 16, 10, L_CNT+16)
    A(f"""s_cmp_ge_u32 s{sT2}, s{sT3}
    s_cbranch_scc1 L_ld_loop
    s_branch L_ld_spin
    L_ld_done:
    v_and_b32 v13, 3, v0
    v_lshlrev_b32 v13, 2, v13
    buffer_load_dword v7, v13, {srd(DBG)}, 0 offen sc1
    v_mov_b32 v12, 8
    s_waitcnt vmcnt(1)
    ds_write_b32 v11, v12 offset:{L_CNT}""")
    stamp(1)
    A(f"""v_and_b32 v6, 31, v0
    v_lshrrev_b32 v9, 5, v0
    v_lshlrev_b32 v9, 2, v9
    v_sub_u32 v6, v6, v9
    v_cvt_f32_i32 v6, v6
    s_mov_b32 s{sT}, {f2u(-BIG)}
    v_lshlrev_b32 v8, 4, v0""")
    for r in range(16):
        c = 8*(r//4) + r % 4
        A(f'v_sub_f32 v{MK+r}, {f2u(float(c))}, v6')
        A(f'v_med3_f32 v{MK+r}, v{MK+r}, 0, 1.0')
        A(f'v_mul_f32 v{MK+r}, s{sT}, v{MK+r}')
    for g in range(4):
        A(f'ds_write_b128 v8, {vr(MK+4*g,4)} offset:{L_M+g*1024}')
    preset_ones()
    common_consts()
    A(f"""s_mov_b32 s{sSpin}, 0
    s_mov_b32 s{sT}, 1
    s_waitcnt vmcnt(0)
    L_gate:
    v_cmp_ne_u32 vcc, s{sT}, v7
    s_cbranch_vccz L_gate_ok
    s_sleep 4
    buffer_load_dword v7, v13, {srd(DBG)}, 0 offen sc1
    s_add_u32 s{sSpin}, s{sSpin}, 1
    s_cmp_lt_u32 s{sSpin}, 0x10000
    s_waitcnt vmcnt(0)
    s_cbranch_scc1 L_gate
    L_gate_ok:""")
    nb_setup()
    for r in range(16): A(f'v_mov_b32 v{OA+r}, 0')
    if WOE:
        A('L_wo_spin:')
        lds_min4(sT2, 16, 12, L_CNT+16)
        A(f's_cmp_lt_u32 s{sT2}, 6\ns_cbranch_scc1 L_wo_spin')
        for j in range(16): wo_dma(j)
        stamp(2)
    else:
        poll_issue(4, 'y0')
        stamp(2)
        try_load(1, 'a')
    A("""    s_waitcnt lgkmcnt(0)
    s_barrier""")

def frag_reads(buf, ks):
    F = FR + 20*buf
    xs = [f'ds_read_b128 {vr(F+4*mt,4)}, v{2+ks} offset:{mt*4096}' for mt in range(2)]
    def wrd(seg): return [f'ds_read_b64_tr_b16 {vr(F+8+4*seg+2*j,2)}, v6 offset:{16384+seg*8192+ks*2048+j*512}' for j in range(2)]
    return [xs[0]] + wrd(0) + [xs[1]] + wrd(1) + wrd(2)
def mfmas(buf):
    F = FR + 20*buf
    L = []
    for seg in range(3):
        for mt in range(2):
            acc = vr(ACC + (seg*2+mt)*16, 16)
            x = vr(F+4*mt, 4); w = vr(F+8+4*seg, 4)
            a, b = (w, x) if seg < 2 else (x, w)
            L.append(f'{MFMA} {acc}, {a}, {b}, {acc}')
    return L

def compute_p1():
    A(f'''v_mov_b32 v12, 0
    v_lshlrev_b32 v13, 2, v0
    ds_write_b32 v13, v12 offset:{L_CNT}
    s_waitcnt lgkmcnt(0)
    s_barrier''')
    A(f'''s_cmp_lg_u32 s2, 0
    s_cbranch_scc1 L_noinit
    v_lshlrev_b32 v1, 4, v0
    v_mov_b32 v4, 0
    v_mov_b32 v5, 0
    v_mov_b32 v6, 0
    v_mov_b32 v7, 0
    s_lshl_b32 s{sT}, s{sW}, 13
    s_add_u32 s{sT}, s{sT}, {WS_FL}
    s_add_u32 s{sT2}, s{sT}, 8192
    L_init:
    buffer_store_dwordx4 v[4:7], v1, {srd(WS)}, s{sT} offen sc1
    s_add_u32 s{sT}, s{sT}, 1024
    s_cmp_lt_u32 s{sT}, s{sT2}
    s_cbranch_scc1 L_init
    L_noinit:''')
    A(f'''v_and_b32 v7, 31, v0
    v_lshrrev_b32 v8, 5, v0
    v_lshrrev_b32 v9, 1, v7
    v_and_b32 v9, 7, v9
    v_xor_b32 v9, v9, v8
    v_lshlrev_b32 v9, 4, v9
    v_lshl_add_u32 v2, v7, 7, v9
    s_lshr_b32 s{sT}, s{sW}, 1
    s_lshl_b32 s{sT}, s{sT}, 13
    s_add_u32 s{sT}, s{sT}, {RING0+SLOT}
    v_add_u32 v2, s{sT}, v2
    v_xor_b32 v3, 32, v2
    v_xor_b32 v4, 64, v2
    v_xor_b32 v5, 96, v2
    v_bfe_u32 v9, v0, 2, 2
    v_lshl_add_u32 v9, v8, 3, v9
    v_lshlrev_b32 v6, 7, v9
    v_bfe_u32 v9, v0, 4, 1
    v_lshlrev_b32 v9, 1, v9
    v_bfe_u32 v10, v0, 1, 1
    v_or_b32 v9, v9, v10
    v_bfe_u32 v10, v0, 3, 1
    s_and_b32 s{sT}, s{sW}, 1
    v_xor_b32 v10, s{sT}, v10
    v_lshl_or_b32 v9, v10, 2, v9
    v_lshl_add_u32 v6, v9, 4, v6
    v_and_b32 v9, 1, v0
    v_lshl_add_u32 v6, v9, 3, v6
    v_add_u32 v6, {RING0+SLOT}, v6
    s_lshl_b32 s{sT}, s{sW}, 2
    v_mov_b32 v13, s{sT}''')
    epi_addr()
    for i in range(96): A(f'v_mov_b32 v{ACC+i}, 0')
    preset_ones()
    common_consts()
    nb_setup(True)
    A(f's_mov_b32 s{sIt}, 0\ns_mov_b32 s69, 1\nL_c_spin0:')
    lds_min4(sT2, 8, 12, L_CNT)
    A(f's_cmp_lt_u32 s{sT2}, 1\ns_cbranch_scc1 L_c_spin0')
    A(f'''s_cmp_lg_u32 s2, 0
    s_cbranch_scc1 L_noann
    v_mov_b32 v14, 1
    s_mov_b64 exec, 1
    s_waitcnt vmcnt(0)
    buffer_store_dword v14, v13, {srd(DBG)}, 0 offen sc1
    s_mov_b64 exec, -1
    L_noann:''')
    stamp(1)
    Q = []
    def ds(txt, tag): A(txt); Q.append(tag)
    def wait(tag):
        n = len(Q) - 1 - max(i for i, t in enumerate(Q) if t == tag)
        A(f's_waitcnt lgkmcnt({n})')
        del Q[:len(Q)-n]
    TAGS = ['x0', 'wq', 'wq', 'x1', 'wk', 'wk', 'wv', 'wv']
    for r, t in zip(frag_reads(0, 0), TAGS): ds(r, (0, t))
    A('L_p1_loop:')
    for ks in range(4):
        cur = ks & 1
        M = mfmas(cur)
        nk = (ks+1) & 3
        R = [(r, (nk, t)) for r, t in zip(frag_reads(cur ^ 1, nk), TAGS)]
        if ks < 3:
            wait((ks, 'wq')); A(M[0]); ds(*R[0]); ds(*R[1])
            wait((ks, 'x1')); A(M[1]); ds(*R[2]); ds(*R[3])
            wait((ks, 'wk')); A(M[2]); ds(*R[4]); ds(*R[5])
            A(M[3]); ds(*R[6]); ds(*R[7])
            wait((ks, 'wv')); A(M[4])
            if ks == 2: ds(f'ds_read_b128 v[8:11], v12 offset:{L_CNT}', 'cnt')
            A(M[5])
        else:
            wait((ks, 'wq')); A(M[0])
            A(f"""s_add_u32 s{sIt}, s{sIt}, 1
            s_add_u32 s69, s69, 1
            s_mov_b32 s{sT}, {SLOT}
            s_cmp_eq_u32 s69, 3
            s_cselect_b32 s{sT}, {-2*SLOT & 0xffffffff}, s{sT}
            s_cselect_b32 s69, 0, s69
            v_mov_b32 v14, s{sIt}""")
            wait((ks, 'x1')); A(M[1])
            for i in range(2, 7): A(f'v_add_u32 v{i}, s{sT}, v{i}')
            wait('cnt')
            A(f'ds_write_b32 v13, v14 offset:{L_CNT+16}')
            min4(sT2, 8)
            A(M[2])
            A(f"""s_min_u32 s{sT3}, s{sIt}, 7
            s_cmp_gt_u32 s{sT2}, s{sT3}
            s_cbranch_scc1 L_c_ok
            L_c_spin:""")
            lds_min4(sT2, 8, 12, L_CNT)
            A(f"""s_cmp_le_u32 s{sT2}, s{sT3}
            s_cbranch_scc1 L_c_spin
            L_c_ok:""")
            Q[:] = []
            ds(*R[0]); ds(*R[1])
            A(M[3]); ds(*R[2]); ds(*R[3]); ds(*R[4])
            A(M[4]); ds(*R[5]); ds(*R[6]); ds(*R[7])
            A(f's_cmp_lt_u32 s{sIt}, 8')
            A(M[5])
            A('s_cbranch_scc1 L_p1_loop')
    stamp(2)
    A('L_c_spin2:')
    lds_min4(sT2, 8, 12, L_CNT+16)
    A(f's_cmp_lt_u32 s{sT2}, 7\ns_cbranch_scc1 L_c_spin2')
    tmp = FR
    def cvt8(acc, dst):
        for i in range(8): A(f'v_cvt_pk_bf16_f32 v{dst+i}, v{acc+2*i}, v{acc+2*i+1}')
    n = 0
    for mt in range(2):
        acc = ACC + (1*2+mt)*16; d = tmp + 8*(n % 5); n += 1
        cvt8(acc, d)
        for e in range(2):
            A(f'buffer_store_dwordx4 {vr(d+4*e,4)}, v152, {srd(WS)}, s{sE2 if e else sE1} offen offset:{mt*1024} sc1')
            A(f'ds_write_b128 v155, {vr(d+4*e,4)} offset:{e*4096+mt*1024}')
    for mt in range(2):
        acc = ACC + (2*2+mt)*16; d = tmp + 8*(n % 5); n += 1
        cvt8(acc, d)
        for a in range(2):
            A(f'buffer_store_dwordx4 {vr(d+4*a,4)}, v154, {srd(WS)}, s{sE3} offen offset:{mt*1024+a*512} sc1')
            A(f'ds_write_b128 v153, {vr(d+4*a,4)} offset:{16384+mt*1024+a*512}')
    for mt in range(2):
        acc = ACC + mt*16
        for i in range(8): A(f'v_pk_mul_f32 {vr(acc+2*i,2)}, {vr(acc+2*i,2)}, s[{sC}:{sC+1}] op_sel_hi:[1,0]')
        cvt8(acc, acc)
        for e in range(2):
            A(f'ds_write_b128 v155, {vr(acc+4*e,4)} offset:{32768+e*4096+mt*1024}')
    for i in range(1, 13): A(f'v_mov_b32 v{i}, v{216+i}')
    A('s_waitcnt lgkmcnt(0)\ns_barrier')
    stamp(3)

def epi_addr():
    A(f'''v_lshlrev_b32 v152, 4, v0
    v_bfe_u32 v10, v0, 4, 1
    v_and_b32 v11, 15, v0
    v_lshrrev_b32 v7, 5, v0
    v_lshl_or_b32 v11, v7, 4, v11
    v_lshlrev_b32 v11, 4, v11
    v_lshl_add_u32 v153, v10, 12, v11
    v_lshl_add_u32 v154, v10, 13, v11
    s_and_b32 s{sT}, s{sW}, 1
    s_lshr_b32 s{sT2}, s{sW}, 1
    s_lshl_b32 s{sN1}, s{sT}, 13
    s_lshl_b32 s{sT3}, s{sT2}, 11
    s_add_u32 s{sN1}, s{sN1}, s{sT3}
    s_add_u32 s{sN1}, s{sN1}, {L_B}
    v_add_u32 v155, s{sN1}, v152
    v_add_u32 v153, s{sN1}, v153
    s_lshl_b32 s{sE1}, s{sWG}, 15
    s_lshl_b32 s{sT}, s{sT}, 14
    s_add_u32 s{sE1}, s{sE1}, s{sT}
    s_add_u32 s{sE1}, s{sE1}, s{sT3}
    s_add_u32 s{sE2}, s{sE1}, 8192
    s_add_u32 s{sE3}, s{sE1}, 4096''')

UNITS = {0: dict(tiles=[0, 3, -1, -2, -5, -8], keep=(0, 1),
                 own=[(0,0,1),(1,0,0),(2,0,0),(3,0,0),(3,3,1)],
                 C=[(0,-5,0),(1,-5,0),(2,-5,0),(3,-5,1),(0,-8,1)]),
         1: dict(tiles=[1, 2, -3, -4, -6, -7], keep=(2, 3),
                 own=[(1,1,1),(2,1,0),(3,1,0),(2,2,1),(3,2,0)],
                 C=[(0,-6,0),(1,-6,0),(2,-6,1),(0,-7,0),(1,-7,1)])}
for U in UNITS.values(): U['B'] = [(q, t, 0) for t in U['tiles'][2:4] for q in range(4)]
CT = [None]
def kf(t): return KF + 4*CT[0].index(t)
def vf(t, a): return VF + 8*CT[0].index(t) + 4*a
def qk(u, sb):
    q, t, m = u
    return f'{MFMA} {vr(sb,16)}, {vr(kf(t),4)}, {vr(QF+4*q,4)}, {vr(MK,16) if m else "0"}'
def pv(u, sb, a, first):
    q, t, m = u
    o = vr(OA+16*q, 16)
    return f'{MFMA} {o}, {vr(vf(t,a),4)}, {vr(sb+8*a,4)}, {"0" if first else o}'
def segment(units, started, pre_qk=None, pre_pv=None, mid=None):
    n = len(units)
    def QK(i):
        if pre_qk: pre_qk(units[i])
        A(qk(units[i], SB+16*(i & 1)))
    def PV(i, a):
        u = units[i]
        if pre_pv: pre_pv(u)
        first = (u[0] not in started)
        started.add(u[0])
        A(pv(u, SB+16*(i & 1), a, first))
    QK(0)
    if n > 1: QK(1)
    for i in range(n):
        S = SB + 16*(i & 1)
        e = lambda r: A(f'v_exp_f32 v{S+r}, v{S+r}')
        def c(j):
            d = S + j if j < 4 else S + 4 + j
            A(f'v_cvt_pk_bf16_f32 v{d}, v{S+2*j}, v{S+2*j+1}')
        if mid and i in mid: mid[i]()
        e(0); e(1)
        if i > 0:
            PV(i-1, 1)
            if i+1 < n: QK(i+1)
        for j in range(7):
            e(2*j+2); c(j); e(2*j+3)
            if j == 4: PV(i, 0)
        A('s_nop 0'); c(7)
    PV(n-1, 1)

def nb_setup(hoist=False):
    n0 = len(A.L)
    A(f'''s_and_b32 s{sT}, s{sW}, 3
    s_lshl_b32 s{sT2}, s{sT}, 12
    s_add_u32 s{sT2}, s{sT2}, {L_B}
    v_lshlrev_b32 v2, 4, v0
    v_add_u32 v7, s{sT2}, v2
    v_and_b32 v11, 15, v0
    v_lshrrev_b32 v12, 5, v0
    v_lshl_or_b32 v11, v12, 4, v11
    v_lshlrev_b32 v3, 4, v11
    v_add_u32 v8, s{sT2}, v3
    v_add_u32 v3, 4096, v3
    s_lshl_b32 s{sKB1}, s{sWG}, 2
    s_add_u32 s{sKB1}, s{sKB1}, s{sT}
    s_lshl_b32 s{sKB1}, s{sKB1}, 13
    s_sub_u32 s{sKB2}, s{sKB1}, {2*32*8192}
    s_sub_u32 s{sKB1}, s{sKB1}, {32*8192}
    s_lshl_b32 s{sOb}, s{sWG}, 14
    s_lshl_b32 s{sT2}, s{sT}, 10
    s_add_u32 s{sOb}, s{sOb}, s{sT2}
    s_add_u32 s{sOb}, s{sOb}, {WS_O}
    s_and_b32 s{sT}, s{sW}, 1
    s_lshl_b32 s{sT2}, s{sT}, 10
    s_sub_u32 s{sT2}, s{sFl}, s{sT2}
    s_sub_u32 s{sT2}, s{sT2}, 1024
    v_mov_b32 v4, s{sT2}
    s_min_u32 s{sT2}, s{sRB}, 2
    s_lshr_b32 s{sNeed}, s{sW}, 1
    s_and_b32 s{sNeed}, s{sNeed}, 2
    s_xor_b32 s{sNeed}, s{sNeed}, s{sW}
    s_and_b32 s{sNeed}, s{sNeed}, 3
    s_cmp_lt_u32 s{sNeed}, s{sT2}
    s_cselect_b32 s{sPoll}, 1, 0
    s_lshl_b32 s{sPoll}, s{sPoll}, s{sT}
    s_mov_b32 s{sNeed}, 1
    v_lshrrev_b32 v1, 3, v0
    v_and_b32 v5, 7, v0
    v_bfe_u32 v6, v0, 4, 1
    v_lshlrev_b32 v6, 2, v6
    v_xor_b32 v5, v5, v6
    v_lshlrev_b32 v5, 4, v5
    v_lshl_add_u32 v1, v1, 10, v5
    s_and_b32 s{sT}, s{sW}, {3 if WOE else 7}
    s_lshl_b32 s{sWm}, s{sT}, {14 if WOE else 13}
    s_add_u32 s{sWm}, s{sWm}, {L_WO}
    s_lshl_b32 s{sWg}, s{sT}, {17 if WOE else 16}
    s_lshl_b32 s{sT}, s{sHG}, 7
    s_add_u32 s{sWg}, s{sWg}, s{sT}
    s_cmp_eq_u32 s{sRB}, 0
    s_cselect_b32 s{sEarly}, 1, 0
    s_mov_b32 s{sFB}, 0
    s_mul_i32 s{sT}, s{sW}, {XCH}
    s_add_u32 s{sT}, s{sT}, {L_X}
    v_add_u32 v5, s{sT}, v2
    v_lshl_add_u32 v10, v0, 2, s{sT}
    s_xor_b32 s{sT}, s{sW}, 4
    s_mul_i32 s{sT}, s{sT}, {XCH}
    s_add_u32 s{sT}, s{sT}, {L_X}
    v_add_u32 v6, s{sT}, v2
    v_lshl_add_u32 v11, v0, 2, s{sT}''')
    A(f'''s_andn2_b32 s{sN1}, s{sWG}, 7
    s_add_u32 s{sN1}, s{sN1}, s{sW}
    s_lshl_b32 s{sN1}, s{sN1}, 7
    s_add_u32 s{sN1}, s{sN1}, {WS_FL+64}
    v_mov_b32 v9, s{sN1}
    v_mov_b32 v12, 0''')
    if hoist: A.L[n0:] = [re.sub(r'\bv(1[0-2]|[1-9])\b', lambda m: f'v{216+int(m.group(1))}', l) for l in A.L[n0:]]

def wo_dma(j):
    A(f'''s_add_u32 m0, s{sWm}, {j*1024}
    s_add_u32 s{sT}, s{sWg}, {j*8192}
    buffer_load_dwordx4 v1, {srd(WO)}, s{sT} offen lds''')
def poll_issue(va, tag):
    A(f'''s_cmp_eq_u32 s{sPoll}, 0
    s_cbranch_scc1 L_pi{tag}
    s_mov_b64 exec, 1
    buffer_load_dword v15, v{va}, {srd(WS)}, 0 offen sc1
    s_mov_b64 exec, -1
    L_pi{tag}:''')
def poll_check(rdy, tag, wait):
    A(f's_cmp_eq_u32 s{sPoll}, 0\ns_cbranch_scc1 L_pc{tag}')
    wait()
    A(f'''v_readfirstlane_b32 s{sT}, v15
    v_mov_b32 v14, s{sPoll}
    s_cmp_lg_u32 s{sT}, 1
    s_cbranch_scc1 L_pc{tag}
    s_mov_b64 exec, 1
    ds_or_b32 v12, v14 offset:{rdy}
    s_mov_b64 exec, -1
    s_mov_b32 s{sPoll}, 0
    L_pc{tag}:
    ds_read_b32 v14, v12 offset:{rdy}
    s_waitcnt lgkmcnt(0)
    v_readfirstlane_b32 s{sT}, v14''')
def nb_loads(ty, tag, far=False):
    CT[0] = UNITS[ty]['tiles']
    def ld(t):
        base = sKB1 if t >= -4 else sKB2
        T = t % 4
        A(f'buffer_load_dwordx4 {vr(kf(t),4)}, v2, {srd(WS)}, s{base} offen offset:{T*1024}{LDSC}')
        A(f's_mov_b64 exec, s[{sHalf}:{sHalf+1}]')
        for a in range(2):
            A(f'buffer_load_dwordx4 {vr(vf(t,a),4)}, v3, {srd(WS)}, s{base} offen offset:{T*1024+a*512}{LDSC}')
        A('s_mov_b64 exec, -1')
    for t in (CT[0][4:6] if far else CT[0][2:4]): ld(t)
    A(f's_mov_b32 s{sEarly}, 1\ns_andn2_b32 s{sPoll}, s{sPoll}, s{sNeed}')
def kv_block(ty, tag):
    A(f's_mov_b32 s{sSpin}, 0\nL_pkv{ty}{tag}:')
    kv_check(ty, f'b{tag}')
    A(f'''s_cmp_eq_u32 s{sT}, s{sNeed}
    s_cbranch_scc1 L_pkv{ty}{tag}_ok
    s_add_u32 s{sSpin}, s{sSpin}, 1
    s_sleep {SLP}
    s_cmp_lt_u32 s{sSpin}, 0x40000
    s_cbranch_scc1 L_pkv{ty}{tag}
    L_pkv{ty}{tag}_ok:''')
def kv_check(ty, tag):
    poll_check(R_KV, f'k{ty}{tag}', lambda: A('s_waitcnt vmcnt(0)'))
    A(f's_andn2_b32 s{sPoll}, s{sPoll}, s{sT}')
    poll_issue(4, f'k{ty}{tag}')
    A(f's_and_b32 s{sT}, s{sT}, s{sNeed}')
def poll_step(ty, tag):
    A(f's_cmp_eq_u32 s{sPoll}, 0\ns_cbranch_scc1 L_ps{ty}{tag}')
    kv_check(ty, tag)
    A(f'L_ps{ty}{tag}:')
def try_load(ty, tag, nopoll=False):
    A(f's_cmp_lg_u32 s{sEarly}, 0\ns_cbranch_scc1 L_tl{ty}{tag}')
    if nopoll: A(f'ds_read_b32 v14, v12 offset:{R_KV}\ns_waitcnt lgkmcnt(0)\nv_readfirstlane_b32 s{sT}, v14\ns_and_b32 s{sT}, s{sT}, s{sNeed}')
    else: kv_check(ty, tag)
    A(f's_cmp_lg_u32 s{sT}, s{sNeed}\ns_cbranch_scc1 L_tl{ty}{tag}')
    nb_loads(ty, tag)
    A(f'L_tl{ty}{tag}:')

def publish(sa, cnt, last, tag, rdy=None):
    A(f'''v_mov_b32 v14, 1
    s_mov_b64 exec, 1
    s_waitcnt vmcnt(0)
    ds_add_rtn_u32 v13, v12, v14 offset:{cnt}
    s_waitcnt lgkmcnt(0)
    v_readfirstlane_b32 s{sT}, v13
    s_cmp_lg_u32 s{sT}, {last}
    s_cbranch_scc1 L_pub{tag}
    buffer_store_dword v14, v12, {srd(WS)}, s{sa} offen sc1''')
    if rdy:
        A(f's_lshl_b32 s{sT}, s{sHG}, 2\ns_lshl_b32 s{sT}, 1, s{sT}\nv_mov_b32 v13, s{sT}\nds_or_b32 v12, v13 offset:{rdy}')
    A(f'L_pub{tag}:\ns_mov_b64 exec, -1')

RG = SB
TRY = {0: (2, 4), 1: (2, 4)}
PRIO = opt('prio', 1)
PV2 = opt('pv', 2)
def attention(ty):
    U = UNITS[ty]; CT[0] = U['tiles']
    own = U['tiles'][:2]
    if ty == 0:
        publish(sFl, C_KV, 3, 'k')
        if ST2 == 2: stamp(1)
        poll_issue(4, 'x0')
        if WARM & 1:
            A(f'''v_and_b32 v13, 15, v0
            v_lshlrev_b32 v13, 7, v13
            v_lshrrev_b32 v14, 4, v0
            v_lshl_add_u32 v13, v14, 12, v13
            buffer_load_dword v250, v13, {srd(WS)}, s{sE1} offen''')
    for q in range(4): A(f'ds_read_b128 {vr(QF+4*q,4)}, v7 offset:{32768+q*1024}')
    for t in own: A(f'ds_read_b128 {vr(kf(t),4)}, v7 offset:{t*1024}')
    for g in range(4): A(f'ds_read_b128 {vr(MK+4*g,4)}, v2 offset:{L_M+g*1024}')
    A(f's_mov_b64 exec, s[{sHalf}:{sHalf+1}]')
    for t in own:
        for a in range(2): A(f'ds_read_b128 {vr(vf(t,a),4)}, v8 offset:{16384+t*1024+a*512}')
    A('s_mov_b64 exec, -1')
    A('s_waitcnt lgkmcnt(4)')
    started = set() if ty == 0 else {0}
    MID = {0: {3: lambda: try_load(0, 'm3'), 4: lambda: try_load(0, 'm4', True)},
           1: {3: lambda: poll_issue(4, 'y3'), 4: lambda: try_load(1, 'm4', PV2 == 0)}}
    if PV2 == 2: MID[0] = {2: lambda: try_load(0, 'm3'), 4: lambda: try_load(0, 'm4')}
    done = [False]
    def pre_pv(u):
        if not done[0]: A('s_waitcnt lgkmcnt(0)'); done[0] = True
    segment(U['own'], started, pre_pv=pre_pv, mid=MID[ty])
    stamp(4)
    Lfin = f'L_fin{ty}'
    A(f'''s_cmp_lg_u32 s{sEarly}, 0
    s_cbranch_scc1 L_have{ty}''')
    kv_block(ty, 'n')
    nb_loads(ty, 'b')
    A(f'L_have{ty}:')
    if opt('exp', 0) and ty == 1: A('s_branch L_have0')
    stamp(5)
    A(f's_cmp_eq_u32 s{sRB}, 0\ns_cbranch_scc1 L_z{ty}')
    LB = f'L_B{ty}'
    nd = [0]
    def dm(j):
        def f():
            if not WOE: wo_dma(j); nd[0] += 1
        return f
    A(f's_cmp_eq_u32 s{sRB}, 1\ns_cbranch_scc1 {LB}_only')
    def mk_wait(order):
        seen = set()
        def w(u):
            t = u[1]
            if t not in seen:
                seen.add(t)
                k = order.index(t)
                A(f's_waitcnt vmcnt({(3 if k == 0 else 3*(len(order)-1-k))+nd[0]})')
        return w
    for r in range(16): A(f'v_sub_f32 v{MK+r}, {f2u(-BIG)}, v{MK+r}')
    if PRIO:
        dm0 = dm
        def dm(j):
            f0 = dm0(j)
            def f():
                f0()
                if PRIO == 1 and ty == 1 and j in (0, PSW): A(f's_setprio {1 if j == 0 else 0}')
                if PRIO == 2 and ty == 1: A(f's_setprio {1 - (j & 1)}')
                if PRIO == 3 and ty == 1 and j == 0: A('s_setprio 1')
            return f
    midC = {i+WOS: dm(i) for i in range(8)}
    def farload():
        A(f's_mov_b32 s{sNeed}, 2')
        kv_block(ty, 'f')
        nb_loads(ty, 'f', True)
    midC[CU] = farload
    segment(U['B'] + U['C'], set(started), pre_qk=mk_wait(U['tiles'][2:6]), mid=midC)
    A(f's_branch {Lfin}\nL_z{ty}:')
    for j in range(0 if WOE else 8): wo_dma(j)
    A(f's_branch {Lfin}')
    nd[0] = 0
    A(f'{LB}_only:')
    segment(U['B'], set(started), pre_qk=mk_wait(U['tiles'][2:4]), mid={i: dm(i) for i in range(8)})
    A(f'{Lfin}:')
    if PRIO: A('s_setprio 0')
    A('s_nop 10')
    stamp(6)
    send = [q for q in range(4) if q not in U['keep']]
    for a, q in enumerate(send):
        o = OA + 16*q
        A(f'ds_write_b128 v5, {vr(o,4)} offset:{a*2048}\nds_write_b128 v5, {vr(o+4,4)} offset:{a*2048+1024}')
        A(f'ds_write_b32 v10, v{o+8} offset:{4096+a*256}')
    A('s_waitcnt vmcnt(0) lgkmcnt(0)')
    if ST2 == 1: stamp(1)
    A('s_barrier')
    if ST2 == 1: stamp(2)
    A(f's_lshl_b32 s{sT}, s{sW}, 2\ns_lshl_b32 s{sPoll}, 1, s{sT}\ns_cmp_eq_u32 s{sW}, s{sHG}\ns_cselect_b32 s{sPoll}, 0, s{sPoll}')
    poll_issue(9, f'o{ty}')
    for a in range(2):
        A(f'ds_read_b32 v{RG+16+a}, v11 offset:{4096+a*256}')
        A(f'ds_read_b128 {vr(RG+8*a,4)}, v6 offset:{a*2048}\nds_read_b128 {vr(RG+8*a+4,4)}, v6 offset:{a*2048+1024}')
    for a, q in enumerate(U['keep']):
        o = OA + 16*q
        A(f's_waitcnt lgkmcnt({3-3*a})')
        A(f'v_add_f32 v{RG+16+a}, v{RG+16+a}, v{o+8}')
        for j in range(8): A(f'v_add_f32 v{RG+8*a+j}, v{RG+8*a+j}, v{o+j}')
    if ty == 1:
        for j in range(8): A(f'v_mov_b32 v{QF+j}, v{QF+8+j}')

def finalize():
    A(f'''L_final:
    v_rcp_f32 v{RG+18}, v{RG+16}
    v_rcp_f32 v{RG+19}, v{RG+17}
    s_lshr_b32 s{sT}, s{sW}, 2
    s_lshl_b32 s{sT}, s{sT}, 13
    s_add_u32 s{sT}, s{sT}, s{sOb}
    s_add_u32 s{sT2}, s{sT}, 4096''')
    for a in range(2):
        o = RG + 8*a
        for j in range(8): A(f'v_mul_f32 v{o+j}, v{o+j}, v{RG+18+a}')
        for j in range(4): A(f'v_cvt_pk_bf16_f32 v{PK+4*a+j}, v{o+2*j}, v{o+2*j+1}')
        A(f'buffer_store_dwordx4 {vr(PK+4*a,4)}, v2, {srd(WS)}, s{sT2 if a else sT} offen sc1')
    for a in range(2):
        o = RG + 8*a; l = RG + 16 + a; m = f's[{70 if a else 58}:{71 if a else 59}]'
        A(f'v_cmp_lt_f32 {m}, s{sLo}, v{l}\nv_cmp_gt_f32 vcc, s{sHi}, v{l}\ns_and_b64 {m}, {m}, vcc')
        A(f'v_add_f32 v{l+4}, |v{o}|, |v{o+1}|')
        for j in range(2, 8): A(f'v_add_f32 v{l+4}, v{l+4}, |v{o+j}|')
    A(f'''v_add_f32 v{RG+20}, v{RG+20}, v{RG+21}
    s_and_b64 s[58:59], s[58:59], s[70:71]
    s_mov_b32 s{sT}, 0x7f800000
    v_cmp_gt_f32 vcc, s{sT}, v{RG+20}
    s_and_b64 s[58:59], s[58:59], vcc
    s_cmp_eq_u64 s[58:59], -1
    s_cselect_b32 s{sT}, {0 if FORCE_FB else 1}, 0
    s_or_b32 s{sT}, s{sT}, s{sFB}
    s_cbranch_scc0 L_fb''')
    if ST2: stamp(3 if ST2 == 1 else 2)

def fallback():
    A('L_fb:')
    sG, sG0, sQ, sA, sBv, sAd = 42, 43, 44, 45, 46, 47
    S = OA + 32; CB = OA + 48; MX = 248
    for g in range(4): A(f'ds_read_b128 {vr(MK+4*g,4)}, v2 offset:{L_M+g*1024}')
    A(f'''s_mov_b32 s{sFB}, 1
    s_lshr_b32 s{sQ}, s{sW}, 2
    s_lshl_b32 s{sQ}, s{sQ}, 1
    s_lshl_b32 s{sT}, s{sRB}, 2
    s_add_u32 s{sQ}, s{sQ}, s{sT}
    s_max_u32 s{sG0}, s{sQ}, 8
    s_sub_u32 s{sG0}, s{sG0}, 8
    v_mov_b32 v{MX}, 0xff800000
    v_mov_b32 v{MX+1}, 0xff800000''')
    for r in range(32): A(f'v_mov_b32 v{OA+r}, 0')
    A('s_waitcnt lgkmcnt(0)')
    for ps in range(2):
        A(f'''s_mov_b32 s{sG}, s{sG0}
        L_fbl{ps}:
        s_lshr_b32 s{sT}, s{sG}, 2
        s_sub_u32 s{sT}, s{sT}, s{sRB}
        s_add_u32 s{sT}, s{sT}, 2
        s_lshl_b32 s{sT}, s{sT}, 18
        s_add_u32 s{sAd}, s{sKB2}, s{sT}
        s_and_b32 s{sT}, s{sG}, 3
        s_lshl_b32 s{sT}, s{sT}, 10
        s_add_u32 s{sAd}, s{sAd}, s{sT}
        buffer_load_dwordx4 {vr(KF,4)}, v2, {srd(WS)}, s{sAd} offen sc1
        s_mov_b64 exec, s[{sHalf}:{sHalf+1}]
        buffer_load_dwordx4 {vr(VF,4)}, v3, {srd(WS)}, s{sAd} offen sc1
        buffer_load_dwordx4 {vr(VF+4,4)}, v3, {srd(WS)}, s{sAd} offen offset:512 sc1
        s_mov_b64 exec, -1
        s_waitcnt vmcnt(0)''')
        for a in range(2):
            A(f'''s_sub_u32 s{sT}, s{sQ}, s{sG}
            s_add_u32 s{sT}, s{sT}, {a}
            s_cmp_eq_u32 s{sT}, 0
            s_cselect_b32 s{sA}, 1.0, 0
            s_cmp_eq_u32 s{sT}, 8
            s_cselect_b32 s{sA}, -1.0, s{sA}
            s_cmp_ge_u32 s{sT}, 8
            s_cselect_b32 s{sBv}, {f2u(-BIG)}, 0''')
            A(f'v_mov_b32 v14, s{sBv}')
            for r in range(16): A(f'v_fma_f32 v{CB+r}, v{MK+r}, s{sA}, v14')
            if ps:
                for r in range(16): A(f'v_sub_f32 v{CB+r}, v{CB+r}, v{MX+a}')
            A(f'{MFMA} {vr(S,16)}, {vr(KF,4)}, {vr(QF+4*a,4)}, {vr(CB,16)}')
            if ps == 0:
                for j in range(8): A(f'v_max3_f32 v{MX+a}, v{S+2*j}, v{S+2*j+1}, v{MX+a}')
            else:
                for r in range(16): A(f'v_exp_f32 v{S+r}, v{S+r}')
                for j in range(8): A(f'v_cvt_pk_bf16_f32 v{S+j if j < 4 else S+4+j}, v{S+2*j}, v{S+2*j+1}')
                for h in range(2):
                    A(f'{MFMA} {vr(OA+16*a,16)}, {vr(VF+4*h,4)}, {vr(S+8*h,4)}, {vr(OA+16*a,16)}')
                A('s_nop 7')
        A(f'''s_add_u32 s{sG}, s{sG}, 1
        s_add_u32 s{sT}, s{sQ}, 1
        s_cmp_le_u32 s{sG}, s{sT}
        s_cbranch_scc1 L_fbl{ps}''')
        if ps == 0:
            for a in range(2):
                A(f'v_mov_b32 v14, v{MX+a}\ns_nop 1\nv_permlane32_swap_b32 v{MX+a}, v14\nv_max_f32 v{MX+a}, v{MX+a}, v14')
    A('s_nop 7')
    for a in range(2):
        for j in range(8): A(f'v_mov_b32 v{RG+8*a+j}, v{OA+16*a+j}')
        A(f'v_mov_b32 v{RG+16+a}, v{OA+16*a+8}')
    A('s_branch L_final')

WF = 16; OF = 144; AC3 = 208
def wait_chain(sreg, nmax, per, extra, tag):
    for n in range(nmax, 0, -1):
        A(f's_cmp_ge_u32 s{sreg}, {n}\ns_cbranch_scc1 L_wc{tag}_{n}')
    A(f's_waitcnt vmcnt({extra})')
    for n in range(1, nmax+1):
        A(f'L_wc{tag}_{n}:\ns_waitcnt vmcnt({per*n+extra})')
def wait_dyn(_):
    A(f's_bcnt1_i32_b32 s{sT2}, s{sNew}')
    wait_chain(sT2, 4, 4, 0, 'f')
def o_issue(tag, wait):
    poll_check(R_O, f'o{tag}', wait)
    A(f'''s_and_b32 s{sT2}, s{sW}, 4
    s_lshl_b32 s{sT2}, s{sT2}, 2
    s_lshr_b32 s{sT}, s{sT}, s{sT2}
    s_cmp_ge_u32 s{sSpin}, 0x40000
    s_cselect_b32 s{sT}, -1, s{sT}
    s_and_b32 s{sT}, s{sT}, 0x1111
    s_andn2_b32 s{sNew}, s{sT}, s{sIss}
    s_or_b32 s{sIss}, s{sIss}, s{sNew}''')
    if tag == 'b': A(f's_or_b32 s{sT}, s{sNew}, s{sM}\ns_cbranch_scc1 L_oi{tag}s\ns_sleep {SLP}\nL_oi{tag}s:')
    poll_issue(9, f'o{tag}')
    for g in range(4):
        A(f's_bitcmp0_b32 s{sNew}, {4*g}\ns_cbranch_scc1 L_oi{tag}{g}\ns_add_u32 s{sT}, s{sN2}, {g*16384}')
        for j in range(4):
            A(f'buffer_load_dwordx4 {vr(OF+16*g+4*j,4)}, v2, {srd(WS)}, s{sT} offen offset:{j*1024}{LDSC}')
        A(f'L_oi{tag}{g}:')
def phase3():
    A(f'''s_andn2_b32 s{sN2}, s{sWG}, 7
    s_and_b32 s{sT3}, s{sW}, 4
    s_add_u32 s{sN2}, s{sN2}, s{sT3}
    s_lshl_b32 s{sN2}, s{sN2}, 14
    s_and_b32 s{sT3}, s{sW}, 3
    s_lshl_b32 s{sT3}, s{sT3}, 12
    s_add_u32 s{sN2}, s{sN2}, s{sT3}
    s_add_u32 s{sN2}, s{sN2}, {WS_O}
    s_mov_b32 s{sIss}, 0
    s_mov_b32 s{sSpin}, 0''')
    A(f'''v_bfe_u32 v3, v0, 2, 2
    v_lshrrev_b32 v8, 5, v0
    v_lshl_add_u32 v3, v8, 2, v3
    v_lshlrev_b32 v11, 7, v3
    v_bfe_u32 v3, v0, 4, 1
    v_lshlrev_b32 v3, 1, v3
    v_bfe_u32 v10, v0, 1, 1
    v_or_b32 v3, v3, v10
    v_bfe_u32 v10, v0, 3, 1
    v_lshl_or_b32 v3, v10, 2, v3
    v_lshl_add_u32 v11, v3, 4, v11
    v_and_b32 v3, 1, v0
    v_lshl_add_u32 v11, v3, 3, v11
    s_lshr_b32 s{sT3}, s{sW}, 2
    s_lshl_b32 s{sT3}, s{sT3}, 15
    s_add_u32 s{sT3}, s{sT3}, {L_WO}
    v_add_u32 v11, s{sT3}, v11
    v_xor_b32 v7, 64, v11''')
    def wfr(lo, hi):
        for i in range(lo, hi):
            for nt in range(2):
                for j in range(2):
                    A(f'ds_read_b64_tr_b16 {vr(WF+8*i+4*nt+2*j,2)}, v{7 if nt else 11} offset:{i*2048+j*1024}')
    for r in range(32): A(f'v_mov_b32 v{AC3+r}, 0')
    A(f'''v_and_b32 v10, 31, v0
    v_lshlrev_b32 v10, 11, v10
    v_lshl_add_u32 v10, v8, 4, v10
    s_and_b32 s{sT}, s{sW}, 3
    s_lshl_b32 s{sN1}, s{sRB}, 2
    s_add_u32 s{sN1}, s{sN1}, s{sT}
    s_lshl_b32 s{sN1}, s{sN1}, 16
    s_lshl_b32 s{sT}, s{sB}, 10
    s_add_u32 s{sN1}, s{sN1}, s{sT}
    s_lshl_b32 s{sT}, s{sHG}, 7
    s_add_u32 s{sN1}, s{sN1}, s{sT}
    s_and_b32 s{sT}, s{sW}, 4
    s_lshl_b32 s{sT}, s{sT}, 4
    s_add_u32 s{sN1}, s{sN1}, s{sT}''')
    if ST2 == 1: stamp(4)
    publish(sFo, C_O, 7, 'o', R_O)
    if WARM & 2:
        A(f'''v_and_b32 v13, 7, v0
        v_lshlrev_b32 v13, 7, v13
        v_bfe_u32 v14, v0, 3, 1
        v_lshl_add_u32 v13, v14, 12, v13
        s_lshr_b32 s{sT}, s{sW}, 2
        s_lshl_b32 s{sT}, s{sT}, 13
        s_add_u32 s{sT}, s{sT}, s{sOb}
        s_mov_b64 exec, 0xffff
        buffer_load_dword v250, v13, {srd(WS)}, s{sT} offen
        s_mov_b64 exec, -1''')
    stamp(7)
    o_issue('a', lambda: None)
    stamp(8)
    if not WPG: wfr(0, 16)
    if ST2 == 2: stamp(4)
    A(f'''s_waitcnt lgkmcnt(0)
    L_p3l:
    s_mov_b32 s{sM}, s{sNew}
    s_mov_b32 s{sL}, 0
    s_mov_b32 s{sNew}, 0
    s_cmp_eq_u32 s{sIss}, 0x1111
    s_cbranch_scc1 L_p3m
    s_add_u32 s{sSpin}, s{sSpin}, 1
    s_bcnt1_i32_b32 s{sT2}, s{sM}''')
    o_issue('b', lambda: wait_chain(sT2, 3, 4, 0, 'p'))
    stamp(8)
    A(f's_bcnt1_i32_b32 s{sL}, s{sNew}\nL_p3m:')
    for g in range(4):
        A(f's_bitcmp0_b32 s{sM}, {4*g}\ns_cbranch_scc1 L_om{g}')
        A(f's_lshr_b32 s{sT}, s{sM}, {4*g+4}\ns_bcnt1_i32_b32 s{sT2}, s{sT}\ns_add_u32 s{sT2}, s{sT2}, s{sL}')
        if WPG: wfr(4*g, 4*g+4)
        wait_chain(sT2, 3, 4, 0, f'm{g}')
        for j in range(4):
            for nt in range(2):
                acc = vr(AC3+16*nt, 16); i = 4*g + j
                if WPG: A(f's_waitcnt lgkmcnt({14-4*j-2*nt})')
                A(f'{MFMA} {acc}, {vr(WF+8*i+4*nt,4)}, {vr(OF+4*i,4)}, {acc}')
        A(f'L_om{g}:')
    A(f'''s_cmp_lg_u32 s{sIss}, 0x1111
    s_cbranch_scc1 L_p3l
    s_cmp_lg_u32 s{sNew}, 0
    s_cbranch_scc1 L_p3l''')
    A(f's_lshr_b32 s{sT2}, s{sW}, 2\ns_nop 7\ns_nop 3')
    stamp(9)
    for kh in range(2):
        if kh == 0: A(f's_cmp_lg_u32 s{sT2}, 0\ns_cbranch_scc1 L_x1')
        else: A('L_x1:')
        send = AC3 + 16*(1-kh); keep = AC3 + 16*kh
        for g in range(4): A(f'ds_write_b128 v6, {vr(send+4*g,4)} offset:{g*1024}')
        A('s_waitcnt lgkmcnt(0)\ns_barrier')
        for g in range(4): A(f'ds_read_b128 {vr(16+4*g,4)}, v5 offset:{g*1024}')
        for g in range(4):
            A(f's_waitcnt lgkmcnt({3-g})')
            for r in range(4): A(f'v_add_f32 v{keep+4*g+r}, v{keep+4*g+r}, v{16+4*g+r}')
            for j in range(2): A(f'v_cvt_pk_bf16_f32 v{32+2*g+j}, v{keep+4*g+2*j}, v{keep+4*g+2*j+1}')
        if kh == 0: A('s_branch L_x2')
    A('L_x2:\ns_nop 1')
    for p in range(2):
        A(f'v_permlane32_swap_b32 v{32+4*p}, v{34+4*p}\nv_permlane32_swap_b32 v{33+4*p}, v{35+4*p}')
        A(f'buffer_store_dwordx4 {vr(32+4*p,4)}, v10, {srd(OUT)}, s{sN1} offen offset:{32*p}' + ['', ' sc1', ' nt', ' sc0 sc1', ' sc1 nt'][OST])
    if PROF:
        A('s_waitcnt vmcnt(0)')
        stamp(10)
        A(f'''s_lshl_b32 s{sT}, s2, 3
        s_add_u32 s{sT}, s{sT}, s{sW}
        s_lshl_b32 s{sT}, s{sT}, 7
        s_add_u32 s{sT}, s{sT}, {WS_ST}
        v_mov_b32 v1, 0''')
        for i in range(11):
            A(f'v_mov_b32 v2, s{sST+2*i}\nbuffer_store_dword v2, v1, {srd(WS)}, s{sT} offen offset:{4*i}')
        A(f'v_mov_b32 v2, s100\nbuffer_store_dword v2, v1, {srd(WS)}, s{sT} offen offset:60')
        A('s_mov_b32 s99, s100\ns_memrealtime s[100:101]\ns_waitcnt lgkmcnt(0)')
        A(f'v_mov_b32 v2, s100\nbuffer_store_dword v2, v1, {srd(WS)}, s{sT} offen offset:56')
    if DBGP:
        A(f'''s_mov_b64 exec, 1
        v_mov_b32 v2, s100
        buffer_atomic_umax v2, v1, {srd(DBG)}, 0 offen offset:56
        s_not_b32 s{sT}, s99
        v_mov_b32 v3, s{sT}
        buffer_atomic_umax v3, v1, {srd(DBG)}, 0 offen offset:60
        s_cmp_lg_u32 s2, {opt('dw', 77)}
        s_cbranch_scc1 L_end
        s_cmp_lg_u32 s{sW}, {opt('dv', 0)}
        s_cbranch_scc1 L_end''')
        for i in range(1, 11):
            A(f's_sub_u32 s{sT}, s{sST+2*i}, s{sST}\nv_mov_b32 v2, s{sT}\nbuffer_store_dword v2, v1, {srd(DBG)}, 0 offen offset:{12+4*i}')
        A('s_branch L_end\nL_dbg4:')
        for k, i in enumerate(()):
            A(f's_sub_u32 s{sT}, s{sST+2*i}, s{sST}\nv_mov_b32 v2, s{sT}\nbuffer_store_dword v2, v1, {srd(DBG)}, 0 offen offset:{52+4*k}')
    A('L_end:\ns_endpgm')

prologue()
compute_p1()
attention(0)
A('s_branch L_final')
loader_p1()
stamp(3)
attention(1)
finalize()
phase3()
fallback()
body, nadd = A.finish()
hdr = open('cdna_kernels/' + NAME + '.s.ref').read().split('; Override launch')[0]
out = hdr + f'''; @launch grid=(256,1,1) block=(512,1,1) lds=163840
.amdgcn_target "amdgcn-amd-amdhsa--gfx950"
.text
.globl {NAME}_kernel
.p2align 8
.type {NAME}_kernel,@function
{NAME}_kernel:
{body}.section .rodata,"a"
.p2align 6
.amdhsa_kernel {NAME}_kernel
  .amdhsa_next_free_vgpr 256
  .amdhsa_next_free_sgpr 102
  .amdhsa_accum_offset 256
  .amdhsa_group_segment_fixed_size 0
  .amdhsa_kernarg_size 72
  .amdhsa_user_sgpr_count 2
  .amdhsa_user_sgpr_kernarg_segment_ptr 1
  .amdhsa_system_sgpr_workgroup_id_x 1
.end_amdhsa_kernel
'''
dst = [a for a in sys.argv[1:] if not a.startswith('--')]
open(dst[0] if dst else 'cdna_kernels/' + NAME + '.s', 'w').write(out)
print('nops inserted', nadd, 'lines', body.count('\n'))
```

```python
import sys, struct, re
from asmlib import Asm
NAME = 'concat_heads__sliding_block__sliding_block__prompt'
DBGP = '--dbg' in sys.argv
PROF = '--prof' in sys.argv or DBGP
def opt(name, d):
    for a in sys.argv:
        if a.startswith('--'+name+'='): return int(a.split('=')[1])
    return d
DEP = opt('dep', 2); ROT = opt('rot', 0); PF = opt('pf', 1); LDSC = ' sc1' if opt('ldsc', 1) else ''
FORCE_FB = '--force-fb' in sys.argv
def f2u(x): return struct.unpack('<I', struct.pack('<f', x))[0]
A = Asm()
SLOT = 40960
WS_O = 8 << 20; WS_FL = 12 << 20; WS_ST = 13 << 20; WS_SZ = 14 << 20
RING0 = 40960; L_M = 0; L_CNT = 4096; L_WO = 4608; L_B = 70144; L_X = 122880
CSC = 0.25 * 1.4426950408889634
BIG = 1e30
sW = 3; X, Wq, WO, WS, OUT, DBG = 4, 8, 12, 16, 20, 24
sB, sRB, sHG, sWG = 28, 29, 30, 31
sXo, sWo, sSl, sIt, sT, sT2, sN1, sN2 = 50, 51, 52, 53, 54, 55, 56, 57
sHalf = 60; sC = 62; sSpin = 63; sFl = 64; sOb = 65; sT3 = 66; sLo = 67; sHi = 68
sST = 72
nst = [0]
def srd(i): return f's[{i}:{i+3}]'
def vr(a, n): return f'v[{a}:{a+n-1}]'
def stamp(idx):
    if PROF:
        A(f's_memtime s[{sST+2*idx}:{sST+2*idx+1}]\ns_waitcnt lgkmcnt(0)')
QF = 16; OA = 32; SB = 96; MK = 128; KF = 144; VF = 168; PK = 240
sEarly, sKB1, sKB2, sIss, sNew, sFB = 32, 33, 34, 35, 36, 37
sE1, sE2, sE3 = 39, 40, 41
sFo, sWm, sWg = 38, 48, 49
sM, sL = 42, 43
sPoll, sNeed = 50, 51
C_KV, C_O, R_KV, R_O = L_CNT+32, L_CNT+36, L_CNT+48, L_CNT+52
SLP = opt('slp', 2)
XCH = 4608
TLB = opt('tlb', 1)
WPG = opt('wpg', 1); PSW = opt('psw', 6); MAP = opt('map', 0)
WARM = opt('warm', 0)
WOE = opt('woe', 0); WOS = opt('wos', 4); CU = opt('cu', 2)
ST2 = opt('st2', 0)
OST = opt('ost', 0)
ACC = 16; FR = 112
MFMA = 'v_mfma_f32_32x32x16_bf16'

def prologue():
    A(f'''s_cmp_ge_u32 s2, 256
    s_cbranch_scc1 L_end
    s_load_dwordx8 s[32:39], s[0:1], 0
    s_load_dwordx8 s[40:47], s[0:1], 32
    s_load_dwordx2 s[48:49], s[0:1], 64''')
    if PROF: A(f's_memrealtime s[100:101]')
    A(f'''v_lshrrev_b32 v1, 6, v0
    v_and_b32 v0, 63, v0
    s_and_b32 s{sT}, s2, 7
    v_readfirstlane_b32 s{sW}, v1
    s_lshr_b32 s{sT2}, s2, 3
    s_lshr_b32 s{sB}, s{sT}, 2
    s_and_b32 s{sT}, s{sT}, 3
    s_lshl_b32 s{sT}, s{sT}, 2
    s_lshr_b32 s{sRB}, s{sT2}, 3
    s_add_u32 s{sRB}, s{sRB}, s{sT}
    s_and_b32 s{sHG}, s{sT2}, 7''')
    if MAP: A(f'''s_bfe_u32 s{sRB}, s2, 0x10001
    s_lshl_b32 s{sRB}, s{sRB}, 3
    s_lshr_b32 s{sT}, s{sT2}, 2
    s_add_u32 s{sRB}, s{sRB}, s{sT}
    s_and_b32 s{sHG}, s2, 1
    s_lshl_b32 s{sHG}, s{sHG}, 2
    s_and_b32 s{sT}, s{sT2}, 3
    s_add_u32 s{sHG}, s{sHG}, s{sT}''')
    A(f'''    s_lshl_b32 s{sWG}, s{sB}, 4
    s_add_u32 s{sWG}, s{sWG}, s{sRB}
    s_lshl_b32 s{sWG}, s{sWG}, 3
    s_add_u32 s{sWG}, s{sWG}, s{sHG}
    s_mov_b32 s{X+2}, 0x200000
    s_mov_b32 s{X+3}, 0x20000
    s_mov_b32 s{Wq+2}, 0x180000
    s_mov_b32 s{Wq+3}, 0x20000
    s_mov_b32 s{WO+2}, 0x80000
    s_mov_b32 s{WO+3}, 0x20000
    s_mov_b32 s{WS+2}, {WS_SZ}
    s_mov_b32 s{WS+3}, 0x20000
    s_mov_b32 s{OUT+2}, 0x400000
    s_mov_b32 s{OUT+3}, 0x20000
    s_mov_b32 s{DBG+2}, 256
    s_mov_b32 s{DBG+3}, 0x20000
    s_mov_b32 s{sHalf}, 0xffff
    s_mov_b32 s{sHalf+1}, 0xffff
    s_cmp_eq_u32 s{sB}, 0
    s_waitcnt lgkmcnt(0)
    s_cselect_b32 s{X}, s32, s38
    s_cselect_b32 s{X+1}, s33, s39
    s_cselect_b32 s{Wq}, s34, s40
    s_cselect_b32 s{Wq+1}, s35, s41
    s_cselect_b32 s{WO}, s36, s42
    s_cselect_b32 s{WO+1}, s37, s43
    s_mov_b32 s{OUT}, s44
    s_mov_b32 s{OUT+1}, s45
    s_mov_b32 s{DBG}, s46
    s_mov_b32 s{DBG+1}, s47
    s_mov_b32 s{WS}, s48
    s_mov_b32 s{WS+1}, s49''')
    stamp(0)
    A(f'''s_cmp_ge_u32 s{sW}, 4
    s_cbranch_scc1 L_loader''')

def preset_ones():
    A(f'v_mov_b32 v1, 0x3f803f80')
    for i in range(48): A(f'v_mov_b32 v{VF+i}, v1')

def common_consts():
    A(f'''s_lshl_b32 s{sFl}, s{sWG}, 7
    s_add_u32 s{sFl}, s{sFl}, {WS_FL}
    s_add_u32 s{sFo}, s{sFl}, 64
    s_mov_b32 s{sC}, {f2u(CSC)}
    s_mov_b32 s{sLo}, {f2u(2.0**-40)}
    s_mov_b32 s{sHi}, {f2u(2.0**40)}''')

def lds_min4(dst_s, vt, addr_v, off, wait=True):
    A(f'ds_read_b128 {vr(vt,4)}, v{addr_v} offset:{off}')
    A('s_waitcnt lgkmcnt(0)')
    min4(dst_s, vt)
def min4(dst_s, vt):
    A(f'v_min3_u32 v{vt}, v{vt}, v{vt+1}, v{vt+2}\nv_min_u32 v{vt}, v{vt}, v{vt+3}\nv_readfirstlane_b32 s{dst_s}, v{vt}')

def loader_p1():
    A('L_loader:')
    A(f"""v_lshrrev_b32 v6, 3, v0
    v_and_b32 v7, 7, v0
    v_lshrrev_b32 v8, 4, v0
    v_xor_b32 v9, v7, v8
    v_lshlrev_b32 v9, 4, v9
    v_lshl_add_u32 v2, v6, 10, v9
    v_xor_b32 v3, 64, v2
    v_and_b32 v8, 1, v8
    v_lshlrev_b32 v8, 2, v8
    v_xor_b32 v9, v7, v8
    v_lshlrev_b32 v9, 4, v9
    v_mul_u32_u24 v4, 3072, v6
    v_add_u32 v4, v4, v9
    v_lshl_add_u32 v5, v6, 10, v9
    s_sub_u32 s{sT}, s{sW}, 4
    s_lshl_b32 s{sXo}, s{sRB}, 17
    s_lshl_b32 s{sT2}, s{sT}, 15
    s_add_u32 s{sXo}, s{sXo}, s{sT2}
    s_mul_i32 s{sWo}, s{sT}, {16*3072}
    s_lshl_b32 s{sT2}, s{sHG}, 7
    s_add_u32 s{sWo}, s{sWo}, s{sT2}
    s_lshl_b32 s{sN1}, s{sT}, 12
    s_add_u32 s{sN1}, s{sN1}, {RING0+SLOT}
    s_lshl_b32 s{sN2}, s{sT}, 11
    s_add_u32 s{sN2}, s{sN2}, {16384+RING0+SLOT}
    s_lshl_b32 s{sT}, s{sT}, 2
    v_mov_b32 v10, 0
    v_mov_b32 v11, s{sT}
    s_mov_b32 s{sIt}, 0
    s_mov_b32 s69, 1
    L_ld_loop:""")
    for j in range(4):
        A(f"""s_add_u32 m0, s{sN1}, {j*1024}
        s_add_u32 s{sT}, s{sXo}, {j*8192}
        buffer_load_dwordx4 v{2+(j&1)}, {srd(X)}, s{sT} offen lds""")
    for seg in range(3):
        for q in range(2):
            A(f"""s_add_u32 m0, s{sN2}, {seg*8192+q*1024}
            s_add_u32 s{sT}, s{sWo}, {seg*1024+q*8*3072}
            buffer_load_dwordx4 v4, {srd(Wq)}, s{sT} offen lds""")
    A(f"""s_add_u32 s{sXo}, s{sXo}, 128
    s_add_u32 s{sWo}, s{sWo}, {64*3072}
    s_add_u32 s69, s69, 1
    s_mov_b32 s{sT}, {SLOT}
    s_cmp_eq_u32 s69, 3
    s_cselect_b32 s{sT}, {-2*SLOT & 0xffffffff}, s{sT}
    s_cselect_b32 s69, 0, s69
    s_add_u32 s{sN1}, s{sN1}, s{sT}
    s_add_u32 s{sN2}, s{sN2}, s{sT}
    s_cmp_lg_u32 s{sIt}, 0
    s_cbranch_scc1 L_ld_sig
    s_barrier
    s_mov_b32 s{sIt}, 1
    s_branch L_ld_loop
    L_ld_sig:
    v_mov_b32 v12, s{sIt}
    s_add_u32 s{sIt}, s{sIt}, 1
    s_waitcnt vmcnt(10)
    ds_write_b32 v11, v12 offset:{L_CNT}
    s_cmp_lt_u32 s{sIt}, 3
    s_cbranch_scc1 L_ld_loop
    s_cmp_eq_u32 s{sIt}, 8
    s_cbranch_scc1 L_ld_done
    s_sub_u32 s{sT3}, s{sIt}, 2""")
    lds_min4(sT2, 16, 10, L_CNT+16)
    A(f"""s_cmp_ge_u32 s{sT2}, s{sT3}
    s_cbranch_scc1 L_ld_loop
    v_mov_b32 v12, s{sIt}
    s_waitcnt vmcnt(0)
    ds_write_b32 v11, v12 offset:{L_CNT}
    L_ld_spin:""")
    lds_min4(sT2, 16, 10, L_CNT+16)
    A(f"""s_cmp_ge_u32 s{sT2}, s{sT3}
    s_cbranch_scc1 L_ld_loop
    s_branch L_ld_spin
    L_ld_done:
    v_and_b32 v13, 3, v0
    v_lshlrev_b32 v13, 2, v13
    buffer_load_dword v7, v13, {srd(DBG)}, 0 offen sc1
    v_mov_b32 v12, 8
    s_waitcnt vmcnt(1)
    ds_write_b32 v11, v12 offset:{L_CNT}""")
    stamp(1)
    A(f"""v_and_b32 v6, 31, v0
    v_lshrrev_b32 v9, 5, v0
    v_lshlrev_b32 v9, 2, v9
    v_sub_u32 v6, v6, v9
    v_cvt_f32_i32 v6, v6
    s_mov_b32 s{sT}, {f2u(-BIG)}
    v_lshlrev_b32 v8, 4, v0""")
    for r in range(16):
        c = 8*(r//4) + r % 4
        A(f'v_sub_f32 v{MK+r}, {f2u(float(c))}, v6')
        A(f'v_med3_f32 v{MK+r}, v{MK+r}, 0, 1.0')
        A(f'v_mul_f32 v{MK+r}, s{sT}, v{MK+r}')
    for g in range(4):
        A(f'ds_write_b128 v8, {vr(MK+4*g,4)} offset:{L_M+g*1024}')
    preset_ones()
    common_consts()
    A(f"""s_mov_b32 s{sSpin}, 0
    s_mov_b32 s{sT}, 1
    s_waitcnt vmcnt(0)
    L_gate:
    v_cmp_ne_u32 vcc, s{sT}, v7
    s_cbranch_vccz L_gate_ok
    s_sleep 4
    buffer_load_dword v7, v13, {srd(DBG)}, 0 offen sc1
    s_add_u32 s{sSpin}, s{sSpin}, 1
    s_cmp_lt_u32 s{sSpin}, 0x10000
    s_waitcnt vmcnt(0)
    s_cbranch_scc1 L_gate
    L_gate_ok:""")
    nb_setup()
    for r in range(16): A(f'v_mov_b32 v{OA+r}, 0')
    if WOE:
        A('L_wo_spin:')
        lds_min4(sT2, 16, 12, L_CNT+16)
        A(f's_cmp_lt_u32 s{sT2}, 6\ns_cbranch_scc1 L_wo_spin')
        for j in range(16): wo_dma(j)
        stamp(2)
    else:
        poll_issue(4, 'y0')
        stamp(2)
        try_load(1, 'a')
    A("""    s_waitcnt lgkmcnt(0)
    s_barrier""")

def frag_reads(buf, ks):
    F = FR + 20*buf
    xs = [f'ds_read_b128 {vr(F+4*mt,4)}, v{2+ks} offset:{mt*4096}' for mt in range(2)]
    def wrd(seg): return [f'ds_read_b64_tr_b16 {vr(F+8+4*seg+2*j,2)}, v6 offset:{16384+seg*8192+ks*2048+j*512}' for j in range(2)]
    return [xs[0]] + wrd(0) + [xs[1]] + wrd(1) + wrd(2)
def mfmas(buf):
    F = FR + 20*buf
    L = []
    for seg in range(3):
        for mt in range(2):
            acc = vr(ACC + (seg*2+mt)*16, 16)
            x = vr(F+4*mt, 4); w = vr(F+8+4*seg, 4)
            a, b = (w, x) if seg < 2 else (x, w)
            L.append(f'{MFMA} {acc}, {a}, {b}, {acc}')
    return L

def compute_p1():
    A(f'''v_mov_b32 v12, 0
    v_lshlrev_b32 v13, 2, v0
    ds_write_b32 v13, v12 offset:{L_CNT}
    s_waitcnt lgkmcnt(0)
    s_barrier''')
    A(f'''s_cmp_lg_u32 s2, 0
    s_cbranch_scc1 L_noinit
    v_lshlrev_b32 v1, 4, v0
    v_mov_b32 v4, 0
    v_mov_b32 v5, 0
    v_mov_b32 v6, 0
    v_mov_b32 v7, 0
    s_lshl_b32 s{sT}, s{sW}, 13
    s_add_u32 s{sT}, s{sT}, {WS_FL}
    s_add_u32 s{sT2}, s{sT}, 8192
    L_init:
    buffer_store_dwordx4 v[4:7], v1, {srd(WS)}, s{sT} offen sc1
    s_add_u32 s{sT}, s{sT}, 1024
    s_cmp_lt_u32 s{sT}, s{sT2}
    s_cbranch_scc1 L_init
    L_noinit:''')
    A(f'''v_and_b32 v7, 31, v0
    v_lshrrev_b32 v8, 5, v0
    v_lshrrev_b32 v9, 1, v7
    v_and_b32 v9, 7, v9
    v_xor_b32 v9, v9, v8
    v_lshlrev_b32 v9, 4, v9
    v_lshl_add_u32 v2, v7, 7, v9
    s_lshr_b32 s{sT}, s{sW}, 1
    s_lshl_b32 s{sT}, s{sT}, 13
    s_add_u32 s{sT}, s{sT}, {RING0+SLOT}
    v_add_u32 v2, s{sT}, v2
    v_xor_b32 v3, 32, v2
    v_xor_b32 v4, 64, v2
    v_xor_b32 v5, 96, v2
    v_bfe_u32 v9, v0, 2, 2
    v_lshl_add_u32 v9, v8, 3, v9
    v_lshlrev_b32 v6, 7, v9
    v_bfe_u32 v9, v0, 4, 1
    v_lshlrev_b32 v9, 1, v9
    v_bfe_u32 v10, v0, 1, 1
    v_or_b32 v9, v9, v10
    v_bfe_u32 v10, v0, 3, 1
    s_and_b32 s{sT}, s{sW}, 1
    v_xor_b32 v10, s{sT}, v10
    v_lshl_or_b32 v9, v10, 2, v9
    v_lshl_add_u32 v6, v9, 4, v6
    v_and_b32 v9, 1, v0
    v_lshl_add_u32 v6, v9, 3, v6
    v_add_u32 v6, {RING0+SLOT}, v6
    s_lshl_b32 s{sT}, s{sW}, 2
    v_mov_b32 v13, s{sT}''')
    epi_addr()
    for i in range(96): A(f'v_mov_b32 v{ACC+i}, 0')
    preset_ones()
    common_consts()
    nb_setup(True)
    if TLB:
        A(f'''s_lshl_b32 s{sT}, s{sRB}, 18
        s_mov_b64 exec, 1
        buffer_load_dword v250, v12, {srd(WS)}, s{sE1} offen sc1
        buffer_load_dword v250, v12, {srd(WS)}, s{sOb} offen sc1
        buffer_load_dword v250, v12, {srd(WS)}, s{sFl} offen offset:32 sc1
        buffer_load_dword v250, v12, {srd(OUT)}, s{sT} offen sc1
        buffer_load_dword v250, v12, {srd(WO)}, s{sWg} offen
        s_cmp_lt_u32 s{sRB}, 2
        s_cselect_b32 s{sT}, s{sE1}, s{sKB2}
        buffer_load_dword v250, v12, {srd(WS)}, s{sT} offen sc1
        s_mov_b64 exec, -1''')
    A(f's_mov_b32 s{sIt}, 0\ns_mov_b32 s69, 1\nL_c_spin0:')
    lds_min4(sT2, 8, 12, L_CNT)
    A(f's_cmp_lt_u32 s{sT2}, 1\ns_cbranch_scc1 L_c_spin0')
    A(f'''s_cmp_lg_u32 s2, 0
    s_cbranch_scc1 L_noann
    v_mov_b32 v14, 1
    s_mov_b64 exec, 1
    s_waitcnt vmcnt(0)
    buffer_store_dword v14, v13, {srd(DBG)}, 0 offen sc1
    s_mov_b64 exec, -1
    L_noann:''')
    stamp(1)
    Q = []
    def ds(txt, tag): A(txt); Q.append(tag)
    def wait(tag):
        n = len(Q) - 1 - max(i for i, t in enumerate(Q) if t == tag)
        A(f's_waitcnt lgkmcnt({n})')
        del Q[:len(Q)-n]
    TAGS = ['x0', 'wq', 'wq', 'x1', 'wk', 'wk', 'wv', 'wv']
    for r, t in zip(frag_reads(0, 0), TAGS): ds(r, (0, t))
    A('L_p1_loop:')
    for ks in range(4):
        cur = ks & 1
        M = mfmas(cur)
        nk = (ks+1) & 3
        R = [(r, (nk, t)) for r, t in zip(frag_reads(cur ^ 1, nk), TAGS)]
        if ks < 3:
            wait((ks, 'wq')); A(M[0]); ds(*R[0]); ds(*R[1])
            wait((ks, 'x1')); A(M[1]); ds(*R[2]); ds(*R[3])
            wait((ks, 'wk')); A(M[2]); ds(*R[4]); ds(*R[5])
            A(M[3]); ds(*R[6]); ds(*R[7])
            wait((ks, 'wv')); A(M[4])
            if ks == 2: ds(f'ds_read_b128 v[8:11], v12 offset:{L_CNT}', 'cnt')
            A(M[5])
        else:
            wait((ks, 'wq')); A(M[0])
            A(f"""s_add_u32 s{sIt}, s{sIt}, 1
            s_add_u32 s69, s69, 1
            s_mov_b32 s{sT}, {SLOT}
            s_cmp_eq_u32 s69, 3
            s_cselect_b32 s{sT}, {-2*SLOT & 0xffffffff}, s{sT}
            s_cselect_b32 s69, 0, s69
            v_mov_b32 v14, s{sIt}""")
            wait((ks, 'x1')); A(M[1])
            for i in range(2, 7): A(f'v_add_u32 v{i}, s{sT}, v{i}')
            wait('cnt')
            A(f'ds_write_b32 v13, v14 offset:{L_CNT+16}')
            min4(sT2, 8)
            A(M[2])
            A(f"""s_min_u32 s{sT3}, s{sIt}, 7
            s_cmp_gt_u32 s{sT2}, s{sT3}
            s_cbranch_scc1 L_c_ok
            L_c_spin:""")
            lds_min4(sT2, 8, 12, L_CNT)
            A(f"""s_cmp_le_u32 s{sT2}, s{sT3}
            s_cbranch_scc1 L_c_spin
            L_c_ok:""")
            Q[:] = []
            ds(*R[0]); ds(*R[1])
            A(M[3]); ds(*R[2]); ds(*R[3]); ds(*R[4])
            A(M[4]); ds(*R[5]); ds(*R[6]); ds(*R[7])
            A(f's_cmp_lt_u32 s{sIt}, 8')
            A(M[5])
            A('s_cbranch_scc1 L_p1_loop')
    stamp(2)
    A('L_c_spin2:')
    lds_min4(sT2, 8, 12, L_CNT+16)
    A(f's_cmp_lt_u32 s{sT2}, 7\ns_cbranch_scc1 L_c_spin2')
    tmp = FR
    def cvt8(acc, dst):
        for i in range(8): A(f'v_cvt_pk_bf16_f32 v{dst+i}, v{acc+2*i}, v{acc+2*i+1}')
    n = 0
    for mt in range(2):
        acc = ACC + (1*2+mt)*16; d = tmp + 8*(n % 5); n += 1
        cvt8(acc, d)
        for e in range(2):
            A(f'buffer_store_dwordx4 {vr(d+4*e,4)}, v152, {srd(WS)}, s{sE2 if e else sE1} offen offset:{mt*1024} sc1')
            A(f'ds_write_b128 v155, {vr(d+4*e,4)} offset:{e*4096+mt*1024}')
    for mt in range(2):
        acc = ACC + (2*2+mt)*16; d = tmp + 8*(n % 5); n += 1
        cvt8(acc, d)
        for a in range(2):
            A(f'buffer_store_dwordx4 {vr(d+4*a,4)}, v154, {srd(WS)}, s{sE3} offen offset:{mt*1024+a*512} sc1')
            A(f'ds_write_b128 v153, {vr(d+4*a,4)} offset:{16384+mt*1024+a*512}')
    for mt in range(2):
        acc = ACC + mt*16
        for i in range(8): A(f'v_pk_mul_f32 {vr(acc+2*i,2)}, {vr(acc+2*i,2)}, s[{sC}:{sC+1}] op_sel_hi:[1,0]')
        cvt8(acc, acc)
        for e in range(2):
            A(f'ds_write_b128 v155, {vr(acc+4*e,4)} offset:{32768+e*4096+mt*1024}')
    for i in range(1, 13): A(f'v_mov_b32 v{i}, v{216+i}')
    A('s_waitcnt lgkmcnt(0)\ns_barrier')
    stamp(3)

def epi_addr():
    A(f'''v_lshlrev_b32 v152, 4, v0
    v_bfe_u32 v10, v0, 4, 1
    v_and_b32 v11, 15, v0
    v_lshrrev_b32 v7, 5, v0
    v_lshl_or_b32 v11, v7, 4, v11
    v_lshlrev_b32 v11, 4, v11
    v_lshl_add_u32 v153, v10, 12, v11
    v_lshl_add_u32 v154, v10, 13, v11
    s_and_b32 s{sT}, s{sW}, 1
    s_lshr_b32 s{sT2}, s{sW}, 1
    s_lshl_b32 s{sN1}, s{sT}, 13
    s_lshl_b32 s{sT3}, s{sT2}, 11
    s_add_u32 s{sN1}, s{sN1}, s{sT3}
    s_add_u32 s{sN1}, s{sN1}, {L_B}
    v_add_u32 v155, s{sN1}, v152
    v_add_u32 v153, s{sN1}, v153
    s_lshl_b32 s{sE1}, s{sWG}, 15
    s_lshl_b32 s{sT}, s{sT}, 14
    s_add_u32 s{sE1}, s{sE1}, s{sT}
    s_add_u32 s{sE1}, s{sE1}, s{sT3}
    s_add_u32 s{sE2}, s{sE1}, 8192
    s_add_u32 s{sE3}, s{sE1}, 4096''')

UNITS = {0: dict(tiles=[0, 3, -1, -2, -5, -8], keep=(0, 1),
                 own=[(0,0,1),(1,0,0),(2,0,0),(3,0,0),(3,3,1)],
                 C=[(0,-5,0),(1,-5,0),(2,-5,0),(3,-5,1),(0,-8,1)]),
         1: dict(tiles=[1, 2, -3, -4, -6, -7], keep=(2, 3),
                 own=[(1,1,1),(2,1,0),(3,1,0),(2,2,1),(3,2,0)],
                 C=[(0,-6,0),(1,-6,0),(2,-6,1),(0,-7,0),(1,-7,1)])}
for U in UNITS.values(): U['B'] = [(q, t, 0) for t in U['tiles'][2:4] for q in range(4)]
CT = [None]
def kf(t): return KF + 4*CT[0].index(t)
def vf(t, a): return VF + 8*CT[0].index(t) + 4*a
def qk(u, sb):
    q, t, m = u
    return f'{MFMA} {vr(sb,16)}, {vr(kf(t),4)}, {vr(QF+4*q,4)}, {vr(MK,16) if m else "0"}'
def pv(u, sb, a, first):
    q, t, m = u
    o = vr(OA+16*q, 16)
    return f'{MFMA} {o}, {vr(vf(t,a),4)}, {vr(sb+8*a,4)}, {"0" if first else o}'
def segment(units, started, pre_qk=None, pre_pv=None, mid=None):
    n = len(units)
    def QK(i):
        if pre_qk: pre_qk(units[i])
        A(qk(units[i], SB+16*(i & 1)))
    def PV(i, a):
        u = units[i]
        if pre_pv: pre_pv(u)
        first = (u[0] not in started)
        started.add(u[0])
        A(pv(u, SB+16*(i & 1), a, first))
    QK(0)
    if n > 1: QK(1)
    for i in range(n):
        S = SB + 16*(i & 1)
        e = lambda r: A(f'v_exp_f32 v{S+r}, v{S+r}')
        def c(j):
            d = S + j if j < 4 else S + 4 + j
            A(f'v_cvt_pk_bf16_f32 v{d}, v{S+2*j}, v{S+2*j+1}')
        if mid and i in mid: mid[i]()
        e(0); e(1)
        if i > 0:
            PV(i-1, 1)
            if i+1 < n: QK(i+1)
        for j in range(7):
            e(2*j+2); c(j); e(2*j+3)
            if j == 4: PV(i, 0)
        A('s_nop 0'); c(7)
    PV(n-1, 1)

def nb_setup(hoist=False):
    n0 = len(A.L)
    A(f'''s_and_b32 s{sT}, s{sW}, 3
    s_lshl_b32 s{sT2}, s{sT}, 12
    s_add_u32 s{sT2}, s{sT2}, {L_B}
    v_lshlrev_b32 v2, 4, v0
    v_add_u32 v7, s{sT2}, v2
    v_and_b32 v11, 15, v0
    v_lshrrev_b32 v12, 5, v0
    v_lshl_or_b32 v11, v12, 4, v11
    v_lshlrev_b32 v3, 4, v11
    v_add_u32 v8, s{sT2}, v3
    v_add_u32 v3, 4096, v3
    s_lshl_b32 s{sKB1}, s{sWG}, 2
    s_add_u32 s{sKB1}, s{sKB1}, s{sT}
    s_lshl_b32 s{sKB1}, s{sKB1}, 13
    s_sub_u32 s{sKB2}, s{sKB1}, {2*32*8192}
    s_sub_u32 s{sKB1}, s{sKB1}, {32*8192}
    s_lshl_b32 s{sOb}, s{sWG}, 14
    s_lshl_b32 s{sT2}, s{sT}, 10
    s_add_u32 s{sOb}, s{sOb}, s{sT2}
    s_add_u32 s{sOb}, s{sOb}, {WS_O}
    s_and_b32 s{sT}, s{sW}, 1
    s_lshl_b32 s{sT2}, s{sT}, 10
    s_sub_u32 s{sT2}, s{sFl}, s{sT2}
    s_sub_u32 s{sT2}, s{sT2}, 1024
    v_mov_b32 v4, s{sT2}
    s_min_u32 s{sT2}, s{sRB}, 2
    s_lshr_b32 s{sNeed}, s{sW}, 1
    s_and_b32 s{sNeed}, s{sNeed}, 2
    s_xor_b32 s{sNeed}, s{sNeed}, s{sW}
    s_and_b32 s{sNeed}, s{sNeed}, 3
    s_cmp_lt_u32 s{sNeed}, s{sT2}
    s_cselect_b32 s{sPoll}, 1, 0
    s_lshl_b32 s{sPoll}, s{sPoll}, s{sT}
    s_mov_b32 s{sNeed}, 1
    v_lshrrev_b32 v1, 3, v0
    v_and_b32 v5, 7, v0
    v_bfe_u32 v6, v0, 4, 1
    v_lshlrev_b32 v6, 2, v6
    v_xor_b32 v5, v5, v6
    v_lshlrev_b32 v5, 4, v5
    v_lshl_add_u32 v1, v1, 10, v5
    s_and_b32 s{sT}, s{sW}, {3 if WOE else 7}
    s_lshl_b32 s{sWm}, s{sT}, {14 if WOE else 13}
    s_add_u32 s{sWm}, s{sWm}, {L_WO}
    s_lshl_b32 s{sWg}, s{sT}, {17 if WOE else 16}
    s_lshl_b32 s{sT}, s{sHG}, 7
    s_add_u32 s{sWg}, s{sWg}, s{sT}
    s_cmp_eq_u32 s{sRB}, 0
    s_cselect_b32 s{sEarly}, 1, 0
    s_mov_b32 s{sFB}, 0
    s_mul_i32 s{sT}, s{sW}, {XCH}
    s_add_u32 s{sT}, s{sT}, {L_X}
    v_add_u32 v5, s{sT}, v2
    v_lshl_add_u32 v10, v0, 2, s{sT}
    s_xor_b32 s{sT}, s{sW}, 4
    s_mul_i32 s{sT}, s{sT}, {XCH}
    s_add_u32 s{sT}, s{sT}, {L_X}
    v_add_u32 v6, s{sT}, v2
    v_lshl_add_u32 v11, v0, 2, s{sT}''')
    A(f'''s_andn2_b32 s{sN1}, s{sWG}, 7
    s_add_u32 s{sN1}, s{sN1}, s{sW}
    s_lshl_b32 s{sN1}, s{sN1}, 7
    s_add_u32 s{sN1}, s{sN1}, {WS_FL+64}
    v_mov_b32 v9, s{sN1}
    v_mov_b32 v12, 0''')
    if hoist: A.L[n0:] = [re.sub(r'\bv(1[0-2]|[1-9])\b', lambda m: f'v{216+int(m.group(1))}', l) for l in A.L[n0:]]

def wo_dma(j):
    A(f'''s_add_u32 m0, s{sWm}, {j*1024}
    s_add_u32 s{sT}, s{sWg}, {j*8192}
    buffer_load_dwordx4 v1, {srd(WO)}, s{sT} offen lds''')
def poll_issue(va, tag):
    A(f'''s_cmp_eq_u32 s{sPoll}, 0
    s_cbranch_scc1 L_pi{tag}
    s_mov_b64 exec, 1
    buffer_load_dword v15, v{va}, {srd(WS)}, 0 offen sc1
    s_mov_b64 exec, -1
    L_pi{tag}:''')
def poll_check(rdy, tag, wait):
    A(f's_cmp_eq_u32 s{sPoll}, 0\ns_cbranch_scc1 L_pc{tag}')
    wait()
    A(f'''v_readfirstlane_b32 s{sT}, v15
    v_mov_b32 v14, s{sPoll}
    s_cmp_lg_u32 s{sT}, 1
    s_cbranch_scc1 L_pc{tag}
    s_mov_b64 exec, 1
    ds_or_b32 v12, v14 offset:{rdy}
    s_mov_b64 exec, -1
    s_mov_b32 s{sPoll}, 0
    L_pc{tag}:
    ds_read_b32 v14, v12 offset:{rdy}
    s_waitcnt lgkmcnt(0)
    v_readfirstlane_b32 s{sT}, v14''')
def nb_loads(ty, tag, far=False):
    CT[0] = UNITS[ty]['tiles']
    def ld(t):
        base = sKB1 if t >= -4 else sKB2
        T = t % 4
        A(f'buffer_load_dwordx4 {vr(kf(t),4)}, v2, {srd(WS)}, s{base} offen offset:{T*1024}{LDSC}')
        A(f's_mov_b64 exec, s[{sHalf}:{sHalf+1}]')
        for a in range(2):
            A(f'buffer_load_dwordx4 {vr(vf(t,a),4)}, v3, {srd(WS)}, s{base} offen offset:{T*1024+a*512}{LDSC}')
        A('s_mov_b64 exec, -1')
    for t in (CT[0][4:6] if far else CT[0][2:4]): ld(t)
    A(f's_mov_b32 s{sEarly}, 1\ns_andn2_b32 s{sPoll}, s{sPoll}, s{sNeed}')
def kv_block(ty, tag):
    A(f's_mov_b32 s{sSpin}, 0\nL_pkv{ty}{tag}:')
    kv_check(ty, f'b{tag}')
    A(f'''s_cmp_eq_u32 s{sT}, s{sNeed}
    s_cbranch_scc1 L_pkv{ty}{tag}_ok
    s_add_u32 s{sSpin}, s{sSpin}, 1
    s_sleep {SLP}
    s_cmp_lt_u32 s{sSpin}, 0x40000
    s_cbranch_scc1 L_pkv{ty}{tag}
    L_pkv{ty}{tag}_ok:''')
def kv_check(ty, tag):
    poll_check(R_KV, f'k{ty}{tag}', lambda: A('s_waitcnt vmcnt(0)'))
    A(f's_andn2_b32 s{sPoll}, s{sPoll}, s{sT}')
    poll_issue(4, f'k{ty}{tag}')
    A(f's_and_b32 s{sT}, s{sT}, s{sNeed}')
def poll_step(ty, tag):
    A(f's_cmp_eq_u32 s{sPoll}, 0\ns_cbranch_scc1 L_ps{ty}{tag}')
    kv_check(ty, tag)
    A(f'L_ps{ty}{tag}:')
def try_load(ty, tag, nopoll=False):
    A(f's_cmp_lg_u32 s{sEarly}, 0\ns_cbranch_scc1 L_tl{ty}{tag}')
    if nopoll: A(f'ds_read_b32 v14, v12 offset:{R_KV}\ns_waitcnt lgkmcnt(0)\nv_readfirstlane_b32 s{sT}, v14\ns_and_b32 s{sT}, s{sT}, s{sNeed}')
    else: kv_check(ty, tag)
    A(f's_cmp_lg_u32 s{sT}, s{sNeed}\ns_cbranch_scc1 L_tl{ty}{tag}')
    nb_loads(ty, tag)
    A(f'L_tl{ty}{tag}:')

def publish(sa, cnt, last, tag, rdy=None):
    A(f'''v_mov_b32 v14, 1
    s_mov_b64 exec, 1
    s_waitcnt vmcnt(0)
    ds_add_rtn_u32 v13, v12, v14 offset:{cnt}
    s_waitcnt lgkmcnt(0)
    v_readfirstlane_b32 s{sT}, v13
    s_cmp_lg_u32 s{sT}, {last}
    s_cbranch_scc1 L_pub{tag}
    buffer_store_dword v14, v12, {srd(WS)}, s{sa} offen sc1''')
    if rdy:
        A(f's_lshl_b32 s{sT}, s{sHG}, 2\ns_lshl_b32 s{sT}, 1, s{sT}\nv_mov_b32 v13, s{sT}\nds_or_b32 v12, v13 offset:{rdy}')
    A(f'L_pub{tag}:\ns_mov_b64 exec, -1')

RG = SB
TRY = {0: (2, 4), 1: (2, 4)}
PRIO = opt('prio', 1)
PV2 = opt('pv', 2)
def attention(ty):
    U = UNITS[ty]; CT[0] = U['tiles']
    own = U['tiles'][:2]
    if ty == 0:
        publish(sFl, C_KV, 3, 'k')
        if ST2 == 2: stamp(1)
        poll_issue(4, 'x0')
        if WARM & 1:
            A(f'''v_and_b32 v13, 15, v0
            v_lshlrev_b32 v13, 7, v13
            v_lshrrev_b32 v14, 4, v0
            v_lshl_add_u32 v13, v14, 12, v13
            buffer_load_dword v250, v13, {srd(WS)}, s{sE1} offen''')
    for q in range(4): A(f'ds_read_b128 {vr(QF+4*q,4)}, v7 offset:{32768+q*1024}')
    for t in own: A(f'ds_read_b128 {vr(kf(t),4)}, v7 offset:{t*1024}')
    for g in range(4): A(f'ds_read_b128 {vr(MK+4*g,4)}, v2 offset:{L_M+g*1024}')
    A(f's_mov_b64 exec, s[{sHalf}:{sHalf+1}]')
    for t in own:
        for a in range(2): A(f'ds_read_b128 {vr(vf(t,a),4)}, v8 offset:{16384+t*1024+a*512}')
    A('s_mov_b64 exec, -1')
    A('s_waitcnt lgkmcnt(4)')
    started = set() if ty == 0 else {0}
    MID = {0: {3: lambda: try_load(0, 'm3'), 4: lambda: try_load(0, 'm4', True)},
           1: {3: lambda: poll_issue(4, 'y3'), 4: lambda: try_load(1, 'm4', PV2 == 0)}}
    if PV2 == 2: MID[0] = {2: lambda: try_load(0, 'm3'), 4: lambda: try_load(0, 'm4')}
    done = [False]
    def pre_pv(u):
        if not done[0]: A('s_waitcnt lgkmcnt(0)'); done[0] = True
    segment(U['own'], started, pre_pv=pre_pv, mid=MID[ty])
    stamp(4)
    Lfin = f'L_fin{ty}'
    A(f'''s_cmp_lg_u32 s{sEarly}, 0
    s_cbranch_scc1 L_have{ty}''')
    kv_block(ty, 'n')
    nb_loads(ty, 'b')
    A(f'L_have{ty}:')
    if opt('exp', 0) and ty == 1: A('s_branch L_have0')
    stamp(5)
    A(f's_cmp_eq_u32 s{sRB}, 0\ns_cbranch_scc1 L_z{ty}')
    LB = f'L_B{ty}'
    nd = [0]
    def dm(j):
        def f():
            if not WOE: wo_dma(j); nd[0] += 1
        return f
    A(f's_cmp_eq_u32 s{sRB}, 1\ns_cbranch_scc1 {LB}_only')
    def mk_wait(order):
        seen = set()
        def w(u):
            t = u[1]
            if t not in seen:
                seen.add(t)
                k = order.index(t)
                A(f's_waitcnt vmcnt({(3 if k == 0 else 3*(len(order)-1-k))+nd[0]})')
        return w
    for r in range(16): A(f'v_sub_f32 v{MK+r}, {f2u(-BIG)}, v{MK+r}')
    if PRIO:
        dm0 = dm
        def dm(j):
            f0 = dm0(j)
            def f():
                f0()
                if PRIO == 1 and ty == 1 and j in (0, PSW): A(f's_setprio {1 if j == 0 else 0}')
                if PRIO == 2 and ty == 1: A(f's_setprio {1 - (j & 1)}')
                if PRIO == 3 and ty == 1 and j == 0: A('s_setprio 1')
            return f
    midC = {i+WOS: dm(i) for i in range(8)}
    def farload():
        A(f's_mov_b32 s{sNeed}, 2')
        kv_block(ty, 'f')
        nb_loads(ty, 'f', True)
    midC[CU] = farload
    segment(U['B'] + U['C'], set(started), pre_qk=mk_wait(U['tiles'][2:6]), mid=midC)
    A(f's_branch {Lfin}\nL_z{ty}:')
    for j in range(0 if WOE else 8): wo_dma(j)
    A(f's_branch {Lfin}')
    nd[0] = 0
    A(f'{LB}_only:')
    segment(U['B'], set(started), pre_qk=mk_wait(U['tiles'][2:4]), mid={i: dm(i) for i in range(8)})
    A(f'{Lfin}:')
    if PRIO: A('s_setprio 0')
    A('s_nop 10')
    stamp(6)
    send = [q for q in range(4) if q not in U['keep']]
    for a, q in enumerate(send):
        o = OA + 16*q
        A(f'ds_write_b128 v5, {vr(o,4)} offset:{a*2048}\nds_write_b128 v5, {vr(o+4,4)} offset:{a*2048+1024}')
        A(f'ds_write_b32 v10, v{o+8} offset:{4096+a*256}')
    A('s_waitcnt vmcnt(0) lgkmcnt(0)')
    if ST2 == 1: stamp(1)
    A('s_barrier')
    if ST2 == 1: stamp(2)
    A(f's_lshl_b32 s{sT}, s{sW}, 2\ns_lshl_b32 s{sPoll}, 1, s{sT}\ns_cmp_eq_u32 s{sW}, s{sHG}\ns_cselect_b32 s{sPoll}, 0, s{sPoll}')
    poll_issue(9, f'o{ty}')
    for a in range(2):
        A(f'ds_read_b32 v{RG+16+a}, v11 offset:{4096+a*256}')
        A(f'ds_read_b128 {vr(RG+8*a,4)}, v6 offset:{a*2048}\nds_read_b128 {vr(RG+8*a+4,4)}, v6 offset:{a*2048+1024}')
    for a, q in enumerate(U['keep']):
        o = OA + 16*q
        A(f's_waitcnt lgkmcnt({3-3*a})')
        A(f'v_add_f32 v{RG+16+a}, v{RG+16+a}, v{o+8}')
        for j in range(8): A(f'v_add_f32 v{RG+8*a+j}, v{RG+8*a+j}, v{o+j}')
    if ty == 1:
        for j in range(8): A(f'v_mov_b32 v{QF+j}, v{QF+8+j}')

def finalize():
    A(f'''L_final:
    v_rcp_f32 v{RG+18}, v{RG+16}
    v_rcp_f32 v{RG+19}, v{RG+17}
    s_lshr_b32 s{sT}, s{sW}, 2
    s_lshl_b32 s{sT}, s{sT}, 13
    s_add_u32 s{sT}, s{sT}, s{sOb}
    s_add_u32 s{sT2}, s{sT}, 4096''')
    for a in range(2):
        o = RG + 8*a
        for j in range(8): A(f'v_mul_f32 v{o+j}, v{o+j}, v{RG+18+a}')
        for j in range(4): A(f'v_cvt_pk_bf16_f32 v{PK+4*a+j}, v{o+2*j}, v{o+2*j+1}')
        A(f'buffer_store_dwordx4 {vr(PK+4*a,4)}, v2, {srd(WS)}, s{sT2 if a else sT} offen sc1')
    for a in range(2):
        o = RG + 8*a; l = RG + 16 + a; m = f's[{70 if a else 58}:{71 if a else 59}]'
        A(f'v_cmp_lt_f32 {m}, s{sLo}, v{l}\nv_cmp_gt_f32 vcc, s{sHi}, v{l}\ns_and_b64 {m}, {m}, vcc')
        A(f'v_add_f32 v{l+4}, |v{o}|, |v{o+1}|')
        for j in range(2, 8): A(f'v_add_f32 v{l+4}, v{l+4}, |v{o+j}|')
    A(f'''v_add_f32 v{RG+20}, v{RG+20}, v{RG+21}
    s_and_b64 s[58:59], s[58:59], s[70:71]
    s_mov_b32 s{sT}, 0x7f800000
    v_cmp_gt_f32 vcc, s{sT}, v{RG+20}
    s_and_b64 s[58:59], s[58:59], vcc
    s_cmp_eq_u64 s[58:59], -1
    s_cselect_b32 s{sT}, {0 if FORCE_FB else 1}, 0
    s_or_b32 s{sT}, s{sT}, s{sFB}
    s_cbranch_scc0 L_fb''')
    if ST2: stamp(3 if ST2 == 1 else 2)

def fallback():
    A('L_fb:')
    sG, sG0, sQ, sA, sBv, sAd = 42, 43, 44, 45, 46, 47
    S = OA + 32; CB = OA + 48; MX = 248
    for g in range(4): A(f'ds_read_b128 {vr(MK+4*g,4)}, v2 offset:{L_M+g*1024}')
    A(f'''s_mov_b32 s{sFB}, 1
    s_lshr_b32 s{sQ}, s{sW}, 2
    s_lshl_b32 s{sQ}, s{sQ}, 1
    s_lshl_b32 s{sT}, s{sRB}, 2
    s_add_u32 s{sQ}, s{sQ}, s{sT}
    s_max_u32 s{sG0}, s{sQ}, 8
    s_sub_u32 s{sG0}, s{sG0}, 8
    v_mov_b32 v{MX}, 0xff800000
    v_mov_b32 v{MX+1}, 0xff800000''')
    for r in range(32): A(f'v_mov_b32 v{OA+r}, 0')
    A('s_waitcnt lgkmcnt(0)')
    for ps in range(2):
        A(f'''s_mov_b32 s{sG}, s{sG0}
        L_fbl{ps}:
        s_lshr_b32 s{sT}, s{sG}, 2
        s_sub_u32 s{sT}, s{sT}, s{sRB}
        s_add_u32 s{sT}, s{sT}, 2
        s_lshl_b32 s{sT}, s{sT}, 18
        s_add_u32 s{sAd}, s{sKB2}, s{sT}
        s_and_b32 s{sT}, s{sG}, 3
        s_lshl_b32 s{sT}, s{sT}, 10
        s_add_u32 s{sAd}, s{sAd}, s{sT}
        buffer_load_dwordx4 {vr(KF,4)}, v2, {srd(WS)}, s{sAd} offen sc1
        s_mov_b64 exec, s[{sHalf}:{sHalf+1}]
        buffer_load_dwordx4 {vr(VF,4)}, v3, {srd(WS)}, s{sAd} offen sc1
        buffer_load_dwordx4 {vr(VF+4,4)}, v3, {srd(WS)}, s{sAd} offen offset:512 sc1
        s_mov_b64 exec, -1
        s_waitcnt vmcnt(0)''')
        for a in range(2):
            A(f'''s_sub_u32 s{sT}, s{sQ}, s{sG}
            s_add_u32 s{sT}, s{sT}, {a}
            s_cmp_eq_u32 s{sT}, 0
            s_cselect_b32 s{sA}, 1.0, 0
            s_cmp_eq_u32 s{sT}, 8
            s_cselect_b32 s{sA}, -1.0, s{sA}
            s_cmp_ge_u32 s{sT}, 8
            s_cselect_b32 s{sBv}, {f2u(-BIG)}, 0''')
            A(f'v_mov_b32 v14, s{sBv}')
            for r in range(16): A(f'v_fma_f32 v{CB+r}, v{MK+r}, s{sA}, v14')
            if ps:
                for r in range(16): A(f'v_sub_f32 v{CB+r}, v{CB+r}, v{MX+a}')
            A(f'{MFMA} {vr(S,16)}, {vr(KF,4)}, {vr(QF+4*a,4)}, {vr(CB,16)}')
            if ps == 0:
                for j in range(8): A(f'v_max3_f32 v{MX+a}, v{S+2*j}, v{S+2*j+1}, v{MX+a}')
            else:
                for r in range(16): A(f'v_exp_f32 v{S+r}, v{S+r}')
                for j in range(8): A(f'v_cvt_pk_bf16_f32 v{S+j if j < 4 else S+4+j}, v{S+2*j}, v{S+2*j+1}')
                for h in range(2):
                    A(f'{MFMA} {vr(OA+16*a,16)}, {vr(VF+4*h,4)}, {vr(S+8*h,4)}, {vr(OA+16*a,16)}')
                A('s_nop 7')
        A(f'''s_add_u32 s{sG}, s{sG}, 1
        s_add_u32 s{sT}, s{sQ}, 1
        s_cmp_le_u32 s{sG}, s{sT}
        s_cbranch_scc1 L_fbl{ps}''')
        if ps == 0:
            for a in range(2):
                A(f'v_mov_b32 v14, v{MX+a}\ns_nop 1\nv_permlane32_swap_b32 v{MX+a}, v14\nv_max_f32 v{MX+a}, v{MX+a}, v14')
    A('s_nop 7')
    for a in range(2):
        for j in range(8): A(f'v_mov_b32 v{RG+8*a+j}, v{OA+16*a+j}')
        A(f'v_mov_b32 v{RG+16+a}, v{OA+16*a+8}')
    A('s_branch L_final')

WF = 16; OF = 144; AC3 = 208
def wait_chain(sreg, nmax, per, extra, tag):
    for n in range(nmax, 0, -1):
        A(f's_cmp_ge_u32 s{sreg}, {n}\ns_cbranch_scc1 L_wc{tag}_{n}')
    A(f's_waitcnt vmcnt({extra})')
    for n in range(1, nmax+1):
        A(f'L_wc{tag}_{n}:\ns_waitcnt vmcnt({per*n+extra})')
def wait_dyn(_):
    A(f's_bcnt1_i32_b32 s{sT2}, s{sNew}')
    wait_chain(sT2, 4, 4, 0, 'f')
def o_issue(tag, wait):
    poll_check(R_O, f'o{tag}', wait)
    A(f'''s_and_b32 s{sT2}, s{sW}, 4
    s_lshl_b32 s{sT2}, s{sT2}, 2
    s_lshr_b32 s{sT}, s{sT}, s{sT2}
    s_cmp_ge_u32 s{sSpin}, 0x40000
    s_cselect_b32 s{sT}, -1, s{sT}
    s_and_b32 s{sT}, s{sT}, 0x1111
    s_andn2_b32 s{sNew}, s{sT}, s{sIss}
    s_or_b32 s{sIss}, s{sIss}, s{sNew}''')
    if tag == 'b': A(f's_or_b32 s{sT}, s{sNew}, s{sM}\ns_cbranch_scc1 L_oi{tag}s\ns_sleep {SLP}\nL_oi{tag}s:')
    poll_issue(9, f'o{tag}')
    for g in range(4):
        A(f's_bitcmp0_b32 s{sNew}, {4*g}\ns_cbranch_scc1 L_oi{tag}{g}\ns_add_u32 s{sT}, s{sN2}, {g*16384}')
        for j in range(4):
            A(f'buffer_load_dwordx4 {vr(OF+16*g+4*j,4)}, v2, {srd(WS)}, s{sT} offen offset:{j*1024}{LDSC}')
        A(f'L_oi{tag}{g}:')
def phase3():
    A(f'''s_andn2_b32 s{sN2}, s{sWG}, 7
    s_and_b32 s{sT3}, s{sW}, 4
    s_add_u32 s{sN2}, s{sN2}, s{sT3}
    s_lshl_b32 s{sN2}, s{sN2}, 14
    s_and_b32 s{sT3}, s{sW}, 3
    s_lshl_b32 s{sT3}, s{sT3}, 12
    s_add_u32 s{sN2}, s{sN2}, s{sT3}
    s_add_u32 s{sN2}, s{sN2}, {WS_O}
    s_mov_b32 s{sIss}, 0
    s_mov_b32 s{sSpin}, 0''')
    A(f'''v_bfe_u32 v3, v0, 2, 2
    v_lshrrev_b32 v8, 5, v0
    v_lshl_add_u32 v3, v8, 2, v3
    v_lshlrev_b32 v11, 7, v3
    v_bfe_u32 v3, v0, 4, 1
    v_lshlrev_b32 v3, 1, v3
    v_bfe_u32 v10, v0, 1, 1
    v_or_b32 v3, v3, v10
    v_bfe_u32 v10, v0, 3, 1
    v_lshl_or_b32 v3, v10, 2, v3
    v_lshl_add_u32 v11, v3, 4, v11
    v_and_b32 v3, 1, v0
    v_lshl_add_u32 v11, v3, 3, v11
    s_lshr_b32 s{sT3}, s{sW}, 2
    s_lshl_b32 s{sT3}, s{sT3}, 15
    s_add_u32 s{sT3}, s{sT3}, {L_WO}
    v_add_u32 v11, s{sT3}, v11
    v_xor_b32 v7, 64, v11''')
    def wfr(lo, hi):
        for i in range(lo, hi):
            for nt in range(2):
                for j in range(2):
                    A(f'ds_read_b64_tr_b16 {vr(WF+8*i+4*nt+2*j,2)}, v{7 if nt else 11} offset:{i*2048+j*1024}')
    for r in range(32): A(f'v_mov_b32 v{AC3+r}, 0')
    A(f'''v_and_b32 v10, 31, v0
    v_lshlrev_b32 v10, 11, v10
    v_lshl_add_u32 v10, v8, 4, v10
    s_and_b32 s{sT}, s{sW}, 3
    s_lshl_b32 s{sN1}, s{sRB}, 2
    s_add_u32 s{sN1}, s{sN1}, s{sT}
    s_lshl_b32 s{sN1}, s{sN1}, 16
    s_lshl_b32 s{sT}, s{sB}, 10
    s_add_u32 s{sN1}, s{sN1}, s{sT}
    s_lshl_b32 s{sT}, s{sHG}, 7
    s_add_u32 s{sN1}, s{sN1}, s{sT}
    s_and_b32 s{sT}, s{sW}, 4
    s_lshl_b32 s{sT}, s{sT}, 4
    s_add_u32 s{sN1}, s{sN1}, s{sT}''')
    if ST2 == 1: stamp(4)
    publish(sFo, C_O, 7, 'o', R_O)
    if WARM & 2:
        A(f'''v_and_b32 v13, 7, v0
        v_lshlrev_b32 v13, 7, v13
        v_bfe_u32 v14, v0, 3, 1
        v_lshl_add_u32 v13, v14, 12, v13
        s_lshr_b32 s{sT}, s{sW}, 2
        s_lshl_b32 s{sT}, s{sT}, 13
        s_add_u32 s{sT}, s{sT}, s{sOb}
        s_mov_b64 exec, 0xffff
        buffer_load_dword v250, v13, {srd(WS)}, s{sT} offen
        s_mov_b64 exec, -1''')
    stamp(7)
    o_issue('a', lambda: None)
    stamp(8)
    if not WPG: wfr(0, 16)
    if ST2 == 2: stamp(4)
    A(f'''s_waitcnt lgkmcnt(0)
    L_p3l:
    s_mov_b32 s{sM}, s{sNew}
    s_mov_b32 s{sL}, 0
    s_mov_b32 s{sNew}, 0
    s_cmp_eq_u32 s{sIss}, 0x1111
    s_cbranch_scc1 L_p3m
    s_add_u32 s{sSpin}, s{sSpin}, 1
    s_bcnt1_i32_b32 s{sT2}, s{sM}''')
    o_issue('b', lambda: wait_chain(sT2, 3, 4, 0, 'p'))
    stamp(8)
    A(f's_bcnt1_i32_b32 s{sL}, s{sNew}\nL_p3m:')
    for g in range(4):
        A(f's_bitcmp0_b32 s{sM}, {4*g}\ns_cbranch_scc1 L_om{g}')
        A(f's_lshr_b32 s{sT}, s{sM}, {4*g+4}\ns_bcnt1_i32_b32 s{sT2}, s{sT}\ns_add_u32 s{sT2}, s{sT2}, s{sL}')
        if WPG: wfr(4*g, 4*g+4)
        wait_chain(sT2, 3, 4, 0, f'm{g}')
        for j in range(4):
            for nt in range(2):
                acc = vr(AC3+16*nt, 16); i = 4*g + j
                if WPG: A(f's_waitcnt lgkmcnt({14-4*j-2*nt})')
                A(f'{MFMA} {acc}, {vr(WF+8*i+4*nt,4)}, {vr(OF+4*i,4)}, {acc}')
        A(f'L_om{g}:')
    A(f'''s_cmp_lg_u32 s{sIss}, 0x1111
    s_cbranch_scc1 L_p3l
    s_cmp_lg_u32 s{sNew}, 0
    s_cbranch_scc1 L_p3l''')
    A(f's_lshr_b32 s{sT2}, s{sW}, 2\ns_nop 7\ns_nop 3')
    stamp(9)
    for kh in range(2):
        if kh == 0: A(f's_cmp_lg_u32 s{sT2}, 0\ns_cbranch_scc1 L_x1')
        else: A('L_x1:')
        send = AC3 + 16*(1-kh); keep = AC3 + 16*kh
        for g in range(4): A(f'ds_write_b128 v6, {vr(send+4*g,4)} offset:{g*1024}')
        A('s_waitcnt lgkmcnt(0)\ns_barrier')
        for g in range(4): A(f'ds_read_b128 {vr(16+4*g,4)}, v5 offset:{g*1024}')
        for g in range(4):
            A(f's_waitcnt lgkmcnt({3-g})')
            for r in range(4): A(f'v_add_f32 v{keep+4*g+r}, v{keep+4*g+r}, v{16+4*g+r}')
            for j in range(2): A(f'v_cvt_pk_bf16_f32 v{32+2*g+j}, v{keep+4*g+2*j}, v{keep+4*g+2*j+1}')
        if kh == 0: A('s_branch L_x2')
    A('L_x2:\ns_nop 1')
    for p in range(2):
        A(f'v_permlane32_swap_b32 v{32+4*p}, v{34+4*p}\nv_permlane32_swap_b32 v{33+4*p}, v{35+4*p}')
        A(f'buffer_store_dwordx4 {vr(32+4*p,4)}, v10, {srd(OUT)}, s{sN1} offen offset:{32*p}' + ['', ' sc1', ' nt', ' sc0 sc1', ' sc1 nt'][OST])
    if PROF:
        A('s_waitcnt vmcnt(0)')
        stamp(10)
        A(f'''s_lshl_b32 s{sT}, s2, 3
        s_add_u32 s{sT}, s{sT}, s{sW}
        s_lshl_b32 s{sT}, s{sT}, 7
        s_add_u32 s{sT}, s{sT}, {WS_ST}
        v_mov_b32 v1, 0''')
        for i in range(11):
            A(f'v_mov_b32 v2, s{sST+2*i}\nbuffer_store_dword v2, v1, {srd(WS)}, s{sT} offen offset:{4*i}')
        A(f'v_mov_b32 v2, s100\nbuffer_store_dword v2, v1, {srd(WS)}, s{sT} offen offset:60')
        A('s_mov_b32 s99, s100\ns_memrealtime s[100:101]\ns_waitcnt lgkmcnt(0)')
        A(f'v_mov_b32 v2, s100\nbuffer_store_dword v2, v1, {srd(WS)}, s{sT} offen offset:56')
    if DBGP:
        A(f'''s_mov_b64 exec, 1
        v_mov_b32 v2, s100
        buffer_atomic_umax v2, v1, {srd(DBG)}, 0 offen offset:56
        s_not_b32 s{sT}, s99
        v_mov_b32 v3, s{sT}
        buffer_atomic_umax v3, v1, {srd(DBG)}, 0 offen offset:60
        s_cmp_lg_u32 s2, {opt('dw', 77)}
        s_cbranch_scc1 L_end
        s_cmp_lg_u32 s{sW}, {opt('dv', 0)}
        s_cbranch_scc1 L_end''')
        for i in range(1, 11):
            A(f's_sub_u32 s{sT}, s{sST+2*i}, s{sST}\nv_mov_b32 v2, s{sT}\nbuffer_store_dword v2, v1, {srd(DBG)}, 0 offen offset:{12+4*i}')
        A('s_branch L_end\nL_dbg4:')
        for k, i in enumerate(()):
            A(f's_sub_u32 s{sT}, s{sST+2*i}, s{sST}\nv_mov_b32 v2, s{sT}\nbuffer_store_dword v2, v1, {srd(DBG)}, 0 offen offset:{52+4*k}')
    A('L_end:\ns_endpgm')

prologue()
compute_p1()
attention(0)
A('s_branch L_final')
loader_p1()
stamp(3)
attention(1)
finalize()
phase3()
fallback()
body, nadd = A.finish()
hdr = open('cdna_kernels/' + NAME + '.s.ref').read().split('; Override launch')[0]
out = hdr + f'''; @launch grid=(256,1,1) block=(512,1,1) lds=163840
.amdgcn_target "amdgcn-amd-amdhsa--gfx950"
.text
.globl {NAME}_kernel
.p2align 8
.type {NAME}_kernel,@function
{NAME}_kernel:
{body}.section .rodata,"a"
.p2align 6
.amdhsa_kernel {NAME}_kernel
  .amdhsa_next_free_vgpr 256
  .amdhsa_next_free_sgpr 102
  .amdhsa_accum_offset 256
  .amdhsa_group_segment_fixed_size 0
  .amdhsa_kernarg_size 72
  .amdhsa_user_sgpr_count 2
  .amdhsa_user_sgpr_kernarg_segment_ptr 1
  .amdhsa_system_sgpr_workgroup_id_x 1
.end_amdhsa_kernel
'''
dst = [a for a in sys.argv[1:] if not a.startswith('--')]
open(dst[0] if dst else 'cdna_kernels/' + NAME + '.s', 'w').write(out)
print('nops inserted', nadd, 'lines', body.count('\n'))
```

```python
import sys, struct, re
from asmlib import Asm
NAME = 'concat_heads__sliding_block__sliding_block__prompt'
DBGP = '--dbg' in sys.argv
PROF = '--prof' in sys.argv or DBGP
def opt(name, d):
    for a in sys.argv:
        if a.startswith('--'+name+'='): return int(a.split('=')[1])
    return d
DEP = opt('dep', 2); ROT = opt('rot', 0); PF = opt('pf', 1); LDSC = ' sc1' if opt('ldsc', 1) else ''
FORCE_FB = '--force-fb' in sys.argv
def f2u(x): return struct.unpack('<I', struct.pack('<f', x))[0]
A = Asm()
SLOT = 40960
WS_O = 8 << 20; WS_FL = 12 << 20; WS_ST = 13 << 20; WS_SZ = 14 << 20
RING0 = 40960; L_M = 0; L_CNT = 4096; L_WO = 4608; L_B = 70144; L_X = 122880
CSC = 0.25 * 1.4426950408889634
BIG = 1e30
sW = 3; X, Wq, WO, WS, OUT, DBG = 4, 8, 12, 16, 20, 24
sB, sRB, sHG, sWG = 28, 29, 30, 31
sXo, sWo, sSl, sIt, sT, sT2, sN1, sN2 = 50, 51, 52, 53, 54, 55, 56, 57
sHalf = 60; sC = 62; sSpin = 63; sFl = 64; sOb = 65; sT3 = 66; sLo = 67; sHi = 68
sST = 72
nst = [0]
def srd(i): return f's[{i}:{i+3}]'
def vr(a, n): return f'v[{a}:{a+n-1}]'
def stamp(idx):
    if PROF:
        A(f's_memtime s[{sST+2*idx}:{sST+2*idx+1}]\ns_waitcnt lgkmcnt(0)')
QF = 16; OA = 32; SB = 96; MK = 128; KF = 144; VF = 168; PK = 240
sEarly, sKB1, sKB2, sIss, sNew, sFB = 32, 33, 34, 35, 36, 37
sE1, sE2, sE3 = 39, 40, 41
sFo, sWm, sWg = 38, 48, 49
sM, sL = 42, 43
sPoll, sNeed = 50, 51
C_KV, C_O, R_KV, R_O = L_CNT+32, L_CNT+36, L_CNT+48, L_CNT+52
SLP = opt('slp', 2)
XCH = 4608
TLB = opt('tlb', 0); CW = opt('cw', 1); ORD = opt('ord', 1)
WPG = opt('wpg', 1); PSW = opt('psw', 6); MAP = opt('map', 0)
WARM = opt('warm', 0)
WOE = opt('woe', 0); WOS = opt('wos', 4); CU = opt('cu', 2)
ST2 = opt('st2', 0)
OST = opt('ost', 0)
ACC = 16; FR = 112
MFMA = 'v_mfma_f32_32x32x16_bf16'

def prologue():
    A(f'''s_cmp_ge_u32 s2, 256
    s_cbranch_scc1 L_end
    s_load_dwordx8 s[32:39], s[0:1], 0
    s_load_dwordx8 s[40:47], s[0:1], 32
    s_load_dwordx2 s[48:49], s[0:1], 64''')
    if PROF: A(f's_memrealtime s[100:101]')
    A(f'''v_lshrrev_b32 v1, 6, v0
    v_and_b32 v0, 63, v0
    s_and_b32 s{sT}, s2, 7
    v_readfirstlane_b32 s{sW}, v1
    s_lshr_b32 s{sT2}, s2, 3
    s_lshr_b32 s{sB}, s{sT}, 2
    s_and_b32 s{sT}, s{sT}, 3
    s_lshl_b32 s{sT}, s{sT}, 2
    s_lshr_b32 s{sRB}, s{sT2}, 3
    s_add_u32 s{sRB}, s{sRB}, s{sT}
    s_and_b32 s{sHG}, s{sT2}, 7''')
    if MAP: A(f'''s_bfe_u32 s{sRB}, s2, 0x10001
    s_lshl_b32 s{sRB}, s{sRB}, 3
    s_lshr_b32 s{sT}, s{sT2}, 2
    s_add_u32 s{sRB}, s{sRB}, s{sT}
    s_and_b32 s{sHG}, s2, 1
    s_lshl_b32 s{sHG}, s{sHG}, 2
    s_and_b32 s{sT}, s{sT2}, 3
    s_add_u32 s{sHG}, s{sHG}, s{sT}''')
    A(f'''    s_lshl_b32 s{sWG}, s{sB}, 4
    s_add_u32 s{sWG}, s{sWG}, s{sRB}
    s_lshl_b32 s{sWG}, s{sWG}, 3
    s_add_u32 s{sWG}, s{sWG}, s{sHG}
    s_mov_b32 s{X+2}, 0x200000
    s_mov_b32 s{X+3}, 0x20000
    s_mov_b32 s{Wq+2}, 0x180000
    s_mov_b32 s{Wq+3}, 0x20000
    s_mov_b32 s{WO+2}, 0x80000
    s_mov_b32 s{WO+3}, 0x20000
    s_mov_b32 s{WS+2}, {WS_SZ}
    s_mov_b32 s{WS+3}, 0x20000
    s_mov_b32 s{OUT+2}, 0x400000
    s_mov_b32 s{OUT+3}, 0x20000
    s_mov_b32 s{DBG+2}, 256
    s_mov_b32 s{DBG+3}, 0x20000
    s_mov_b32 s{sHalf}, 0xffff
    s_mov_b32 s{sHalf+1}, 0xffff
    s_cmp_eq_u32 s{sB}, 0
    s_waitcnt lgkmcnt(0)
    s_cselect_b32 s{X}, s32, s38
    s_cselect_b32 s{X+1}, s33, s39
    s_cselect_b32 s{Wq}, s34, s40
    s_cselect_b32 s{Wq+1}, s35, s41
    s_cselect_b32 s{WO}, s36, s42
    s_cselect_b32 s{WO+1}, s37, s43
    s_mov_b32 s{OUT}, s44
    s_mov_b32 s{OUT+1}, s45
    s_mov_b32 s{DBG}, s46
    s_mov_b32 s{DBG+1}, s47
    s_mov_b32 s{WS}, s48
    s_mov_b32 s{WS+1}, s49''')
    stamp(0)
    A(f'''s_cmp_ge_u32 s{sW}, 4
    s_cbranch_scc{0 if ORD else 1} {'L_comp' if ORD else 'L_loader'}''')

def preset_ones():
    A(f'v_mov_b32 v1, 0x3f803f80')
    for i in range(48): A(f'v_mov_b32 v{VF+i}, v1')

def common_consts():
    A(f'''s_lshl_b32 s{sFl}, s{sWG}, 7
    s_add_u32 s{sFl}, s{sFl}, {WS_FL}
    s_add_u32 s{sFo}, s{sFl}, 64
    s_mov_b32 s{sC}, {f2u(CSC)}
    s_mov_b32 s{sLo}, {f2u(2.0**-40)}
    s_mov_b32 s{sHi}, {f2u(2.0**40)}''')

def lds_min4(dst_s, vt, addr_v, off, wait=True):
    A(f'ds_read_b128 {vr(vt,4)}, v{addr_v} offset:{off}')
    A('s_waitcnt lgkmcnt(0)')
    min4(dst_s, vt)
def min4(dst_s, vt):
    A(f'v_min3_u32 v{vt}, v{vt}, v{vt+1}, v{vt+2}\nv_min_u32 v{vt}, v{vt}, v{vt+3}\nv_readfirstlane_b32 s{dst_s}, v{vt}')

def loader_p1():
    A('L_loader:')
    A(f"""v_lshrrev_b32 v6, 3, v0
    v_and_b32 v7, 7, v0
    v_lshrrev_b32 v8, 4, v0
    v_xor_b32 v9, v7, v8
    v_lshlrev_b32 v9, 4, v9
    v_lshl_add_u32 v2, v6, 10, v9
    v_xor_b32 v3, 64, v2
    v_and_b32 v8, 1, v8
    v_lshlrev_b32 v8, 2, v8
    v_xor_b32 v9, v7, v8
    v_lshlrev_b32 v9, 4, v9
    v_mul_u32_u24 v4, 3072, v6
    v_add_u32 v4, v4, v9
    v_lshl_add_u32 v5, v6, 10, v9
    s_sub_u32 s{sT}, s{sW}, 4
    s_lshl_b32 s{sXo}, s{sRB}, 17
    s_lshl_b32 s{sT2}, s{sT}, 15
    s_add_u32 s{sXo}, s{sXo}, s{sT2}
    s_mul_i32 s{sWo}, s{sT}, {16*3072}
    s_lshl_b32 s{sT2}, s{sHG}, 7
    s_add_u32 s{sWo}, s{sWo}, s{sT2}
    s_lshl_b32 s{sN1}, s{sT}, 12
    s_add_u32 s{sN1}, s{sN1}, {RING0+SLOT}
    s_lshl_b32 s{sN2}, s{sT}, 11
    s_add_u32 s{sN2}, s{sN2}, {16384+RING0+SLOT}
    s_lshl_b32 s{sT}, s{sT}, 2
    v_mov_b32 v10, 0
    v_mov_b32 v11, s{sT}
    s_mov_b32 s{sIt}, 0
    s_mov_b32 s69, 1
    L_ld_loop:""")
    for j in range(4):
        A(f"""s_add_u32 m0, s{sN1}, {j*1024}
        s_add_u32 s{sT}, s{sXo}, {j*8192}
        buffer_load_dwordx4 v{2+(j&1)}, {srd(X)}, s{sT} offen lds""")
    for seg in range(3):
        for q in range(2):
            A(f"""s_add_u32 m0, s{sN2}, {seg*8192+q*1024}
            s_add_u32 s{sT}, s{sWo}, {seg*1024+q*8*3072}
            buffer_load_dwordx4 v4, {srd(Wq)}, s{sT} offen lds""")
    A(f"""s_add_u32 s{sXo}, s{sXo}, 128
    s_add_u32 s{sWo}, s{sWo}, {64*3072}
    s_add_u32 s69, s69, 1
    s_mov_b32 s{sT}, {SLOT}
    s_cmp_eq_u32 s69, 3
    s_cselect_b32 s{sT}, {-2*SLOT & 0xffffffff}, s{sT}
    s_cselect_b32 s69, 0, s69
    s_add_u32 s{sN1}, s{sN1}, s{sT}
    s_add_u32 s{sN2}, s{sN2}, s{sT}
    s_cmp_lg_u32 s{sIt}, 0
    s_cbranch_scc1 L_ld_sig
    s_barrier
    s_mov_b32 s{sIt}, 1
    s_branch L_ld_loop
    L_ld_sig:
    v_mov_b32 v12, s{sIt}
    s_add_u32 s{sIt}, s{sIt}, 1
    s_waitcnt vmcnt(10)
    ds_write_b32 v11, v12 offset:{L_CNT}
    s_cmp_lt_u32 s{sIt}, 3
    s_cbranch_scc1 L_ld_loop
    s_cmp_eq_u32 s{sIt}, 8
    s_cbranch_scc1 L_ld_done
    s_sub_u32 s{sT3}, s{sIt}, 2""")
    lds_min4(sT2, 16, 10, L_CNT+16)
    A(f"""s_cmp_ge_u32 s{sT2}, s{sT3}
    s_cbranch_scc1 L_ld_loop
    v_mov_b32 v12, s{sIt}
    s_waitcnt vmcnt(0)
    ds_write_b32 v11, v12 offset:{L_CNT}
    L_ld_spin:""")
    lds_min4(sT2, 16, 10, L_CNT+16)
    A(f"""s_cmp_ge_u32 s{sT2}, s{sT3}
    s_cbranch_scc1 L_ld_loop
    s_branch L_ld_spin
    L_ld_done:
    v_and_b32 v13, 3, v0
    v_lshlrev_b32 v13, 2, v13
    buffer_load_dword v7, v13, {srd(DBG)}, 0 offen sc1
    v_mov_b32 v12, 8
    s_waitcnt vmcnt(1)
    ds_write_b32 v11, v12 offset:{L_CNT}""")
    stamp(1)
    A(f"""v_and_b32 v6, 31, v0
    v_lshrrev_b32 v9, 5, v0
    v_lshlrev_b32 v9, 2, v9
    v_sub_u32 v6, v6, v9
    v_cvt_f32_i32 v6, v6
    s_mov_b32 s{sT}, {f2u(-BIG)}
    v_lshlrev_b32 v8, 4, v0""")
    for r in range(16):
        c = 8*(r//4) + r % 4
        A(f'v_sub_f32 v{MK+r}, {f2u(float(c))}, v6')
        A(f'v_med3_f32 v{MK+r}, v{MK+r}, 0, 1.0')
        A(f'v_mul_f32 v{MK+r}, s{sT}, v{MK+r}')
    for g in range(4):
        A(f'ds_write_b128 v8, {vr(MK+4*g,4)} offset:{L_M+g*1024}')
    preset_ones()
    common_consts()
    A(f"""s_mov_b32 s{sSpin}, 0
    s_mov_b32 s{sT}, 1
    s_waitcnt vmcnt(0)
    L_gate:
    v_cmp_ne_u32 vcc, s{sT}, v7
    s_cbranch_vccz L_gate_ok
    s_sleep 4
    buffer_load_dword v7, v13, {srd(DBG)}, 0 offen sc1
    s_add_u32 s{sSpin}, s{sSpin}, 1
    s_cmp_lt_u32 s{sSpin}, 0x10000
    s_waitcnt vmcnt(0)
    s_cbranch_scc1 L_gate
    L_gate_ok:""")
    nb_setup()
    for r in range(16): A(f'v_mov_b32 v{OA+r}, 0')
    if WOE:
        A('L_wo_spin:')
        lds_min4(sT2, 16, 12, L_CNT+16)
        A(f's_cmp_lt_u32 s{sT2}, 6\ns_cbranch_scc1 L_wo_spin')
        for j in range(16): wo_dma(j)
        stamp(2)
    else:
        poll_issue(4, 'y0')
        stamp(2)
        try_load(1, 'a')
    A("""    s_waitcnt lgkmcnt(0)
    s_barrier""")

def frag_reads(buf, ks):
    F = FR + 20*buf
    xs = [f'ds_read_b128 {vr(F+4*mt,4)}, v{2+ks} offset:{mt*4096}' for mt in range(2)]
    def wrd(seg): return [f'ds_read_b64_tr_b16 {vr(F+8+4*seg+2*j,2)}, v6 offset:{16384+seg*8192+ks*2048+j*512}' for j in range(2)]
    return [xs[0]] + wrd(0) + [xs[1]] + wrd(1) + wrd(2)
def mfmas(buf):
    F = FR + 20*buf
    L = []
    for seg in range(3):
        for mt in range(2):
            acc = vr(ACC + (seg*2+mt)*16, 16)
            x = vr(F+4*mt, 4); w = vr(F+8+4*seg, 4)
            a, b = (w, x) if seg < 2 else (x, w)
            L.append(f'{MFMA} {acc}, {a}, {b}, {acc}')
    return L

def compute_p1():
    A('L_comp:')
    if CW:
        A(f'''s_cmp_ge_u32 s2, 16
        s_cbranch_scc1 L_nocw
        s_getpc_b64 s[58:59]
        L_pc:
        s_lshl_b32 s{sT}, s{sW}, 13
        s_sub_u32 s{sT}, s{sT}, L_pc-{NAME}_kernel
        s_ashr_i32 s{sT2}, s{sT}, 31
        s_add_u32 s58, s58, s{sT}
        s_addc_u32 s59, s59, s{sT2}
        v_lshlrev_b32 v14, 7, v0
        v_mov_b32 v15, s59
        v_add_co_u32 v14, vcc, s58, v14
        v_addc_co_u32 v15, vcc, 0, v15, vcc
        global_load_dword v250, v[14:15], off
        L_nocw:''')
    A(f'''v_mov_b32 v12, 0
    v_lshlrev_b32 v13, 2, v0
    ds_write_b32 v13, v12 offset:{L_CNT}
    s_waitcnt lgkmcnt(0)
    s_barrier''')
    A(f'''s_cmp_lg_u32 s2, 0
    s_cbranch_scc1 L_noinit
    v_lshlrev_b32 v1, 4, v0
    v_mov_b32 v4, 0
    v_mov_b32 v5, 0
    v_mov_b32 v6, 0
    v_mov_b32 v7, 0
    s_lshl_b32 s{sT}, s{sW}, 13
    s_add_u32 s{sT}, s{sT}, {WS_FL}
    s_add_u32 s{sT2}, s{sT}, 8192
    L_init:
    buffer_store_dwordx4 v[4:7], v1, {srd(WS)}, s{sT} offen sc1
    s_add_u32 s{sT}, s{sT}, 1024
    s_cmp_lt_u32 s{sT}, s{sT2}
    s_cbranch_scc1 L_init
    L_noinit:''')
    A(f'''v_and_b32 v7, 31, v0
    v_lshrrev_b32 v8, 5, v0
    v_lshrrev_b32 v9, 1, v7
    v_and_b32 v9, 7, v9
    v_xor_b32 v9, v9, v8
    v_lshlrev_b32 v9, 4, v9
    v_lshl_add_u32 v2, v7, 7, v9
    s_lshr_b32 s{sT}, s{sW}, 1
    s_lshl_b32 s{sT}, s{sT}, 13
    s_add_u32 s{sT}, s{sT}, {RING0+SLOT}
    v_add_u32 v2, s{sT}, v2
    v_xor_b32 v3, 32, v2
    v_xor_b32 v4, 64, v2
    v_xor_b32 v5, 96, v2
    v_bfe_u32 v9, v0, 2, 2
    v_lshl_add_u32 v9, v8, 3, v9
    v_lshlrev_b32 v6, 7, v9
    v_bfe_u32 v9, v0, 4, 1
    v_lshlrev_b32 v9, 1, v9
    v_bfe_u32 v10, v0, 1, 1
    v_or_b32 v9, v9, v10
    v_bfe_u32 v10, v0, 3, 1
    s_and_b32 s{sT}, s{sW}, 1
    v_xor_b32 v10, s{sT}, v10
    v_lshl_or_b32 v9, v10, 2, v9
    v_lshl_add_u32 v6, v9, 4, v6
    v_and_b32 v9, 1, v0
    v_lshl_add_u32 v6, v9, 3, v6
    v_add_u32 v6, {RING0+SLOT}, v6
    s_lshl_b32 s{sT}, s{sW}, 2
    v_mov_b32 v13, s{sT}''')
    epi_addr()
    for i in range(96): A(f'v_mov_b32 v{ACC+i}, 0')
    preset_ones()
    common_consts()
    nb_setup(True)
    if TLB:
        A(f'''s_lshl_b32 s{sT}, s{sRB}, 18
        s_mov_b64 exec, 1
        buffer_load_dword v250, v12, {srd(WS)}, s{sE1} offen sc1
        buffer_load_dword v250, v12, {srd(WS)}, s{sOb} offen sc1
        buffer_load_dword v250, v12, {srd(WS)}, s{sFl} offen offset:32 sc1
        buffer_load_dword v250, v12, {srd(OUT)}, s{sT} offen sc1
        buffer_load_dword v250, v12, {srd(WO)}, s{sWg} offen
        s_cmp_lt_u32 s{sRB}, 2
        s_cselect_b32 s{sT}, s{sE1}, s{sKB2}
        buffer_load_dword v250, v12, {srd(WS)}, s{sT} offen sc1
        s_mov_b64 exec, -1''')
    A(f's_mov_b32 s{sIt}, 0\ns_mov_b32 s69, 1\nL_c_spin0:')
    lds_min4(sT2, 8, 12, L_CNT)
    A(f's_cmp_lt_u32 s{sT2}, 1\ns_cbranch_scc1 L_c_spin0')
    A(f'''s_cmp_lg_u32 s2, 0
    s_cbranch_scc1 L_noann
    v_mov_b32 v14, 1
    s_mov_b64 exec, 1
    s_waitcnt vmcnt(0)
    buffer_store_dword v14, v13, {srd(DBG)}, 0 offen sc1
    s_mov_b64 exec, -1
    L_noann:''')
    stamp(1)
    Q = []
    def ds(txt, tag): A(txt); Q.append(tag)
    def wait(tag):
        n = len(Q) - 1 - max(i for i, t in enumerate(Q) if t == tag)
        A(f's_waitcnt lgkmcnt({n})')
        del Q[:len(Q)-n]
    TAGS = ['x0', 'wq', 'wq', 'x1', 'wk', 'wk', 'wv', 'wv']
    for r, t in zip(frag_reads(0, 0), TAGS): ds(r, (0, t))
    A('L_p1_loop:')
    for ks in range(4):
        cur = ks & 1
        M = mfmas(cur)
        nk = (ks+1) & 3
        R = [(r, (nk, t)) for r, t in zip(frag_reads(cur ^ 1, nk), TAGS)]
        if ks < 3:
            wait((ks, 'wq')); A(M[0]); ds(*R[0]); ds(*R[1])
            wait((ks, 'x1')); A(M[1]); ds(*R[2]); ds(*R[3])
            wait((ks, 'wk')); A(M[2]); ds(*R[4]); ds(*R[5])
            A(M[3]); ds(*R[6]); ds(*R[7])
            wait((ks, 'wv')); A(M[4])
            if ks == 2: ds(f'ds_read_b128 v[8:11], v12 offset:{L_CNT}', 'cnt')
            A(M[5])
        else:
            wait((ks, 'wq')); A(M[0])
            A(f"""s_add_u32 s{sIt}, s{sIt}, 1
            s_add_u32 s69, s69, 1
            s_mov_b32 s{sT}, {SLOT}
            s_cmp_eq_u32 s69, 3
            s_cselect_b32 s{sT}, {-2*SLOT & 0xffffffff}, s{sT}
            s_cselect_b32 s69, 0, s69
            v_mov_b32 v14, s{sIt}""")
            wait((ks, 'x1')); A(M[1])
            for i in range(2, 7): A(f'v_add_u32 v{i}, s{sT}, v{i}')
            wait('cnt')
            A(f'ds_write_b32 v13, v14 offset:{L_CNT+16}')
            min4(sT2, 8)
            A(M[2])
            A(f"""s_min_u32 s{sT3}, s{sIt}, 7
            s_cmp_gt_u32 s{sT2}, s{sT3}
            s_cbranch_scc1 L_c_ok
            L_c_spin:""")
            lds_min4(sT2, 8, 12, L_CNT)
            A(f"""s_cmp_le_u32 s{sT2}, s{sT3}
            s_cbranch_scc1 L_c_spin
            L_c_ok:""")
            Q[:] = []
            ds(*R[0]); ds(*R[1])
            A(M[3]); ds(*R[2]); ds(*R[3]); ds(*R[4])
            A(M[4]); ds(*R[5]); ds(*R[6]); ds(*R[7])
            A(f's_cmp_lt_u32 s{sIt}, 8')
            A(M[5])
            A('s_cbranch_scc1 L_p1_loop')
    stamp(2)
    A('L_c_spin2:')
    lds_min4(sT2, 8, 12, L_CNT+16)
    A(f's_cmp_lt_u32 s{sT2}, 7\ns_cbranch_scc1 L_c_spin2')
    tmp = FR
    def cvt8(acc, dst):
        for i in range(8): A(f'v_cvt_pk_bf16_f32 v{dst+i}, v{acc+2*i}, v{acc+2*i+1}')
    n = 0
    for mt in range(2):
        acc = ACC + (1*2+mt)*16; d = tmp + 8*(n % 5); n += 1
        cvt8(acc, d)
        for e in range(2):
            A(f'buffer_store_dwordx4 {vr(d+4*e,4)}, v152, {srd(WS)}, s{sE2 if e else sE1} offen offset:{mt*1024} sc1')
            A(f'ds_write_b128 v155, {vr(d+4*e,4)} offset:{e*4096+mt*1024}')
    for mt in range(2):
        acc = ACC + (2*2+mt)*16; d = tmp + 8*(n % 5); n += 1
        cvt8(acc, d)
        for a in range(2):
            A(f'buffer_store_dwordx4 {vr(d+4*a,4)}, v154, {srd(WS)}, s{sE3} offen offset:{mt*1024+a*512} sc1')
            A(f'ds_write_b128 v153, {vr(d+4*a,4)} offset:{16384+mt*1024+a*512}')
    for mt in range(2):
        acc = ACC + mt*16
        for i in range(8): A(f'v_pk_mul_f32 {vr(acc+2*i,2)}, {vr(acc+2*i,2)}, s[{sC}:{sC+1}] op_sel_hi:[1,0]')
        cvt8(acc, acc)
        for e in range(2):
            A(f'ds_write_b128 v155, {vr(acc+4*e,4)} offset:{32768+e*4096+mt*1024}')
    for i in range(1, 13): A(f'v_mov_b32 v{i}, v{216+i}')
    A('s_waitcnt lgkmcnt(0)\ns_barrier')
    stamp(3)

def epi_addr():
    A(f'''v_lshlrev_b32 v152, 4, v0
    v_bfe_u32 v10, v0, 4, 1
    v_and_b32 v11, 15, v0
    v_lshrrev_b32 v7, 5, v0
    v_lshl_or_b32 v11, v7, 4, v11
    v_lshlrev_b32 v11, 4, v11
    v_lshl_add_u32 v153, v10, 12, v11
    v_lshl_add_u32 v154, v10, 13, v11
    s_and_b32 s{sT}, s{sW}, 1
    s_lshr_b32 s{sT2}, s{sW}, 1
    s_lshl_b32 s{sN1}, s{sT}, 13
    s_lshl_b32 s{sT3}, s{sT2}, 11
    s_add_u32 s{sN1}, s{sN1}, s{sT3}
    s_add_u32 s{sN1}, s{sN1}, {L_B}
    v_add_u32 v155, s{sN1}, v152
    v_add_u32 v153, s{sN1}, v153
    s_lshl_b32 s{sE1}, s{sWG}, 15
    s_lshl_b32 s{sT}, s{sT}, 14
    s_add_u32 s{sE1}, s{sE1}, s{sT}
    s_add_u32 s{sE1}, s{sE1}, s{sT3}
    s_add_u32 s{sE2}, s{sE1}, 8192
    s_add_u32 s{sE3}, s{sE1}, 4096''')

UNITS = {0: dict(tiles=[0, 3, -1, -2, -5, -8], keep=(0, 1),
                 own=[(0,0,1),(1,0,0),(2,0,0),(3,0,0),(3,3,1)],
                 C=[(0,-5,0),(1,-5,0),(2,-5,0),(3,-5,1),(0,-8,1)]),
         1: dict(tiles=[1, 2, -3, -4, -6, -7], keep=(2, 3),
                 own=[(1,1,1),(2,1,0),(3,1,0),(2,2,1),(3,2,0)],
                 C=[(0,-6,0),(1,-6,0),(2,-6,1),(0,-7,0),(1,-7,1)])}
for U in UNITS.values(): U['B'] = [(q, t, 0) for t in U['tiles'][2:4] for q in range(4)]
CT = [None]
def kf(t): return KF + 4*CT[0].index(t)
def vf(t, a): return VF + 8*CT[0].index(t) + 4*a
def qk(u, sb):
    q, t, m = u
    return f'{MFMA} {vr(sb,16)}, {vr(kf(t),4)}, {vr(QF+4*q,4)}, {vr(MK,16) if m else "0"}'
def pv(u, sb, a, first):
    q, t, m = u
    o = vr(OA+16*q, 16)
    return f'{MFMA} {o}, {vr(vf(t,a),4)}, {vr(sb+8*a,4)}, {"0" if first else o}'
def segment(units, started, pre_qk=None, pre_pv=None, mid=None):
    n = len(units)
    def QK(i):
        if pre_qk: pre_qk(units[i])
        A(qk(units[i], SB+16*(i & 1)))
    def PV(i, a):
        u = units[i]
        if pre_pv: pre_pv(u)
        first = (u[0] not in started)
        started.add(u[0])
        A(pv(u, SB+16*(i & 1), a, first))
    QK(0)
    if n > 1: QK(1)
    for i in range(n):
        S = SB + 16*(i & 1)
        e = lambda r: A(f'v_exp_f32 v{S+r}, v{S+r}')
        def c(j):
            d = S + j if j < 4 else S + 4 + j
            A(f'v_cvt_pk_bf16_f32 v{d}, v{S+2*j}, v{S+2*j+1}')
        if mid and i in mid: mid[i]()
        e(0); e(1)
        if i > 0:
            PV(i-1, 1)
            if i+1 < n: QK(i+1)
        for j in range(7):
            e(2*j+2); c(j); e(2*j+3)
            if j == 4: PV(i, 0)
        A('s_nop 0'); c(7)
    PV(n-1, 1)

def nb_setup(hoist=False):
    n0 = len(A.L)
    A(f'''s_and_b32 s{sT}, s{sW}, 3
    s_lshl_b32 s{sT2}, s{sT}, 12
    s_add_u32 s{sT2}, s{sT2}, {L_B}
    v_lshlrev_b32 v2, 4, v0
    v_add_u32 v7, s{sT2}, v2
    v_and_b32 v11, 15, v0
    v_lshrrev_b32 v12, 5, v0
    v_lshl_or_b32 v11, v12, 4, v11
    v_lshlrev_b32 v3, 4, v11
    v_add_u32 v8, s{sT2}, v3
    v_add_u32 v3, 4096, v3
    s_lshl_b32 s{sKB1}, s{sWG}, 2
    s_add_u32 s{sKB1}, s{sKB1}, s{sT}
    s_lshl_b32 s{sKB1}, s{sKB1}, 13
    s_sub_u32 s{sKB2}, s{sKB1}, {2*32*8192}
    s_sub_u32 s{sKB1}, s{sKB1}, {32*8192}
    s_lshl_b32 s{sOb}, s{sWG}, 14
    s_lshl_b32 s{sT2}, s{sT}, 10
    s_add_u32 s{sOb}, s{sOb}, s{sT2}
    s_add_u32 s{sOb}, s{sOb}, {WS_O}
    s_and_b32 s{sT}, s{sW}, 1
    s_lshl_b32 s{sT2}, s{sT}, 10
    s_sub_u32 s{sT2}, s{sFl}, s{sT2}
    s_sub_u32 s{sT2}, s{sT2}, 1024
    v_mov_b32 v4, s{sT2}
    s_min_u32 s{sT2}, s{sRB}, 2
    s_lshr_b32 s{sNeed}, s{sW}, 1
    s_and_b32 s{sNeed}, s{sNeed}, 2
    s_xor_b32 s{sNeed}, s{sNeed}, s{sW}
    s_and_b32 s{sNeed}, s{sNeed}, 3
    s_cmp_lt_u32 s{sNeed}, s{sT2}
    s_cselect_b32 s{sPoll}, 1, 0
    s_lshl_b32 s{sPoll}, s{sPoll}, s{sT}
    s_mov_b32 s{sNeed}, 1
    v_lshrrev_b32 v1, 3, v0
    v_and_b32 v5, 7, v0
    v_bfe_u32 v6, v0, 4, 1
    v_lshlrev_b32 v6, 2, v6
    v_xor_b32 v5, v5, v6
    v_lshlrev_b32 v5, 4, v5
    v_lshl_add_u32 v1, v1, 10, v5
    s_and_b32 s{sT}, s{sW}, {3 if WOE else 7}
    s_lshl_b32 s{sWm}, s{sT}, {14 if WOE else 13}
    s_add_u32 s{sWm}, s{sWm}, {L_WO}
    s_lshl_b32 s{sWg}, s{sT}, {17 if WOE else 16}
    s_lshl_b32 s{sT}, s{sHG}, 7
    s_add_u32 s{sWg}, s{sWg}, s{sT}
    s_cmp_eq_u32 s{sRB}, 0
    s_cselect_b32 s{sEarly}, 1, 0
    s_mov_b32 s{sFB}, 0
    s_mul_i32 s{sT}, s{sW}, {XCH}
    s_add_u32 s{sT}, s{sT}, {L_X}
    v_add_u32 v5, s{sT}, v2
    v_lshl_add_u32 v10, v0, 2, s{sT}
    s_xor_b32 s{sT}, s{sW}, 4
    s_mul_i32 s{sT}, s{sT}, {XCH}
    s_add_u32 s{sT}, s{sT}, {L_X}
    v_add_u32 v6, s{sT}, v2
    v_lshl_add_u32 v11, v0, 2, s{sT}''')
    A(f'''s_andn2_b32 s{sN1}, s{sWG}, 7
    s_add_u32 s{sN1}, s{sN1}, s{sW}
    s_lshl_b32 s{sN1}, s{sN1}, 7
    s_add_u32 s{sN1}, s{sN1}, {WS_FL+64}
    v_mov_b32 v9, s{sN1}
    v_mov_b32 v12, 0''')
    if hoist: A.L[n0:] = [re.sub(r'\bv(1[0-2]|[1-9])\b', lambda m: f'v{216+int(m.group(1))}', l) for l in A.L[n0:]]

def wo_dma(j):
    A(f'''s_add_u32 m0, s{sWm}, {j*1024}
    s_add_u32 s{sT}, s{sWg}, {j*8192}
    buffer_load_dwordx4 v1, {srd(WO)}, s{sT} offen lds''')
def poll_issue(va, tag):
    A(f'''s_cmp_eq_u32 s{sPoll}, 0
    s_cbranch_scc1 L_pi{tag}
    s_mov_b64 exec, 1
    buffer_load_dword v15, v{va}, {srd(WS)}, 0 offen sc1
    s_mov_b64 exec, -1
    L_pi{tag}:''')
def poll_check(rdy, tag, wait):
    A(f's_cmp_eq_u32 s{sPoll}, 0\ns_cbranch_scc1 L_pc{tag}')
    wait()
    A(f'''v_readfirstlane_b32 s{sT}, v15
    v_mov_b32 v14, s{sPoll}
    s_cmp_lg_u32 s{sT}, 1
    s_cbranch_scc1 L_pc{tag}
    s_mov_b64 exec, 1
    ds_or_b32 v12, v14 offset:{rdy}
    s_mov_b64 exec, -1
    s_mov_b32 s{sPoll}, 0
    L_pc{tag}:
    ds_read_b32 v14, v12 offset:{rdy}
    s_waitcnt lgkmcnt(0)
    v_readfirstlane_b32 s{sT}, v14''')
def nb_loads(ty, tag, far=False):
    CT[0] = UNITS[ty]['tiles']
    def ld(t):
        base = sKB1 if t >= -4 else sKB2
        T = t % 4
        A(f'buffer_load_dwordx4 {vr(kf(t),4)}, v2, {srd(WS)}, s{base} offen offset:{T*1024}{LDSC}')
        A(f's_mov_b64 exec, s[{sHalf}:{sHalf+1}]')
        for a in range(2):
            A(f'buffer_load_dwordx4 {vr(vf(t,a),4)}, v3, {srd(WS)}, s{base} offen offset:{T*1024+a*512}{LDSC}')
        A('s_mov_b64 exec, -1')
    for t in (CT[0][4:6] if far else CT[0][2:4]): ld(t)
    A(f's_mov_b32 s{sEarly}, 1\ns_andn2_b32 s{sPoll}, s{sPoll}, s{sNeed}')
def kv_block(ty, tag):
    A(f's_mov_b32 s{sSpin}, 0\nL_pkv{ty}{tag}:')
    kv_check(ty, f'b{tag}')
    A(f'''s_cmp_eq_u32 s{sT}, s{sNeed}
    s_cbranch_scc1 L_pkv{ty}{tag}_ok
    s_add_u32 s{sSpin}, s{sSpin}, 1
    s_sleep {SLP}
    s_cmp_lt_u32 s{sSpin}, 0x40000
    s_cbranch_scc1 L_pkv{ty}{tag}
    L_pkv{ty}{tag}_ok:''')
def kv_check(ty, tag):
    poll_check(R_KV, f'k{ty}{tag}', lambda: A('s_waitcnt vmcnt(0)'))
    A(f's_andn2_b32 s{sPoll}, s{sPoll}, s{sT}')
    poll_issue(4, f'k{ty}{tag}')
    A(f's_and_b32 s{sT}, s{sT}, s{sNeed}')
def poll_step(ty, tag):
    A(f's_cmp_eq_u32 s{sPoll}, 0\ns_cbranch_scc1 L_ps{ty}{tag}')
    kv_check(ty, tag)
    A(f'L_ps{ty}{tag}:')
def try_load(ty, tag, nopoll=False):
    A(f's_cmp_lg_u32 s{sEarly}, 0\ns_cbranch_scc1 L_tl{ty}{tag}')
    if nopoll: A(f'ds_read_b32 v14, v12 offset:{R_KV}\ns_waitcnt lgkmcnt(0)\nv_readfirstlane_b32 s{sT}, v14\ns_and_b32 s{sT}, s{sT}, s{sNeed}')
    else: kv_check(ty, tag)
    A(f's_cmp_lg_u32 s{sT}, s{sNeed}\ns_cbranch_scc1 L_tl{ty}{tag}')
    nb_loads(ty, tag)
    A(f'L_tl{ty}{tag}:')

def publish(sa, cnt, last, tag, rdy=None):
    A(f'''v_mov_b32 v14, 1
    s_mov_b64 exec, 1
    s_waitcnt vmcnt(0)
    ds_add_rtn_u32 v13, v12, v14 offset:{cnt}
    s_waitcnt lgkmcnt(0)
    v_readfirstlane_b32 s{sT}, v13
    s_cmp_lg_u32 s{sT}, {last}
    s_cbranch_scc1 L_pub{tag}
    buffer_store_dword v14, v12, {srd(WS)}, s{sa} offen sc1''')
    if rdy:
        A(f's_lshl_b32 s{sT}, s{sHG}, 2\ns_lshl_b32 s{sT}, 1, s{sT}\nv_mov_b32 v13, s{sT}\nds_or_b32 v12, v13 offset:{rdy}')
    A(f'L_pub{tag}:\ns_mov_b64 exec, -1')

RG = SB
TRY = {0: (2, 4), 1: (2, 4)}
PRIO = opt('prio', 1)
PV2 = opt('pv', 2)
def attention(ty):
    U = UNITS[ty]; CT[0] = U['tiles']
    own = U['tiles'][:2]
    if ty == 0:
        publish(sFl, C_KV, 3, 'k')
        if ST2 == 2: stamp(1)
        poll_issue(4, 'x0')
        if WARM & 1:
            A(f'''v_and_b32 v13, 15, v0
            v_lshlrev_b32 v13, 7, v13
            v_lshrrev_b32 v14, 4, v0
            v_lshl_add_u32 v13, v14, 12, v13
            buffer_load_dword v250, v13, {srd(WS)}, s{sE1} offen''')
    for q in range(4): A(f'ds_read_b128 {vr(QF+4*q,4)}, v7 offset:{32768+q*1024}')
    for t in own: A(f'ds_read_b128 {vr(kf(t),4)}, v7 offset:{t*1024}')
    for g in range(4): A(f'ds_read_b128 {vr(MK+4*g,4)}, v2 offset:{L_M+g*1024}')
    A(f's_mov_b64 exec, s[{sHalf}:{sHalf+1}]')
    for t in own:
        for a in range(2): A(f'ds_read_b128 {vr(vf(t,a),4)}, v8 offset:{16384+t*1024+a*512}')
    A('s_mov_b64 exec, -1')
    A('s_waitcnt lgkmcnt(4)')
    started = set() if ty == 0 else {0}
    MID = {0: {3: lambda: try_load(0, 'm3'), 4: lambda: try_load(0, 'm4', True)},
           1: {3: lambda: poll_issue(4, 'y3'), 4: lambda: try_load(1, 'm4', PV2 == 0)}}
    if PV2 == 2: MID[0] = {2: lambda: try_load(0, 'm3'), 4: lambda: try_load(0, 'm4')}
    done = [False]
    def pre_pv(u):
        if not done[0]: A('s_waitcnt lgkmcnt(0)'); done[0] = True
    segment(U['own'], started, pre_pv=pre_pv, mid=MID[ty])
    stamp(4)
    Lfin = f'L_fin{ty}'
    A(f'''s_cmp_lg_u32 s{sEarly}, 0
    s_cbranch_scc1 L_have{ty}''')
    kv_block(ty, 'n')
    nb_loads(ty, 'b')
    A(f'L_have{ty}:')
    if opt('exp', 0) and ty == 1: A('s_branch L_have0')
    stamp(5)
    A(f's_cmp_eq_u32 s{sRB}, 0\ns_cbranch_scc1 L_z{ty}')
    LB = f'L_B{ty}'
    nd = [0]
    def dm(j):
        def f():
            if not WOE: wo_dma(j); nd[0] += 1
        return f
    A(f's_cmp_eq_u32 s{sRB}, 1\ns_cbranch_scc1 {LB}_only')
    def mk_wait(order):
        seen = set()
        def w(u):
            t = u[1]
            if t not in seen:
                seen.add(t)
                k = order.index(t)
                A(f's_waitcnt vmcnt({(3 if k == 0 else 3*(len(order)-1-k))+nd[0]})')
        return w
    for r in range(16): A(f'v_sub_f32 v{MK+r}, {f2u(-BIG)}, v{MK+r}')
    if PRIO:
        dm0 = dm
        def dm(j):
            f0 = dm0(j)
            def f():
                f0()
                if PRIO == 1 and ty == 1 and j in (0, PSW): A(f's_setprio {1 if j == 0 else 0}')
                if PRIO == 2 and ty == 1: A(f's_setprio {1 - (j & 1)}')
                if PRIO == 3 and ty == 1 and j == 0: A('s_setprio 1')
            return f
    midC = {i+WOS: dm(i) for i in range(8)}
    def farload():
        A(f's_mov_b32 s{sNeed}, 2')
        kv_block(ty, 'f')
        nb_loads(ty, 'f', True)
    midC[CU] = farload
    segment(U['B'] + U['C'], set(started), pre_qk=mk_wait(U['tiles'][2:6]), mid=midC)
    A(f's_branch {Lfin}\nL_z{ty}:')
    for j in range(0 if WOE else 8): wo_dma(j)
    A(f's_branch {Lfin}')
    nd[0] = 0
    A(f'{LB}_only:')
    segment(U['B'], set(started), pre_qk=mk_wait(U['tiles'][2:4]), mid={i: dm(i) for i in range(8)})
    A(f'{Lfin}:')
    if PRIO: A('s_setprio 0')
    A('s_nop 10')
    stamp(6)
    send = [q for q in range(4) if q not in U['keep']]
    for a, q in enumerate(send):
        o = OA + 16*q
        A(f'ds_write_b128 v5, {vr(o,4)} offset:{a*2048}\nds_write_b128 v5, {vr(o+4,4)} offset:{a*2048+1024}')
        A(f'ds_write_b32 v10, v{o+8} offset:{4096+a*256}')
    A('s_waitcnt vmcnt(0) lgkmcnt(0)')
    if ST2 == 1: stamp(1)
    A('s_barrier')
    if ST2 == 1: stamp(2)
    A(f's_lshl_b32 s{sT}, s{sW}, 2\ns_lshl_b32 s{sPoll}, 1, s{sT}\ns_cmp_eq_u32 s{sW}, s{sHG}\ns_cselect_b32 s{sPoll}, 0, s{sPoll}')
    poll_issue(9, f'o{ty}')
    for a in range(2):
        A(f'ds_read_b32 v{RG+16+a}, v11 offset:{4096+a*256}')
        A(f'ds_read_b128 {vr(RG+8*a,4)}, v6 offset:{a*2048}\nds_read_b128 {vr(RG+8*a+4,4)}, v6 offset:{a*2048+1024}')
    for a, q in enumerate(U['keep']):
        o = OA + 16*q
        A(f's_waitcnt lgkmcnt({3-3*a})')
        A(f'v_add_f32 v{RG+16+a}, v{RG+16+a}, v{o+8}')
        for j in range(8): A(f'v_add_f32 v{RG+8*a+j}, v{RG+8*a+j}, v{o+j}')
    if ty == 1:
        for j in range(8): A(f'v_mov_b32 v{QF+j}, v{QF+8+j}')

def finalize():
    A(f'''L_final:
    v_rcp_f32 v{RG+18}, v{RG+16}
    v_rcp_f32 v{RG+19}, v{RG+17}
    s_lshr_b32 s{sT}, s{sW}, 2
    s_lshl_b32 s{sT}, s{sT}, 13
    s_add_u32 s{sT}, s{sT}, s{sOb}
    s_add_u32 s{sT2}, s{sT}, 4096''')
    for a in range(2):
        o = RG + 8*a
        for j in range(8): A(f'v_mul_f32 v{o+j}, v{o+j}, v{RG+18+a}')
        for j in range(4): A(f'v_cvt_pk_bf16_f32 v{PK+4*a+j}, v{o+2*j}, v{o+2*j+1}')
        A(f'buffer_store_dwordx4 {vr(PK+4*a,4)}, v2, {srd(WS)}, s{sT2 if a else sT} offen sc1')
    for a in range(2):
        o = RG + 8*a; l = RG + 16 + a; m = f's[{70 if a else 58}:{71 if a else 59}]'
        A(f'v_cmp_lt_f32 {m}, s{sLo}, v{l}\nv_cmp_gt_f32 vcc, s{sHi}, v{l}\ns_and_b64 {m}, {m}, vcc')
        A(f'v_add_f32 v{l+4}, |v{o}|, |v{o+1}|')
        for j in range(2, 8): A(f'v_add_f32 v{l+4}, v{l+4}, |v{o+j}|')
    A(f'''v_add_f32 v{RG+20}, v{RG+20}, v{RG+21}
    s_and_b64 s[58:59], s[58:59], s[70:71]
    s_mov_b32 s{sT}, 0x7f800000
    v_cmp_gt_f32 vcc, s{sT}, v{RG+20}
    s_and_b64 s[58:59], s[58:59], vcc
    s_cmp_eq_u64 s[58:59], -1
    s_cselect_b32 s{sT}, {0 if FORCE_FB else 1}, 0
    s_or_b32 s{sT}, s{sT}, s{sFB}
    s_cbranch_scc0 L_fb''')
    if ST2: stamp(3 if ST2 == 1 else 2)

def fallback():
    A('L_fb:')
    sG, sG0, sQ, sA, sBv, sAd = 42, 43, 44, 45, 46, 47
    S = OA + 32; CB = OA + 48; MX = 248
    for g in range(4): A(f'ds_read_b128 {vr(MK+4*g,4)}, v2 offset:{L_M+g*1024}')
    A(f'''s_mov_b32 s{sFB}, 1
    s_lshr_b32 s{sQ}, s{sW}, 2
    s_lshl_b32 s{sQ}, s{sQ}, 1
    s_lshl_b32 s{sT}, s{sRB}, 2
    s_add_u32 s{sQ}, s{sQ}, s{sT}
    s_max_u32 s{sG0}, s{sQ}, 8
    s_sub_u32 s{sG0}, s{sG0}, 8
    v_mov_b32 v{MX}, 0xff800000
    v_mov_b32 v{MX+1}, 0xff800000''')
    for r in range(32): A(f'v_mov_b32 v{OA+r}, 0')
    A('s_waitcnt lgkmcnt(0)')
    for ps in range(2):
        A(f'''s_mov_b32 s{sG}, s{sG0}
        L_fbl{ps}:
        s_lshr_b32 s{sT}, s{sG}, 2
        s_sub_u32 s{sT}, s{sT}, s{sRB}
        s_add_u32 s{sT}, s{sT}, 2
        s_lshl_b32 s{sT}, s{sT}, 18
        s_add_u32 s{sAd}, s{sKB2}, s{sT}
        s_and_b32 s{sT}, s{sG}, 3
        s_lshl_b32 s{sT}, s{sT}, 10
        s_add_u32 s{sAd}, s{sAd}, s{sT}
        buffer_load_dwordx4 {vr(KF,4)}, v2, {srd(WS)}, s{sAd} offen sc1
        s_mov_b64 exec, s[{sHalf}:{sHalf+1}]
        buffer_load_dwordx4 {vr(VF,4)}, v3, {srd(WS)}, s{sAd} offen sc1
        buffer_load_dwordx4 {vr(VF+4,4)}, v3, {srd(WS)}, s{sAd} offen offset:512 sc1
        s_mov_b64 exec, -1
        s_waitcnt vmcnt(0)''')
        for a in range(2):
            A(f'''s_sub_u32 s{sT}, s{sQ}, s{sG}
            s_add_u32 s{sT}, s{sT}, {a}
            s_cmp_eq_u32 s{sT}, 0
            s_cselect_b32 s{sA}, 1.0, 0
            s_cmp_eq_u32 s{sT}, 8
            s_cselect_b32 s{sA}, -1.0, s{sA}
            s_cmp_ge_u32 s{sT}, 8
            s_cselect_b32 s{sBv}, {f2u(-BIG)}, 0''')
            A(f'v_mov_b32 v14, s{sBv}')
            for r in range(16): A(f'v_fma_f32 v{CB+r}, v{MK+r}, s{sA}, v14')
            if ps:
                for r in range(16): A(f'v_sub_f32 v{CB+r}, v{CB+r}, v{MX+a}')
            A(f'{MFMA} {vr(S,16)}, {vr(KF,4)}, {vr(QF+4*a,4)}, {vr(CB,16)}')
            if ps == 0:
                for j in range(8): A(f'v_max3_f32 v{MX+a}, v{S+2*j}, v{S+2*j+1}, v{MX+a}')
            else:
                for r in range(16): A(f'v_exp_f32 v{S+r}, v{S+r}')
                for j in range(8): A(f'v_cvt_pk_bf16_f32 v{S+j if j < 4 else S+4+j}, v{S+2*j}, v{S+2*j+1}')
                for h in range(2):
                    A(f'{MFMA} {vr(OA+16*a,16)}, {vr(VF+4*h,4)}, {vr(S+8*h,4)}, {vr(OA+16*a,16)}')
                A('s_nop 7')
        A(f'''s_add_u32 s{sG}, s{sG}, 1
        s_add_u32 s{sT}, s{sQ}, 1
        s_cmp_le_u32 s{sG}, s{sT}
        s_cbranch_scc1 L_fbl{ps}''')
        if ps == 0:
            for a in range(2):
                A(f'v_mov_b32 v14, v{MX+a}\ns_nop 1\nv_permlane32_swap_b32 v{MX+a}, v14\nv_max_f32 v{MX+a}, v{MX+a}, v14')
    A('s_nop 7')
    for a in range(2):
        for j in range(8): A(f'v_mov_b32 v{RG+8*a+j}, v{OA+16*a+j}')
        A(f'v_mov_b32 v{RG+16+a}, v{OA+16*a+8}')
    A('s_branch L_final')

WF = 16; OF = 144; AC3 = 208
def wait_chain(sreg, nmax, per, extra, tag):
    for n in range(nmax, 0, -1):
        A(f's_cmp_ge_u32 s{sreg}, {n}\ns_cbranch_scc1 L_wc{tag}_{n}')
    A(f's_waitcnt vmcnt({extra})')
    for n in range(1, nmax+1):
        A(f'L_wc{tag}_{n}:\ns_waitcnt vmcnt({per*n+extra})')
def wait_dyn(_):
    A(f's_bcnt1_i32_b32 s{sT2}, s{sNew}')
    wait_chain(sT2, 4, 4, 0, 'f')
def o_issue(tag, wait):
    poll_check(R_O, f'o{tag}', wait)
    A(f'''s_and_b32 s{sT2}, s{sW}, 4
    s_lshl_b32 s{sT2}, s{sT2}, 2
    s_lshr_b32 s{sT}, s{sT}, s{sT2}
    s_cmp_ge_u32 s{sSpin}, 0x40000
    s_cselect_b32 s{sT}, -1, s{sT}
    s_and_b32 s{sT}, s{sT}, 0x1111
    s_andn2_b32 s{sNew}, s{sT}, s{sIss}
    s_or_b32 s{sIss}, s{sIss}, s{sNew}''')
    if tag == 'b': A(f's_or_b32 s{sT}, s{sNew}, s{sM}\ns_cbranch_scc1 L_oi{tag}s\ns_sleep {SLP}\nL_oi{tag}s:')
    poll_issue(9, f'o{tag}')
    for g in range(4):
        A(f's_bitcmp0_b32 s{sNew}, {4*g}\ns_cbranch_scc1 L_oi{tag}{g}\ns_add_u32 s{sT}, s{sN2}, {g*16384}')
        for j in range(4):
            A(f'buffer_load_dwordx4 {vr(OF+16*g+4*j,4)}, v2, {srd(WS)}, s{sT} offen offset:{j*1024}{LDSC}')
        A(f'L_oi{tag}{g}:')
def phase3():
    A(f'''s_andn2_b32 s{sN2}, s{sWG}, 7
    s_and_b32 s{sT3}, s{sW}, 4
    s_add_u32 s{sN2}, s{sN2}, s{sT3}
    s_lshl_b32 s{sN2}, s{sN2}, 14
    s_and_b32 s{sT3}, s{sW}, 3
    s_lshl_b32 s{sT3}, s{sT3}, 12
    s_add_u32 s{sN2}, s{sN2}, s{sT3}
    s_add_u32 s{sN2}, s{sN2}, {WS_O}
    s_mov_b32 s{sIss}, 0
    s_mov_b32 s{sSpin}, 0''')
    A(f'''v_bfe_u32 v3, v0, 2, 2
    v_lshrrev_b32 v8, 5, v0
    v_lshl_add_u32 v3, v8, 2, v3
    v_lshlrev_b32 v11, 7, v3
    v_bfe_u32 v3, v0, 4, 1
    v_lshlrev_b32 v3, 1, v3
    v_bfe_u32 v10, v0, 1, 1
    v_or_b32 v3, v3, v10
    v_bfe_u32 v10, v0, 3, 1
    v_lshl_or_b32 v3, v10, 2, v3
    v_lshl_add_u32 v11, v3, 4, v11
    v_and_b32 v3, 1, v0
    v_lshl_add_u32 v11, v3, 3, v11
    s_lshr_b32 s{sT3}, s{sW}, 2
    s_lshl_b32 s{sT3}, s{sT3}, 15
    s_add_u32 s{sT3}, s{sT3}, {L_WO}
    v_add_u32 v11, s{sT3}, v11
    v_xor_b32 v7, 64, v11''')
    def wfr(lo, hi):
        for i in range(lo, hi):
            for nt in range(2):
                for j in range(2):
                    A(f'ds_read_b64_tr_b16 {vr(WF+8*i+4*nt+2*j,2)}, v{7 if nt else 11} offset:{i*2048+j*1024}')
    for r in range(32): A(f'v_mov_b32 v{AC3+r}, 0')
    A(f'''v_and_b32 v10, 31, v0
    v_lshlrev_b32 v10, 11, v10
    v_lshl_add_u32 v10, v8, 4, v10
    s_and_b32 s{sT}, s{sW}, 3
    s_lshl_b32 s{sN1}, s{sRB}, 2
    s_add_u32 s{sN1}, s{sN1}, s{sT}
    s_lshl_b32 s{sN1}, s{sN1}, 16
    s_lshl_b32 s{sT}, s{sB}, 10
    s_add_u32 s{sN1}, s{sN1}, s{sT}
    s_lshl_b32 s{sT}, s{sHG}, 7
    s_add_u32 s{sN1}, s{sN1}, s{sT}
    s_and_b32 s{sT}, s{sW}, 4
    s_lshl_b32 s{sT}, s{sT}, 4
    s_add_u32 s{sN1}, s{sN1}, s{sT}''')
    if ST2 == 1: stamp(4)
    publish(sFo, C_O, 7, 'o', R_O)
    if WARM & 2:
        A(f'''v_and_b32 v13, 7, v0
        v_lshlrev_b32 v13, 7, v13
        v_bfe_u32 v14, v0, 3, 1
        v_lshl_add_u32 v13, v14, 12, v13
        s_lshr_b32 s{sT}, s{sW}, 2
        s_lshl_b32 s{sT}, s{sT}, 13
        s_add_u32 s{sT}, s{sT}, s{sOb}
        s_mov_b64 exec, 0xffff
        buffer_load_dword v250, v13, {srd(WS)}, s{sT} offen
        s_mov_b64 exec, -1''')
    stamp(7)
    o_issue('a', lambda: None)
    stamp(8)
    if not WPG: wfr(0, 16)
    if ST2 == 2: stamp(4)
    A(f'''s_waitcnt lgkmcnt(0)
    L_p3l:
    s_mov_b32 s{sM}, s{sNew}
    s_mov_b32 s{sL}, 0
    s_mov_b32 s{sNew}, 0
    s_cmp_eq_u32 s{sIss}, 0x1111
    s_cbranch_scc1 L_p3m
    s_add_u32 s{sSpin}, s{sSpin}, 1
    s_bcnt1_i32_b32 s{sT2}, s{sM}''')
    o_issue('b', lambda: wait_chain(sT2, 3, 4, 0, 'p'))
    stamp(8)
    A(f's_bcnt1_i32_b32 s{sL}, s{sNew}\nL_p3m:')
    for g in range(4):
        A(f's_bitcmp0_b32 s{sM}, {4*g}\ns_cbranch_scc1 L_om{g}')
        A(f's_lshr_b32 s{sT}, s{sM}, {4*g+4}\ns_bcnt1_i32_b32 s{sT2}, s{sT}\ns_add_u32 s{sT2}, s{sT2}, s{sL}')
        if WPG: wfr(4*g, 4*g+4)
        wait_chain(sT2, 3, 4, 0, f'm{g}')
        for j in range(4):
            for nt in range(2):
                acc = vr(AC3+16*nt, 16); i = 4*g + j
                if WPG: A(f's_waitcnt lgkmcnt({14-4*j-2*nt})')
                A(f'{MFMA} {acc}, {vr(WF+8*i+4*nt,4)}, {vr(OF+4*i,4)}, {acc}')
        A(f'L_om{g}:')
    A(f'''s_cmp_lg_u32 s{sIss}, 0x1111
    s_cbranch_scc1 L_p3l
    s_cmp_lg_u32 s{sNew}, 0
    s_cbranch_scc1 L_p3l''')
    A(f's_lshr_b32 s{sT2}, s{sW}, 2\ns_nop 7\ns_nop 3')
    stamp(9)
    for kh in range(2):
        if kh == 0: A(f's_cmp_lg_u32 s{sT2}, 0\ns_cbranch_scc1 L_x1')
        else: A('L_x1:')
        send = AC3 + 16*(1-kh); keep = AC3 + 16*kh
        for g in range(4): A(f'ds_write_b128 v6, {vr(send+4*g,4)} offset:{g*1024}')
        A('s_waitcnt lgkmcnt(0)\ns_barrier')
        for g in range(4): A(f'ds_read_b128 {vr(16+4*g,4)}, v5 offset:{g*1024}')
        for g in range(4):
            A(f's_waitcnt lgkmcnt({3-g})')
            for r in range(4): A(f'v_add_f32 v{keep+4*g+r}, v{keep+4*g+r}, v{16+4*g+r}')
            for j in range(2): A(f'v_cvt_pk_bf16_f32 v{32+2*g+j}, v{keep+4*g+2*j}, v{keep+4*g+2*j+1}')
        if kh == 0: A('s_branch L_x2')
    A('L_x2:\ns_nop 1')
    for p in range(2):
        A(f'v_permlane32_swap_b32 v{32+4*p}, v{34+4*p}\nv_permlane32_swap_b32 v{33+4*p}, v{35+4*p}')
        A(f'buffer_store_dwordx4 {vr(32+4*p,4)}, v10, {srd(OUT)}, s{sN1} offen offset:{32*p}' + ['', ' sc1', ' nt', ' sc0 sc1', ' sc1 nt'][OST])
    if PROF:
        A('s_waitcnt vmcnt(0)')
        stamp(10)
        A(f'''s_lshl_b32 s{sT}, s2, 3
        s_add_u32 s{sT}, s{sT}, s{sW}
        s_lshl_b32 s{sT}, s{sT}, 7
        s_add_u32 s{sT}, s{sT}, {WS_ST}
        v_mov_b32 v1, 0''')
        for i in range(11):
            A(f'v_mov_b32 v2, s{sST+2*i}\nbuffer_store_dword v2, v1, {srd(WS)}, s{sT} offen offset:{4*i}')
        A(f'v_mov_b32 v2, s100\nbuffer_store_dword v2, v1, {srd(WS)}, s{sT} offen offset:60')
        A('s_mov_b32 s99, s100\ns_memrealtime s[100:101]\ns_waitcnt lgkmcnt(0)')
        A(f'v_mov_b32 v2, s100\nbuffer_store_dword v2, v1, {srd(WS)}, s{sT} offen offset:56')
    if DBGP:
        A(f'''s_mov_b64 exec, 1
        v_mov_b32 v2, s100
        buffer_atomic_umax v2, v1, {srd(DBG)}, 0 offen offset:56
        s_not_b32 s{sT}, s99
        v_mov_b32 v3, s{sT}
        buffer_atomic_umax v3, v1, {srd(DBG)}, 0 offen offset:60
        s_cmp_lg_u32 s2, {opt('dw', 77)}
        s_cbranch_scc1 L_end
        s_cmp_lg_u32 s{sW}, {opt('dv', 0)}
        s_cbranch_scc1 L_end''')
        for i in range(1, 11):
            A(f's_sub_u32 s{sT}, s{sST+2*i}, s{sST}\nv_mov_b32 v2, s{sT}\nbuffer_store_dword v2, v1, {srd(DBG)}, 0 offen offset:{12+4*i}')
        A('s_branch L_end\nL_dbg4:')
        for k, i in enumerate(()):
            A(f's_sub_u32 s{sT}, s{sST+2*i}, s{sST}\nv_mov_b32 v2, s{sT}\nbuffer_store_dword v2, v1, {srd(DBG)}, 0 offen offset:{52+4*k}')
    A('L_end:\ns_endpgm')

prologue()
def xpart():
    compute_p1()
    attention(0)
    A('s_branch L_final')
if not ORD: xpart()
loader_p1()
stamp(3)
attention(1)
finalize()
phase3()
if ORD: xpart()
fallback()
body, nadd = A.finish()
hdr = open('cdna_kernels/' + NAME + '.s.ref').read().split('; Override launch')[0]
out = hdr + f'''; @launch grid=(256,1,1) block=(512,1,1) lds=163840
.amdgcn_target "amdgcn-amd-amdhsa--gfx950"
.text
.globl {NAME}_kernel
.p2align 8
.type {NAME}_kernel,@function
{NAME}_kernel:
{body}.section .rodata,"a"
.p2align 6
.amdhsa_kernel {NAME}_kernel
  .amdhsa_next_free_vgpr 256
  .amdhsa_next_free_sgpr 102
  .amdhsa_accum_offset 256
  .amdhsa_group_segment_fixed_size 0
  .amdhsa_kernarg_size 72
  .amdhsa_user_sgpr_count 2
  .amdhsa_user_sgpr_kernarg_segment_ptr 1
  .amdhsa_system_sgpr_workgroup_id_x 1
.end_amdhsa_kernel
'''
dst = [a for a in sys.argv[1:] if not a.startswith('--')]
open(dst[0] if dst else 'cdna_kernels/' + NAME + '.s', 'w').write(out)
print('nops inserted', nadd, 'lines', body.count('\n'))
```

```python
import sys, struct, re
from asmlib import Asm
NAME = 'concat_heads__sliding_block__sliding_block__prompt'
DBGP = '--dbg' in sys.argv
PROF = '--prof' in sys.argv or DBGP
def opt(name, d):
    for a in sys.argv:
        if a.startswith('--'+name+'='): return int(a.split('=')[1])
    return d
DEP = opt('dep', 2); ROT = opt('rot', 0); PF = opt('pf', 1); LDSC = ' sc1' if opt('ldsc', 1) else ''
FORCE_FB = '--force-fb' in sys.argv
def f2u(x): return struct.unpack('<I', struct.pack('<f', x))[0]
A = Asm()
SLOT = 40960
WS_O = 8 << 20; WS_FL = 12 << 20; WS_ST = 13 << 20; WS_SZ = 14 << 20
RING0 = 40960; L_M = 0; L_CNT = 4096; L_WO = 4608; L_B = 70144; L_X = 122880
CSC = 0.25 * 1.4426950408889634
BIG = 1e30
sW = 3; X, Wq, WO, WS, OUT, DBG = 4, 8, 12, 16, 20, 24
sB, sRB, sHG, sWG = 28, 29, 30, 31
sXo, sWo, sSl, sIt, sT, sT2, sN1, sN2 = 50, 51, 52, 53, 54, 55, 56, 57
sHalf = 60; sC = 62; sSpin = 63; sFl = 64; sOb = 65; sT3 = 66; sLo = 67; sHi = 68
sST = 72
nst = [0]
def srd(i): return f's[{i}:{i+3}]'
def vr(a, n): return f'v[{a}:{a+n-1}]'
def stamp(idx):
    if PROF:
        A(f's_memtime s[{sST+2*idx}:{sST+2*idx+1}]\ns_waitcnt lgkmcnt(0)')
QF = 16; OA = 32; SB = 96; MK = 128; KF = 144; VF = 168; PK = 240
sEarly, sKB1, sKB2, sIss, sNew, sFB = 32, 33, 34, 35, 36, 37
sE1, sE2, sE3 = 39, 40, 41
sFo, sWm, sWg = 38, 48, 49
sM, sL = 42, 43
sPoll, sNeed = 50, 51
C_KV, C_O, R_KV, R_O = L_CNT+32, L_CNT+36, L_CNT+48, L_CNT+52
SLP = opt('slp', 2)
XCH = 4608
TLB = opt('tlb', 0); CW = opt('cw', 0); ORD = opt('ord', 0); P2 = opt('p2', 1); SH = opt('sh', 1)
WPG = opt('wpg', 1); PSW = opt('psw', 6); MAP = opt('map', 0)
WARM = opt('warm', 0)
WOE = opt('woe', 0); WOS = opt('wos', 4); CU = opt('cu', 2)
ST2 = opt('st2', 0)
OST = opt('ost', 0)
ACC = 16; FR = 112
MFMA = 'v_mfma_f32_32x32x16_bf16'

def prologue():
    A(f'''s_cmp_ge_u32 s2, 256
    s_cbranch_scc1 L_end
    s_load_dwordx8 s[32:39], s[0:1], 0
    s_load_dwordx8 s[40:47], s[0:1], 32
    s_load_dwordx2 s[48:49], s[0:1], 64''')
    if PROF: A(f's_memrealtime s[100:101]')
    A(f'''v_lshrrev_b32 v1, 6, v0
    v_and_b32 v0, 63, v0
    s_and_b32 s{sT}, s2, 7
    v_readfirstlane_b32 s{sW}, v1
    s_lshr_b32 s{sT2}, s2, 3
    s_lshr_b32 s{sB}, s{sT}, 2
    s_and_b32 s{sT}, s{sT}, 3
    s_lshl_b32 s{sT}, s{sT}, 2
    s_lshr_b32 s{sRB}, s{sT2}, 3
    s_add_u32 s{sRB}, s{sRB}, s{sT}
    s_and_b32 s{sHG}, s{sT2}, 7''')
    if MAP: A(f'''s_bfe_u32 s{sRB}, s2, 0x10001
    s_lshl_b32 s{sRB}, s{sRB}, 3
    s_lshr_b32 s{sT}, s{sT2}, 2
    s_add_u32 s{sRB}, s{sRB}, s{sT}
    s_and_b32 s{sHG}, s2, 1
    s_lshl_b32 s{sHG}, s{sHG}, 2
    s_and_b32 s{sT}, s{sT2}, 3
    s_add_u32 s{sHG}, s{sHG}, s{sT}''')
    A(f'''    s_lshl_b32 s{sWG}, s{sB}, 4
    s_add_u32 s{sWG}, s{sWG}, s{sRB}
    s_lshl_b32 s{sWG}, s{sWG}, 3
    s_add_u32 s{sWG}, s{sWG}, s{sHG}
    s_mov_b32 s{X+2}, 0x200000
    s_mov_b32 s{X+3}, 0x20000
    s_mov_b32 s{Wq+2}, 0x180000
    s_mov_b32 s{Wq+3}, 0x20000
    s_mov_b32 s{WO+2}, 0x80000
    s_mov_b32 s{WO+3}, 0x20000
    s_mov_b32 s{WS+2}, {WS_SZ}
    s_mov_b32 s{WS+3}, 0x20000
    s_mov_b32 s{OUT+2}, 0x400000
    s_mov_b32 s{OUT+3}, 0x20000
    s_mov_b32 s{DBG+2}, 256
    s_mov_b32 s{DBG+3}, 0x20000
    s_mov_b32 s{sHalf}, 0xffff
    s_mov_b32 s{sHalf+1}, 0xffff
    s_cmp_eq_u32 s{sB}, 0
    s_waitcnt lgkmcnt(0)
    s_cselect_b32 s{X}, s32, s38
    s_cselect_b32 s{X+1}, s33, s39
    s_cselect_b32 s{Wq}, s34, s40
    s_cselect_b32 s{Wq+1}, s35, s41
    s_cselect_b32 s{WO}, s36, s42
    s_cselect_b32 s{WO+1}, s37, s43
    s_mov_b32 s{OUT}, s44
    s_mov_b32 s{OUT+1}, s45
    s_mov_b32 s{DBG}, s46
    s_mov_b32 s{DBG+1}, s47
    s_mov_b32 s{WS}, s48
    s_mov_b32 s{WS+1}, s49''')
    stamp(0)
    A(f'''s_cmp_ge_u32 s{sW}, 4
    s_cbranch_scc{0 if ORD else 1} {'L_comp' if ORD else 'L_loader'}''')

def preset_ones():
    A(f'v_mov_b32 v1, 0x3f803f80')
    for i in range(48): A(f'v_mov_b32 v{VF+i}, v1')

def common_consts():
    A(f'''s_lshl_b32 s{sFl}, s{sWG}, 7
    s_add_u32 s{sFl}, s{sFl}, {WS_FL}
    s_add_u32 s{sFo}, s{sFl}, 64
    s_mov_b32 s{sC}, {f2u(CSC)}
    s_mov_b32 s{sLo}, {f2u(2.0**-40)}
    s_mov_b32 s{sHi}, {f2u(2.0**40)}''')

def lds_min4(dst_s, vt, addr_v, off, wait=True):
    A(f'ds_read_b128 {vr(vt,4)}, v{addr_v} offset:{off}')
    A('s_waitcnt lgkmcnt(0)')
    min4(dst_s, vt)
def min4(dst_s, vt):
    A(f'v_min3_u32 v{vt}, v{vt}, v{vt+1}, v{vt+2}\nv_min_u32 v{vt}, v{vt}, v{vt+3}\nv_readfirstlane_b32 s{dst_s}, v{vt}')

def loader_p1():
    A('L_loader:')
    A(f"""v_lshrrev_b32 v6, 3, v0
    v_and_b32 v7, 7, v0
    v_lshrrev_b32 v8, 4, v0
    v_xor_b32 v9, v7, v8
    v_lshlrev_b32 v9, 4, v9
    v_lshl_add_u32 v2, v6, 10, v9
    v_xor_b32 v3, 64, v2
    v_and_b32 v8, 1, v8
    v_lshlrev_b32 v8, 2, v8
    v_xor_b32 v9, v7, v8
    v_lshlrev_b32 v9, 4, v9
    v_mul_u32_u24 v4, 3072, v6
    v_add_u32 v4, v4, v9
    v_lshl_add_u32 v5, v6, 10, v9
    s_sub_u32 s{sT}, s{sW}, 4
    s_lshl_b32 s{sXo}, s{sRB}, 17
    s_lshl_b32 s{sT2}, s{sT}, 15
    s_add_u32 s{sXo}, s{sXo}, s{sT2}
    s_mul_i32 s{sWo}, s{sT}, {16*3072}
    s_lshl_b32 s{sT2}, s{sHG}, 7
    s_add_u32 s{sWo}, s{sWo}, s{sT2}
    s_lshl_b32 s{sN1}, s{sT}, 12
    s_add_u32 s{sN1}, s{sN1}, {RING0+SLOT}
    s_lshl_b32 s{sN2}, s{sT}, 11
    s_add_u32 s{sN2}, s{sN2}, {16384+RING0+SLOT}
    s_lshl_b32 s{sT}, s{sT}, 2
    v_mov_b32 v10, 0
    v_mov_b32 v11, s{sT}
    s_mov_b32 s{sIt}, 0
    s_mov_b32 s69, 1
    L_ld_loop:""")
    for j in range(4):
        A(f"""s_add_u32 m0, s{sN1}, {j*1024}
        s_add_u32 s{sT}, s{sXo}, {j*8192}
        buffer_load_dwordx4 v{2+(j&1)}, {srd(X)}, s{sT} offen lds""")
    for seg in range(3):
        for q in range(2):
            A(f"""s_add_u32 m0, s{sN2}, {seg*8192+q*1024}
            s_add_u32 s{sT}, s{sWo}, {seg*1024+q*8*3072}
            buffer_load_dwordx4 v4, {srd(Wq)}, s{sT} offen lds""")
    A(f"""s_add_u32 s{sXo}, s{sXo}, 128
    s_add_u32 s{sWo}, s{sWo}, {64*3072}
    s_add_u32 s69, s69, 1
    s_mov_b32 s{sT}, {SLOT}
    s_cmp_eq_u32 s69, 3
    s_cselect_b32 s{sT}, {-2*SLOT & 0xffffffff}, s{sT}
    s_cselect_b32 s69, 0, s69
    s_add_u32 s{sN1}, s{sN1}, s{sT}
    s_add_u32 s{sN2}, s{sN2}, s{sT}
    s_cmp_lg_u32 s{sIt}, 0
    s_cbranch_scc1 L_ld_sig
    s_barrier
    s_mov_b32 s{sIt}, 1
    s_branch L_ld_loop
    L_ld_sig:
    v_mov_b32 v12, s{sIt}
    s_add_u32 s{sIt}, s{sIt}, 1
    s_waitcnt vmcnt(10)
    ds_write_b32 v11, v12 offset:{L_CNT}
    s_cmp_lt_u32 s{sIt}, 3
    s_cbranch_scc1 L_ld_loop
    s_cmp_eq_u32 s{sIt}, 8
    s_cbranch_scc1 L_ld_done
    s_sub_u32 s{sT3}, s{sIt}, 2""")
    lds_min4(sT2, 16, 10, L_CNT+16)
    A(f"""s_cmp_ge_u32 s{sT2}, s{sT3}
    s_cbranch_scc1 L_ld_loop
    v_mov_b32 v12, s{sIt}
    s_waitcnt vmcnt(0)
    ds_write_b32 v11, v12 offset:{L_CNT}
    L_ld_spin:""")
    lds_min4(sT2, 16, 10, L_CNT+16)
    A(f"""s_cmp_ge_u32 s{sT2}, s{sT3}
    s_cbranch_scc1 L_ld_loop
    s_branch L_ld_spin
    L_ld_done:
    v_and_b32 v13, 3, v0
    v_lshlrev_b32 v13, 2, v13
    buffer_load_dword v7, v13, {srd(DBG)}, 0 offen sc1
    v_mov_b32 v12, 8
    s_waitcnt vmcnt(1)
    ds_write_b32 v11, v12 offset:{L_CNT}""")
    stamp(1)
    A(f"""v_and_b32 v6, 31, v0
    v_lshrrev_b32 v9, 5, v0
    v_lshlrev_b32 v9, 2, v9
    v_sub_u32 v6, v6, v9
    v_cvt_f32_i32 v6, v6
    s_mov_b32 s{sT}, {f2u(-BIG)}
    v_lshlrev_b32 v8, 4, v0""")
    for r in range(16):
        c = 8*(r//4) + r % 4
        A(f'v_sub_f32 v{MK+r}, {f2u(float(c))}, v6')
        A(f'v_med3_f32 v{MK+r}, v{MK+r}, 0, 1.0')
        A(f'v_mul_f32 v{MK+r}, s{sT}, v{MK+r}')
    for g in range(4):
        A(f'ds_write_b128 v8, {vr(MK+4*g,4)} offset:{L_M+g*1024}')
    preset_ones()
    common_consts()
    A(f"""s_mov_b32 s{sSpin}, 0
    s_mov_b32 s{sT}, 1
    s_waitcnt vmcnt(0)
    L_gate:
    v_cmp_ne_u32 vcc, s{sT}, v7
    s_cbranch_vccz L_gate_ok
    s_sleep 4
    buffer_load_dword v7, v13, {srd(DBG)}, 0 offen sc1
    s_add_u32 s{sSpin}, s{sSpin}, 1
    s_cmp_lt_u32 s{sSpin}, 0x10000
    s_waitcnt vmcnt(0)
    s_cbranch_scc1 L_gate
    L_gate_ok:""")
    nb_setup()
    for r in range(16): A(f'v_mov_b32 v{OA+r}, 0')
    if WOE:
        A('L_wo_spin:')
        lds_min4(sT2, 16, 12, L_CNT+16)
        A(f's_cmp_lt_u32 s{sT2}, 6\ns_cbranch_scc1 L_wo_spin')
        for j in range(16): wo_dma(j)
        stamp(2)
    else:
        poll_issue(4, 'y0')
        stamp(2)
        try_load(1, 'a')
    A("""    s_waitcnt lgkmcnt(0)
    s_barrier""")

def frag_reads(buf, ks):
    F = FR + 20*buf
    xs = [f'ds_read_b128 {vr(F+4*mt,4)}, v{2+ks} offset:{mt*4096}' for mt in range(2)]
    def wrd(seg): return [f'ds_read_b64_tr_b16 {vr(F+8+4*seg+2*j,2)}, v6 offset:{16384+seg*8192+ks*2048+j*512}' for j in range(2)]
    return [xs[0]] + wrd(0) + [xs[1]] + wrd(1) + wrd(2)
def mfmas(buf):
    F = FR + 20*buf
    L = []
    for seg in range(3):
        for mt in range(2):
            acc = vr(ACC + (seg*2+mt)*16, 16)
            x = vr(F+4*mt, 4); w = vr(F+8+4*seg, 4)
            a, b = (w, x) if seg < 2 else (x, w)
            L.append(f'{MFMA} {acc}, {a}, {b}, {acc}')
    return L

def compute_p1():
    A('L_comp:')
    if CW:
        A(f'''s_cmp_ge_u32 s2, 16
        s_cbranch_scc1 L_nocw
        s_getpc_b64 s[58:59]
        L_pc:
        s_sub_u32 s58, s58, L_pc-{NAME}_kernel
        s_subb_u32 s59, s59, 0
        s_lshl_b32 s{sT}, s{sW}, 13
        v_lshl_add_u32 v14, v0, 7, s{sT}
        s_mov_b32 s{sT}, L_codeend-{NAME}_kernel
        v_cmp_gt_u32 vcc, s{sT}, v14
        s_and_b64 exec, exec, vcc
        s_cbranch_execz L_nocw2
        v_mov_b32 v15, s59
        v_add_co_u32 v14, vcc, s58, v14
        v_addc_co_u32 v15, vcc, 0, v15, vcc
        global_load_dword v250, v[14:15], off
        L_nocw2:
        s_mov_b64 exec, -1
        L_nocw:''')
    A(f'''v_mov_b32 v12, 0
    v_lshlrev_b32 v13, 2, v0
    ds_write_b32 v13, v12 offset:{L_CNT}
    s_waitcnt lgkmcnt(0)
    s_barrier''')
    A(f'''s_cmp_lg_u32 s2, 0
    s_cbranch_scc1 L_noinit
    v_lshlrev_b32 v1, 4, v0
    v_mov_b32 v4, 0
    v_mov_b32 v5, 0
    v_mov_b32 v6, 0
    v_mov_b32 v7, 0
    s_lshl_b32 s{sT}, s{sW}, 13
    s_add_u32 s{sT}, s{sT}, {WS_FL}
    s_add_u32 s{sT2}, s{sT}, 8192
    L_init:
    buffer_store_dwordx4 v[4:7], v1, {srd(WS)}, s{sT} offen sc1
    s_add_u32 s{sT}, s{sT}, 1024
    s_cmp_lt_u32 s{sT}, s{sT2}
    s_cbranch_scc1 L_init
    L_noinit:''')
    A(f'''v_and_b32 v7, 31, v0
    v_lshrrev_b32 v8, 5, v0
    v_lshrrev_b32 v9, 1, v7
    v_and_b32 v9, 7, v9
    v_xor_b32 v9, v9, v8
    v_lshlrev_b32 v9, 4, v9
    v_lshl_add_u32 v2, v7, 7, v9
    s_lshr_b32 s{sT}, s{sW}, 1
    s_lshl_b32 s{sT}, s{sT}, 13
    s_add_u32 s{sT}, s{sT}, {RING0+SLOT}
    v_add_u32 v2, s{sT}, v2
    v_xor_b32 v3, 32, v2
    v_xor_b32 v4, 64, v2
    v_xor_b32 v5, 96, v2
    v_bfe_u32 v9, v0, 2, 2
    v_lshl_add_u32 v9, v8, 3, v9
    v_lshlrev_b32 v6, 7, v9
    v_bfe_u32 v9, v0, 4, 1
    v_lshlrev_b32 v9, 1, v9
    v_bfe_u32 v10, v0, 1, 1
    v_or_b32 v9, v9, v10
    v_bfe_u32 v10, v0, 3, 1
    s_and_b32 s{sT}, s{sW}, 1
    v_xor_b32 v10, s{sT}, v10
    v_lshl_or_b32 v9, v10, 2, v9
    v_lshl_add_u32 v6, v9, 4, v6
    v_and_b32 v9, 1, v0
    v_lshl_add_u32 v6, v9, 3, v6
    v_add_u32 v6, {RING0+SLOT}, v6
    s_lshl_b32 s{sT}, s{sW}, 2
    v_mov_b32 v13, s{sT}''')
    epi_addr()
    for i in range(96): A(f'v_mov_b32 v{ACC+i}, 0')
    preset_ones()
    common_consts()
    nb_setup(True)
    if TLB:
        A(f'''s_lshl_b32 s{sT}, s{sRB}, 18
        s_mov_b64 exec, 1
        buffer_load_dword v250, v12, {srd(WS)}, s{sE1} offen sc1
        buffer_load_dword v250, v12, {srd(WS)}, s{sOb} offen sc1
        buffer_load_dword v250, v12, {srd(WS)}, s{sFl} offen offset:32 sc1
        buffer_load_dword v250, v12, {srd(OUT)}, s{sT} offen sc1
        buffer_load_dword v250, v12, {srd(WO)}, s{sWg} offen
        s_cmp_lt_u32 s{sRB}, 2
        s_cselect_b32 s{sT}, s{sE1}, s{sKB2}
        buffer_load_dword v250, v12, {srd(WS)}, s{sT} offen sc1
        s_mov_b64 exec, -1''')
    A(f's_mov_b32 s{sIt}, 0\ns_mov_b32 s69, 1\nL_c_spin0:')
    lds_min4(sT2, 8, 12, L_CNT)
    A(f's_cmp_lt_u32 s{sT2}, 1\ns_cbranch_scc1 L_c_spin0')
    A(f'''s_cmp_lg_u32 s2, 0
    s_cbranch_scc1 L_noann
    v_mov_b32 v14, 1
    s_mov_b64 exec, 1
    s_waitcnt vmcnt(0)
    buffer_store_dword v14, v13, {srd(DBG)}, 0 offen sc1
    s_mov_b64 exec, -1
    L_noann:''')
    stamp(1)
    Q = []
    def ds(txt, tag): A(txt); Q.append(tag)
    def wait(tag):
        n = len(Q) - 1 - max(i for i, t in enumerate(Q) if t == tag)
        A(f's_waitcnt lgkmcnt({n})')
        del Q[:len(Q)-n]
    TAGS = ['x0', 'wq', 'wq', 'x1', 'wk', 'wk', 'wv', 'wv']
    for r, t in zip(frag_reads(0, 0), TAGS): ds(r, (0, t))
    A('L_p1_loop:')
    for ks in range(4):
        cur = ks & 1
        M = mfmas(cur)
        nk = (ks+1) & 3
        R = [(r, (nk, t)) for r, t in zip(frag_reads(cur ^ 1, nk), TAGS)]
        if ks < 3:
            wait((ks, 'wq')); A(M[0]); ds(*R[0]); ds(*R[1])
            wait((ks, 'x1')); A(M[1]); ds(*R[2]); ds(*R[3])
            wait((ks, 'wk')); A(M[2]); ds(*R[4]); ds(*R[5])
            A(M[3]); ds(*R[6]); ds(*R[7])
            wait((ks, 'wv')); A(M[4])
            if ks == 2: ds(f'ds_read_b128 v[8:11], v12 offset:{L_CNT}', 'cnt')
            A(M[5])
        else:
            wait((ks, 'wq')); A(M[0])
            A(f"""s_add_u32 s{sIt}, s{sIt}, 1
            s_add_u32 s69, s69, 1
            s_mov_b32 s{sT}, {SLOT}
            s_cmp_eq_u32 s69, 3
            s_cselect_b32 s{sT}, {-2*SLOT & 0xffffffff}, s{sT}
            s_cselect_b32 s69, 0, s69
            v_mov_b32 v14, s{sIt}""")
            wait((ks, 'x1')); A(M[1])
            for i in range(2, 7): A(f'v_add_u32 v{i}, s{sT}, v{i}')
            wait('cnt')
            A(f'ds_write_b32 v13, v14 offset:{L_CNT+16}')
            min4(sT2, 8)
            A(M[2])
            A(f"""s_min_u32 s{sT3}, s{sIt}, 7
            s_cmp_gt_u32 s{sT2}, s{sT3}
            s_cbranch_scc1 L_c_ok
            L_c_spin:""")
            lds_min4(sT2, 8, 12, L_CNT)
            A(f"""s_cmp_le_u32 s{sT2}, s{sT3}
            s_cbranch_scc1 L_c_spin
            L_c_ok:""")
            Q[:] = []
            ds(*R[0]); ds(*R[1])
            A(M[3]); ds(*R[2]); ds(*R[3]); ds(*R[4])
            A(M[4]); ds(*R[5]); ds(*R[6]); ds(*R[7])
            A(f's_cmp_lt_u32 s{sIt}, 8')
            A(M[5])
            A('s_cbranch_scc1 L_p1_loop')
    stamp(2)
    A('L_c_spin2:')
    lds_min4(sT2, 8, 12, L_CNT+16)
    A(f's_cmp_lt_u32 s{sT2}, 7\ns_cbranch_scc1 L_c_spin2')
    tmp = FR
    def cvt8(acc, dst):
        for i in range(8): A(f'v_cvt_pk_bf16_f32 v{dst+i}, v{acc+2*i}, v{acc+2*i+1}')
    n = 0
    for mt in range(2):
        acc = ACC + (1*2+mt)*16; d = tmp + 8*(n % 5); n += 1
        cvt8(acc, d)
        for e in range(2):
            A(f'buffer_store_dwordx4 {vr(d+4*e,4)}, v152, {srd(WS)}, s{sE2 if e else sE1} offen offset:{mt*1024} sc1')
            A(f'ds_write_b128 v155, {vr(d+4*e,4)} offset:{e*4096+mt*1024}')
    for mt in range(2):
        acc = ACC + (2*2+mt)*16; d = tmp + 8*(n % 5); n += 1
        cvt8(acc, d)
        for a in range(2):
            A(f'buffer_store_dwordx4 {vr(d+4*a,4)}, v154, {srd(WS)}, s{sE3} offen offset:{mt*1024+a*512} sc1')
            A(f'ds_write_b128 v153, {vr(d+4*a,4)} offset:{16384+mt*1024+a*512}')
    for mt in range(2):
        acc = ACC + mt*16
        for i in range(8): A(f'v_pk_mul_f32 {vr(acc+2*i,2)}, {vr(acc+2*i,2)}, s[{sC}:{sC+1}] op_sel_hi:[1,0]')
        cvt8(acc, acc)
        for e in range(2):
            A(f'ds_write_b128 v155, {vr(acc+4*e,4)} offset:{32768+e*4096+mt*1024}')
    for i in range(1, 13): A(f'v_mov_b32 v{i}, v{216+i}')
    A('s_waitcnt lgkmcnt(0)\ns_barrier')
    stamp(3)

def epi_addr():
    A(f'''v_lshlrev_b32 v152, 4, v0
    v_bfe_u32 v10, v0, 4, 1
    v_and_b32 v11, 15, v0
    v_lshrrev_b32 v7, 5, v0
    v_lshl_or_b32 v11, v7, 4, v11
    v_lshlrev_b32 v11, 4, v11
    v_lshl_add_u32 v153, v10, 12, v11
    v_lshl_add_u32 v154, v10, 13, v11
    s_and_b32 s{sT}, s{sW}, 1
    s_lshr_b32 s{sT2}, s{sW}, 1
    s_lshl_b32 s{sN1}, s{sT}, 13
    s_lshl_b32 s{sT3}, s{sT2}, 11
    s_add_u32 s{sN1}, s{sN1}, s{sT3}
    s_add_u32 s{sN1}, s{sN1}, {L_B}
    v_add_u32 v155, s{sN1}, v152
    v_add_u32 v153, s{sN1}, v153
    s_lshl_b32 s{sE1}, s{sWG}, 15
    s_lshl_b32 s{sT}, s{sT}, 14
    s_add_u32 s{sE1}, s{sE1}, s{sT}
    s_add_u32 s{sE1}, s{sE1}, s{sT3}
    s_add_u32 s{sE2}, s{sE1}, 8192
    s_add_u32 s{sE3}, s{sE1}, 4096''')

UNITS = {0: dict(tiles=[0, 3, -1, -2, -5, -8], keep=(0, 1),
                 own=[(0,0,1),(1,0,0),(2,0,0),(3,0,0),(3,3,1)],
                 C=[(0,-5,0),(1,-5,0),(2,-5,0),(3,-5,1),(0,-8,1)]),
         1: dict(tiles=[1, 2, -3, -4, -6, -7], keep=(2, 3),
                 own=[(1,1,1),(2,1,0),(3,1,0),(2,2,1),(3,2,0)],
                 C=[(0,-6,0),(1,-6,0),(2,-6,1),(0,-7,0),(1,-7,1)])}
for U in UNITS.values(): U['B'] = [(q, t, 0) for t in U['tiles'][2:4] for q in range(4)]
CT = [None]
def kf(t): return KF + 4*CT[0].index(t)
def vf(t, a): return VF + 8*CT[0].index(t) + 4*a
def qk(u, sb):
    q, t, m = u
    return f'{MFMA} {vr(sb,16)}, {vr(kf(t),4)}, {vr(QF+4*q,4)}, {vr(MK,16) if m else "0"}'
def pv(u, sb, a, first):
    q, t, m = u
    o = vr(OA+16*q, 16)
    return f'{MFMA} {o}, {vr(vf(t,a),4)}, {vr(sb+8*a,4)}, {"0" if first else o}'
def segment(units, started, pre_qk=None, pre_pv=None, mid=None):
    n = len(units)
    def QK(i):
        if pre_qk: pre_qk(units[i])
        A(qk(units[i], SB+16*(i & 1)))
    def PV(i, a):
        u = units[i]
        if pre_pv: pre_pv(u)
        first = (u[0] not in started)
        started.add(u[0])
        A(pv(u, SB+16*(i & 1), a, first))
    QK(0)
    if n > 1: QK(1)
    pend = [None]
    for i in range(n):
        S = SB + 16*(i & 1)
        e = lambda r: A(f'v_exp_f32 v{S+r}, v{S+r}')
        def c(j, S=S):
            d = S + j if j < 4 else S + 4 + j
            A(f'v_cvt_pk_bf16_f32 v{d}, v{S+2*j}, v{S+2*j+1}')
        if mid and i in mid: mid[i]()
        if SH:
            e(0)
            if i > 0: pend[0]()
            e(1); e(2)
            if i > 0:
                PV(i-1, 1)
                if i+1 < n: QK(i+1)
            for j in range(7):
                if j: e(2*j+2)
                c(j); e(2*j+3)
                if j == 4: PV(i, 0)
            pend[0] = (lambda c=c: c(7))
            continue
        e(0); e(1)
        if i > 0:
            PV(i-1, 1)
            if i+1 < n: QK(i+1)
        for j in range(7):
            e(2*j+2); c(j); e(2*j+3)
            if j == 4: PV(i, 0)
        A('s_nop 0'); c(7)
    if SH: pend[0]()
    PV(n-1, 1)

def nb_setup(hoist=False):
    n0 = len(A.L)
    A(f'''s_and_b32 s{sT}, s{sW}, 3
    s_lshl_b32 s{sT2}, s{sT}, 12
    s_add_u32 s{sT2}, s{sT2}, {L_B}
    v_lshlrev_b32 v2, 4, v0
    v_add_u32 v7, s{sT2}, v2
    v_and_b32 v11, 15, v0
    v_lshrrev_b32 v12, 5, v0
    v_lshl_or_b32 v11, v12, 4, v11
    v_lshlrev_b32 v3, 4, v11
    v_add_u32 v8, s{sT2}, v3
    v_add_u32 v3, 4096, v3
    s_lshl_b32 s{sKB1}, s{sWG}, 2
    s_add_u32 s{sKB1}, s{sKB1}, s{sT}
    s_lshl_b32 s{sKB1}, s{sKB1}, 13
    s_sub_u32 s{sKB2}, s{sKB1}, {2*32*8192}
    s_sub_u32 s{sKB1}, s{sKB1}, {32*8192}
    s_lshl_b32 s{sOb}, s{sWG}, 14
    s_lshl_b32 s{sT2}, s{sT}, 10
    s_add_u32 s{sOb}, s{sOb}, s{sT2}
    s_add_u32 s{sOb}, s{sOb}, {WS_O}
    s_and_b32 s{sT}, s{sW}, 1
    s_lshl_b32 s{sT2}, s{sT}, 10
    s_sub_u32 s{sT2}, s{sFl}, s{sT2}
    s_sub_u32 s{sT2}, s{sT2}, 1024
    v_mov_b32 v4, s{sT2}
    s_min_u32 s{sT2}, s{sRB}, 2
    s_lshr_b32 s{sNeed}, s{sW}, 1
    s_and_b32 s{sNeed}, s{sNeed}, 2
    s_xor_b32 s{sNeed}, s{sNeed}, s{sW}
    s_and_b32 s{sNeed}, s{sNeed}, 3
    s_cmp_lt_u32 s{sNeed}, s{sT2}
    s_cselect_b32 s{sPoll}, 1, 0
    s_lshl_b32 s{sPoll}, s{sPoll}, s{sT}
    s_mov_b32 s{sNeed}, 1
    v_lshrrev_b32 v1, 3, v0
    v_and_b32 v5, 7, v0
    v_bfe_u32 v6, v0, 4, 1
    v_lshlrev_b32 v6, 2, v6
    v_xor_b32 v5, v5, v6
    v_lshlrev_b32 v5, 4, v5
    v_lshl_add_u32 v1, v1, 10, v5
    s_and_b32 s{sT}, s{sW}, {3 if WOE else 7}
    s_lshl_b32 s{sWm}, s{sT}, {14 if WOE else 13}
    s_add_u32 s{sWm}, s{sWm}, {L_WO}
    s_lshl_b32 s{sWg}, s{sT}, {17 if WOE else 16}
    s_lshl_b32 s{sT}, s{sHG}, 7
    s_add_u32 s{sWg}, s{sWg}, s{sT}
    s_cmp_eq_u32 s{sRB}, 0
    s_cselect_b32 s{sEarly}, 1, 0
    s_mov_b32 s{sFB}, 0
    s_mul_i32 s{sT}, s{sW}, {XCH}
    s_add_u32 s{sT}, s{sT}, {L_X}
    v_add_u32 v5, s{sT}, v2
    v_lshl_add_u32 v10, v0, 2, s{sT}
    s_xor_b32 s{sT}, s{sW}, 4
    s_mul_i32 s{sT}, s{sT}, {XCH}
    s_add_u32 s{sT}, s{sT}, {L_X}
    v_add_u32 v6, s{sT}, v2
    v_lshl_add_u32 v11, v0, 2, s{sT}''')
    A(f'''s_andn2_b32 s{sN1}, s{sWG}, 7
    s_add_u32 s{sN1}, s{sN1}, s{sW}
    s_lshl_b32 s{sN1}, s{sN1}, 7
    s_add_u32 s{sN1}, s{sN1}, {WS_FL+64}
    v_lshlrev_b32 v9, 7, v0
    v_xor_b32 v9, s{sN1}, v9
    v_mov_b32 v12, 0''')
    if hoist: A.L[n0:] = [re.sub(r'\bv(1[0-2]|[1-9])\b', lambda m: f'v{216+int(m.group(1))}', l) for l in A.L[n0:]]

def wo_dma(j):
    A(f'''s_add_u32 m0, s{sWm}, {j*1024}
    s_add_u32 s{sT}, s{sWg}, {j*8192}
    buffer_load_dwordx4 v1, {srd(WO)}, s{sT} offen lds''')
def poll_issue(va, tag):
    A(f'''s_cmp_eq_u32 s{sPoll}, 0
    s_cbranch_scc1 L_pi{tag}
    s_mov_b64 exec, {3 if (va == 9 and P2) else 1}
    buffer_load_dword v15, v{va}, {srd(WS)}, 0 offen sc1
    s_mov_b64 exec, -1
    L_pi{tag}:''')
def poll_check(rdy, tag, wait):
    A(f's_cmp_eq_u32 s{sPoll}, 0\ns_cbranch_scc1 L_pc{tag}')
    wait()
    if rdy == R_O and P2:
        A(f'''v_readlane_b32 s{sT}, v15, 0
        v_readlane_b32 s{sT2}, v15, 1
        s_lshl_b32 s{sT3}, s{sW}, 2
        s_cmp_eq_u32 s{sT}, 1
        s_cselect_b32 s{sT}, 1, 0
        s_lshl_b32 s{sT}, s{sT}, s{sT3}
        s_xor_b32 s{sT3}, s{sT3}, 4
        s_cmp_eq_u32 s{sT2}, 1
        s_cselect_b32 s{sT2}, 1, 0
        s_lshl_b32 s{sT2}, s{sT2}, s{sT3}
        s_or_b32 s{sT}, s{sT}, s{sT2}
        s_and_b32 s{sT}, s{sT}, s{sPoll}
        s_cbranch_scc0 L_pc{tag}
        v_mov_b32 v14, s{sT}
        s_mov_b64 exec, 1
        ds_or_b32 v12, v14 offset:{rdy}
        s_mov_b64 exec, -1
        L_pc{tag}:
        ds_read_b32 v14, v12 offset:{rdy}
        s_waitcnt lgkmcnt(0)
        v_readfirstlane_b32 s{sT}, v14
        s_andn2_b32 s{sPoll}, s{sPoll}, s{sT}''')
        return
    A(f'''v_readfirstlane_b32 s{sT}, v15
    v_mov_b32 v14, s{sPoll}
    s_cmp_lg_u32 s{sT}, 1
    s_cbranch_scc1 L_pc{tag}
    s_mov_b64 exec, 1
    ds_or_b32 v12, v14 offset:{rdy}
    s_mov_b64 exec, -1
    s_mov_b32 s{sPoll}, 0
    L_pc{tag}:
    ds_read_b32 v14, v12 offset:{rdy}
    s_waitcnt lgkmcnt(0)
    v_readfirstlane_b32 s{sT}, v14''')
def nb_loads(ty, tag, far=False):
    CT[0] = UNITS[ty]['tiles']
    def ld(t):
        base = sKB1 if t >= -4 else sKB2
        T = t % 4
        A(f'buffer_load_dwordx4 {vr(kf(t),4)}, v2, {srd(WS)}, s{base} offen offset:{T*1024}{LDSC}')
        A(f's_mov_b64 exec, s[{sHalf}:{sHalf+1}]')
        for a in range(2):
            A(f'buffer_load_dwordx4 {vr(vf(t,a),4)}, v3, {srd(WS)}, s{base} offen offset:{T*1024+a*512}{LDSC}')
        A('s_mov_b64 exec, -1')
    for t in (CT[0][4:6] if far else CT[0][2:4]): ld(t)
    A(f's_mov_b32 s{sEarly}, 1\ns_andn2_b32 s{sPoll}, s{sPoll}, s{sNeed}')
def kv_block(ty, tag):
    A(f's_mov_b32 s{sSpin}, 0\nL_pkv{ty}{tag}:')
    kv_check(ty, f'b{tag}')
    A(f'''s_cmp_eq_u32 s{sT}, s{sNeed}
    s_cbranch_scc1 L_pkv{ty}{tag}_ok
    s_add_u32 s{sSpin}, s{sSpin}, 1
    s_sleep {SLP}
    s_cmp_lt_u32 s{sSpin}, 0x40000
    s_cbranch_scc1 L_pkv{ty}{tag}
    L_pkv{ty}{tag}_ok:''')
def kv_check(ty, tag):
    poll_check(R_KV, f'k{ty}{tag}', lambda: A('s_waitcnt vmcnt(0)'))
    A(f's_andn2_b32 s{sPoll}, s{sPoll}, s{sT}')
    poll_issue(4, f'k{ty}{tag}')
    A(f's_and_b32 s{sT}, s{sT}, s{sNeed}')
def poll_step(ty, tag):
    A(f's_cmp_eq_u32 s{sPoll}, 0\ns_cbranch_scc1 L_ps{ty}{tag}')
    kv_check(ty, tag)
    A(f'L_ps{ty}{tag}:')
def try_load(ty, tag, nopoll=False):
    A(f's_cmp_lg_u32 s{sEarly}, 0\ns_cbranch_scc1 L_tl{ty}{tag}')
    if nopoll: A(f'ds_read_b32 v14, v12 offset:{R_KV}\ns_waitcnt lgkmcnt(0)\nv_readfirstlane_b32 s{sT}, v14\ns_and_b32 s{sT}, s{sT}, s{sNeed}')
    else: kv_check(ty, tag)
    A(f's_cmp_lg_u32 s{sT}, s{sNeed}\ns_cbranch_scc1 L_tl{ty}{tag}')
    nb_loads(ty, tag)
    A(f'L_tl{ty}{tag}:')

def publish(sa, cnt, last, tag, rdy=None):
    A(f'''v_mov_b32 v14, 1
    s_mov_b64 exec, 1
    s_waitcnt vmcnt(0)
    ds_add_rtn_u32 v13, v12, v14 offset:{cnt}
    s_waitcnt lgkmcnt(0)
    v_readfirstlane_b32 s{sT}, v13
    s_cmp_lg_u32 s{sT}, {last}
    s_cbranch_scc1 L_pub{tag}
    buffer_store_dword v14, v12, {srd(WS)}, s{sa} offen sc1''')
    if rdy:
        A(f's_lshl_b32 s{sT}, s{sHG}, 2\ns_lshl_b32 s{sT}, 1, s{sT}\nv_mov_b32 v13, s{sT}\nds_or_b32 v12, v13 offset:{rdy}')
    A(f'L_pub{tag}:\ns_mov_b64 exec, -1')

RG = SB
TRY = {0: (2, 4), 1: (2, 4)}
PRIO = opt('prio', 1)
PV2 = opt('pv', 2)
def attention(ty):
    U = UNITS[ty]; CT[0] = U['tiles']
    own = U['tiles'][:2]
    if ty == 0:
        publish(sFl, C_KV, 3, 'k')
        if ST2 == 2: stamp(1)
        poll_issue(4, 'x0')
        if WARM & 1:
            A(f'''v_and_b32 v13, 15, v0
            v_lshlrev_b32 v13, 7, v13
            v_lshrrev_b32 v14, 4, v0
            v_lshl_add_u32 v13, v14, 12, v13
            buffer_load_dword v250, v13, {srd(WS)}, s{sE1} offen''')
    for q in range(4): A(f'ds_read_b128 {vr(QF+4*q,4)}, v7 offset:{32768+q*1024}')
    for t in own: A(f'ds_read_b128 {vr(kf(t),4)}, v7 offset:{t*1024}')
    for g in range(4): A(f'ds_read_b128 {vr(MK+4*g,4)}, v2 offset:{L_M+g*1024}')
    A(f's_mov_b64 exec, s[{sHalf}:{sHalf+1}]')
    for t in own:
        for a in range(2): A(f'ds_read_b128 {vr(vf(t,a),4)}, v8 offset:{16384+t*1024+a*512}')
    A('s_mov_b64 exec, -1')
    A('s_waitcnt lgkmcnt(4)')
    started = set() if ty == 0 else {0}
    MID = {0: {3: lambda: try_load(0, 'm3'), 4: lambda: try_load(0, 'm4', True)},
           1: {3: lambda: poll_issue(4, 'y3'), 4: lambda: try_load(1, 'm4', PV2 == 0)}}
    if PV2 == 2: MID[0] = {2: lambda: try_load(0, 'm3'), 4: lambda: try_load(0, 'm4')}
    done = [False]
    def pre_pv(u):
        if not done[0]: A('s_waitcnt lgkmcnt(0)'); done[0] = True
    segment(U['own'], started, pre_pv=pre_pv, mid=MID[ty])
    stamp(4)
    Lfin = f'L_fin{ty}'
    A(f'''s_cmp_lg_u32 s{sEarly}, 0
    s_cbranch_scc1 L_have{ty}''')
    kv_block(ty, 'n')
    nb_loads(ty, 'b')
    A(f'L_have{ty}:')
    if opt('exp', 0) and ty == 1: A('s_branch L_have0')
    stamp(5)
    A(f's_cmp_eq_u32 s{sRB}, 0\ns_cbranch_scc1 L_z{ty}')
    LB = f'L_B{ty}'
    nd = [0]
    def dm(j):
        def f():
            if not WOE: wo_dma(j); nd[0] += 1
        return f
    A(f's_cmp_eq_u32 s{sRB}, 1\ns_cbranch_scc1 {LB}_only')
    def mk_wait(order):
        seen = set()
        def w(u):
            t = u[1]
            if t not in seen:
                seen.add(t)
                k = order.index(t)
                A(f's_waitcnt vmcnt({(3 if k == 0 else 3*(len(order)-1-k))+nd[0]})')
        return w
    for r in range(16): A(f'v_sub_f32 v{MK+r}, {f2u(-BIG)}, v{MK+r}')
    if PRIO:
        dm0 = dm
        def dm(j):
            f0 = dm0(j)
            def f():
                f0()
                if PRIO == 1 and ty == 1 and j in (0, PSW): A(f's_setprio {1 if j == 0 else 0}')
                if PRIO == 2 and ty == 1: A(f's_setprio {1 - (j & 1)}')
                if PRIO == 3 and ty == 1 and j == 0: A('s_setprio 1')
            return f
    midC = {i+WOS: dm(i) for i in range(8)}
    def farload():
        A(f's_mov_b32 s{sNeed}, 2')
        kv_block(ty, 'f')
        nb_loads(ty, 'f', True)
    midC[CU] = farload
    segment(U['B'] + U['C'], set(started), pre_qk=mk_wait(U['tiles'][2:6]), mid=midC)
    A(f's_branch {Lfin}\nL_z{ty}:')
    for j in range(0 if WOE else 8): wo_dma(j)
    A(f's_branch {Lfin}')
    nd[0] = 0
    A(f'{LB}_only:')
    segment(U['B'], set(started), pre_qk=mk_wait(U['tiles'][2:4]), mid={i: dm(i) for i in range(8)})
    A(f'{Lfin}:')
    if PRIO: A('s_setprio 0')
    A('s_nop 10')
    stamp(6)
    send = [q for q in range(4) if q not in U['keep']]
    for a, q in enumerate(send):
        o = OA + 16*q
        A(f'ds_write_b128 v5, {vr(o,4)} offset:{a*2048}\nds_write_b128 v5, {vr(o+4,4)} offset:{a*2048+1024}')
        A(f'ds_write_b32 v10, v{o+8} offset:{4096+a*256}')
    A('s_waitcnt vmcnt(0) lgkmcnt(0)')
    if ST2 == 1: stamp(1)
    A('s_barrier')
    if ST2 == 1: stamp(2)
    if P2: A(f's_and_b32 s{sT}, s{sW}, 6\ns_lshl_b32 s{sT}, s{sT}, 2\ns_lshl_b32 s{sPoll}, 0x11, s{sT}\ns_lshl_b32 s{sT}, s{sHG}, 2\ns_bitset0_b32 s{sPoll}, s{sT}')
    else: A(f's_lshl_b32 s{sT}, s{sW}, 2\ns_lshl_b32 s{sPoll}, 1, s{sT}\ns_cmp_eq_u32 s{sW}, s{sHG}\ns_cselect_b32 s{sPoll}, 0, s{sPoll}')
    poll_issue(9, f'o{ty}')
    for a in range(2):
        A(f'ds_read_b32 v{RG+16+a}, v11 offset:{4096+a*256}')
        A(f'ds_read_b128 {vr(RG+8*a,4)}, v6 offset:{a*2048}\nds_read_b128 {vr(RG+8*a+4,4)}, v6 offset:{a*2048+1024}')
    for a, q in enumerate(U['keep']):
        o = OA + 16*q
        A(f's_waitcnt lgkmcnt({3-3*a})')
        A(f'v_add_f32 v{RG+16+a}, v{RG+16+a}, v{o+8}')
        for j in range(8): A(f'v_add_f32 v{RG+8*a+j}, v{RG+8*a+j}, v{o+j}')
    if ty == 1:
        for j in range(8): A(f'v_mov_b32 v{QF+j}, v{QF+8+j}')

def finalize():
    A(f'''L_final:
    v_rcp_f32 v{RG+18}, v{RG+16}
    v_rcp_f32 v{RG+19}, v{RG+17}
    s_lshr_b32 s{sT}, s{sW}, 2
    s_lshl_b32 s{sT}, s{sT}, 13
    s_add_u32 s{sT}, s{sT}, s{sOb}
    s_add_u32 s{sT2}, s{sT}, 4096''')
    for a in range(2):
        o = RG + 8*a
        for j in range(8): A(f'v_mul_f32 v{o+j}, v{o+j}, v{RG+18+a}')
        for j in range(4): A(f'v_cvt_pk_bf16_f32 v{PK+4*a+j}, v{o+2*j}, v{o+2*j+1}')
        A(f'buffer_store_dwordx4 {vr(PK+4*a,4)}, v2, {srd(WS)}, s{sT2 if a else sT} offen sc1')
    for a in range(2):
        o = RG + 8*a; l = RG + 16 + a; m = f's[{70 if a else 58}:{71 if a else 59}]'
        A(f'v_cmp_lt_f32 {m}, s{sLo}, v{l}\nv_cmp_gt_f32 vcc, s{sHi}, v{l}\ns_and_b64 {m}, {m}, vcc')
        A(f'v_add_f32 v{l+4}, |v{o}|, |v{o+1}|')
        for j in range(2, 8): A(f'v_add_f32 v{l+4}, v{l+4}, |v{o+j}|')
    A(f'''v_add_f32 v{RG+20}, v{RG+20}, v{RG+21}
    s_and_b64 s[58:59], s[58:59], s[70:71]
    s_mov_b32 s{sT}, 0x7f800000
    v_cmp_gt_f32 vcc, s{sT}, v{RG+20}
    s_and_b64 s[58:59], s[58:59], vcc
    s_cmp_eq_u64 s[58:59], -1
    s_cselect_b32 s{sT}, {0 if FORCE_FB else 1}, 0
    s_or_b32 s{sT}, s{sT}, s{sFB}
    s_cbranch_scc0 L_fb''')
    if ST2: stamp(3 if ST2 == 1 else 2)

def fallback():
    A('L_fb:')
    sG, sG0, sQ, sA, sBv, sAd = 42, 43, 44, 45, 46, 47
    S = OA + 32; CB = OA + 48; MX = 248
    for g in range(4): A(f'ds_read_b128 {vr(MK+4*g,4)}, v2 offset:{L_M+g*1024}')
    A(f'''s_mov_b32 s{sFB}, 1
    s_lshr_b32 s{sQ}, s{sW}, 2
    s_lshl_b32 s{sQ}, s{sQ}, 1
    s_lshl_b32 s{sT}, s{sRB}, 2
    s_add_u32 s{sQ}, s{sQ}, s{sT}
    s_max_u32 s{sG0}, s{sQ}, 8
    s_sub_u32 s{sG0}, s{sG0}, 8
    v_mov_b32 v{MX}, 0xff800000
    v_mov_b32 v{MX+1}, 0xff800000''')
    for r in range(32): A(f'v_mov_b32 v{OA+r}, 0')
    A('s_waitcnt lgkmcnt(0)')
    for ps in range(2):
        A(f'''s_mov_b32 s{sG}, s{sG0}
        L_fbl{ps}:
        s_lshr_b32 s{sT}, s{sG}, 2
        s_sub_u32 s{sT}, s{sT}, s{sRB}
        s_add_u32 s{sT}, s{sT}, 2
        s_lshl_b32 s{sT}, s{sT}, 18
        s_add_u32 s{sAd}, s{sKB2}, s{sT}
        s_and_b32 s{sT}, s{sG}, 3
        s_lshl_b32 s{sT}, s{sT}, 10
        s_add_u32 s{sAd}, s{sAd}, s{sT}
        buffer_load_dwordx4 {vr(KF,4)}, v2, {srd(WS)}, s{sAd} offen sc1
        s_mov_b64 exec, s[{sHalf}:{sHalf+1}]
        buffer_load_dwordx4 {vr(VF,4)}, v3, {srd(WS)}, s{sAd} offen sc1
        buffer_load_dwordx4 {vr(VF+4,4)}, v3, {srd(WS)}, s{sAd} offen offset:512 sc1
        s_mov_b64 exec, -1
        s_waitcnt vmcnt(0)''')
        for a in range(2):
            A(f'''s_sub_u32 s{sT}, s{sQ}, s{sG}
            s_add_u32 s{sT}, s{sT}, {a}
            s_cmp_eq_u32 s{sT}, 0
            s_cselect_b32 s{sA}, 1.0, 0
            s_cmp_eq_u32 s{sT}, 8
            s_cselect_b32 s{sA}, -1.0, s{sA}
            s_cmp_ge_u32 s{sT}, 8
            s_cselect_b32 s{sBv}, {f2u(-BIG)}, 0''')
            A(f'v_mov_b32 v14, s{sBv}')
            for r in range(16): A(f'v_fma_f32 v{CB+r}, v{MK+r}, s{sA}, v14')
            if ps:
                for r in range(16): A(f'v_sub_f32 v{CB+r}, v{CB+r}, v{MX+a}')
            A(f'{MFMA} {vr(S,16)}, {vr(KF,4)}, {vr(QF+4*a,4)}, {vr(CB,16)}')
            if ps == 0:
                for j in range(8): A(f'v_max3_f32 v{MX+a}, v{S+2*j}, v{S+2*j+1}, v{MX+a}')
            else:
                for r in range(16): A(f'v_exp_f32 v{S+r}, v{S+r}')
                for j in range(8): A(f'v_cvt_pk_bf16_f32 v{S+j if j < 4 else S+4+j}, v{S+2*j}, v{S+2*j+1}')
                for h in range(2):
                    A(f'{MFMA} {vr(OA+16*a,16)}, {vr(VF+4*h,4)}, {vr(S+8*h,4)}, {vr(OA+16*a,16)}')
                A('s_nop 7')
        A(f'''s_add_u32 s{sG}, s{sG}, 1
        s_add_u32 s{sT}, s{sQ}, 1
        s_cmp_le_u32 s{sG}, s{sT}
        s_cbranch_scc1 L_fbl{ps}''')
        if ps == 0:
            for a in range(2):
                A(f'v_mov_b32 v14, v{MX+a}\ns_nop 1\nv_permlane32_swap_b32 v{MX+a}, v14\nv_max_f32 v{MX+a}, v{MX+a}, v14')
    A('s_nop 7')
    for a in range(2):
        for j in range(8): A(f'v_mov_b32 v{RG+8*a+j}, v{OA+16*a+j}')
        A(f'v_mov_b32 v{RG+16+a}, v{OA+16*a+8}')
    A('L_codeend:\ns_branch L_final')

WF = 16; OF = 144; AC3 = 208
def wait_chain(sreg, nmax, per, extra, tag):
    for n in range(nmax, 0, -1):
        A(f's_cmp_ge_u32 s{sreg}, {n}\ns_cbranch_scc1 L_wc{tag}_{n}')
    A(f's_waitcnt vmcnt({extra})')
    for n in range(1, nmax+1):
        A(f'L_wc{tag}_{n}:\ns_waitcnt vmcnt({per*n+extra})')
def wait_dyn(_):
    A(f's_bcnt1_i32_b32 s{sT2}, s{sNew}')
    wait_chain(sT2, 4, 4, 0, 'f')
def o_issue(tag, wait):
    poll_check(R_O, f'o{tag}', wait)
    A(f'''s_and_b32 s{sT2}, s{sW}, 4
    s_lshl_b32 s{sT2}, s{sT2}, 2
    s_lshr_b32 s{sT}, s{sT}, s{sT2}
    s_cmp_ge_u32 s{sSpin}, 0x40000
    s_cselect_b32 s{sT}, -1, s{sT}
    s_and_b32 s{sT}, s{sT}, 0x1111
    s_andn2_b32 s{sNew}, s{sT}, s{sIss}
    s_or_b32 s{sIss}, s{sIss}, s{sNew}''')
    if tag == 'b': A(f's_or_b32 s{sT}, s{sNew}, s{sM}\ns_cbranch_scc1 L_oi{tag}s\ns_sleep {SLP}\nL_oi{tag}s:')
    poll_issue(9, f'o{tag}')
    for g in range(4):
        A(f's_bitcmp0_b32 s{sNew}, {4*g}\ns_cbranch_scc1 L_oi{tag}{g}\ns_add_u32 s{sT}, s{sN2}, {g*16384}')
        for j in range(4):
            A(f'buffer_load_dwordx4 {vr(OF+16*g+4*j,4)}, v2, {srd(WS)}, s{sT} offen offset:{j*1024}{LDSC}')
        A(f'L_oi{tag}{g}:')
def phase3():
    A(f'''s_andn2_b32 s{sN2}, s{sWG}, 7
    s_and_b32 s{sT3}, s{sW}, 4
    s_add_u32 s{sN2}, s{sN2}, s{sT3}
    s_lshl_b32 s{sN2}, s{sN2}, 14
    s_and_b32 s{sT3}, s{sW}, 3
    s_lshl_b32 s{sT3}, s{sT3}, 12
    s_add_u32 s{sN2}, s{sN2}, s{sT3}
    s_add_u32 s{sN2}, s{sN2}, {WS_O}
    s_mov_b32 s{sIss}, 0
    s_mov_b32 s{sSpin}, 0''')
    A(f'''v_bfe_u32 v3, v0, 2, 2
    v_lshrrev_b32 v8, 5, v0
    v_lshl_add_u32 v3, v8, 2, v3
    v_lshlrev_b32 v11, 7, v3
    v_bfe_u32 v3, v0, 4, 1
    v_lshlrev_b32 v3, 1, v3
    v_bfe_u32 v10, v0, 1, 1
    v_or_b32 v3, v3, v10
    v_bfe_u32 v10, v0, 3, 1
    v_lshl_or_b32 v3, v10, 2, v3
    v_lshl_add_u32 v11, v3, 4, v11
    v_and_b32 v3, 1, v0
    v_lshl_add_u32 v11, v3, 3, v11
    s_lshr_b32 s{sT3}, s{sW}, 2
    s_lshl_b32 s{sT3}, s{sT3}, 15
    s_add_u32 s{sT3}, s{sT3}, {L_WO}
    v_add_u32 v11, s{sT3}, v11
    v_xor_b32 v7, 64, v11''')
    def wfr(lo, hi):
        for i in range(lo, hi):
            for nt in range(2):
                for j in range(2):
                    A(f'ds_read_b64_tr_b16 {vr(WF+8*i+4*nt+2*j,2)}, v{7 if nt else 11} offset:{i*2048+j*1024}')
    for r in range(32): A(f'v_mov_b32 v{AC3+r}, 0')
    A(f'''v_and_b32 v10, 31, v0
    v_lshlrev_b32 v10, 11, v10
    v_lshl_add_u32 v10, v8, 4, v10
    s_and_b32 s{sT}, s{sW}, 3
    s_lshl_b32 s{sN1}, s{sRB}, 2
    s_add_u32 s{sN1}, s{sN1}, s{sT}
    s_lshl_b32 s{sN1}, s{sN1}, 16
    s_lshl_b32 s{sT}, s{sB}, 10
    s_add_u32 s{sN1}, s{sN1}, s{sT}
    s_lshl_b32 s{sT}, s{sHG}, 7
    s_add_u32 s{sN1}, s{sN1}, s{sT}
    s_and_b32 s{sT}, s{sW}, 4
    s_lshl_b32 s{sT}, s{sT}, 4
    s_add_u32 s{sN1}, s{sN1}, s{sT}''')
    if ST2 == 1: stamp(4)
    publish(sFo, C_O, 7, 'o', R_O)
    if WARM & 2:
        A(f'''v_and_b32 v13, 7, v0
        v_lshlrev_b32 v13, 7, v13
        v_bfe_u32 v14, v0, 3, 1
        v_lshl_add_u32 v13, v14, 12, v13
        s_lshr_b32 s{sT}, s{sW}, 2
        s_lshl_b32 s{sT}, s{sT}, 13
        s_add_u32 s{sT}, s{sT}, s{sOb}
        s_mov_b64 exec, 0xffff
        buffer_load_dword v250, v13, {srd(WS)}, s{sT} offen
        s_mov_b64 exec, -1''')
    stamp(7)
    o_issue('a', lambda: None)
    stamp(8)
    if not WPG: wfr(0, 16)
    if ST2 == 2: stamp(4)
    A(f'''s_waitcnt lgkmcnt(0)
    L_p3l:
    s_mov_b32 s{sM}, s{sNew}
    s_mov_b32 s{sL}, 0
    s_mov_b32 s{sNew}, 0
    s_cmp_eq_u32 s{sIss}, 0x1111
    s_cbranch_scc1 L_p3m
    s_add_u32 s{sSpin}, s{sSpin}, 1
    s_bcnt1_i32_b32 s{sT2}, s{sM}''')
    o_issue('b', lambda: wait_chain(sT2, 3, 4, 0, 'p'))
    stamp(8)
    A(f's_bcnt1_i32_b32 s{sL}, s{sNew}\nL_p3m:')
    for g in range(4):
        A(f's_bitcmp0_b32 s{sM}, {4*g}\ns_cbranch_scc1 L_om{g}')
        A(f's_lshr_b32 s{sT}, s{sM}, {4*g+4}\ns_bcnt1_i32_b32 s{sT2}, s{sT}\ns_add_u32 s{sT2}, s{sT2}, s{sL}')
        if WPG: wfr(4*g, 4*g+4)
        wait_chain(sT2, 3, 4, 0, f'm{g}')
        for j in range(4):
            for nt in range(2):
                acc = vr(AC3+16*nt, 16); i = 4*g + j
                if WPG: A(f's_waitcnt lgkmcnt({14-4*j-2*nt})')
                A(f'{MFMA} {acc}, {vr(WF+8*i+4*nt,4)}, {vr(OF+4*i,4)}, {acc}')
        A(f'L_om{g}:')
    A(f'''s_cmp_lg_u32 s{sIss}, 0x1111
    s_cbranch_scc1 L_p3l
    s_cmp_lg_u32 s{sNew}, 0
    s_cbranch_scc1 L_p3l''')
    A(f's_lshr_b32 s{sT2}, s{sW}, 2\ns_nop 7\ns_nop 3')
    stamp(9)
    for kh in range(2):
        if kh == 0: A(f's_cmp_lg_u32 s{sT2}, 0\ns_cbranch_scc1 L_x1')
        else: A('L_x1:')
        send = AC3 + 16*(1-kh); keep = AC3 + 16*kh
        for g in range(4): A(f'ds_write_b128 v6, {vr(send+4*g,4)} offset:{g*1024}')
        A('s_waitcnt lgkmcnt(0)\ns_barrier')
        for g in range(4): A(f'ds_read_b128 {vr(16+4*g,4)}, v5 offset:{g*1024}')
        for g in range(4):
            A(f's_waitcnt lgkmcnt({3-g})')
            for r in range(4): A(f'v_add_f32 v{keep+4*g+r}, v{keep+4*g+r}, v{16+4*g+r}')
            for j in range(2): A(f'v_cvt_pk_bf16_f32 v{32+2*g+j}, v{keep+4*g+2*j}, v{keep+4*g+2*j+1}')
        if kh == 0: A('s_branch L_x2')
    A('L_x2:\ns_nop 1')
    for p in range(2):
        A(f'v_permlane32_swap_b32 v{32+4*p}, v{34+4*p}\nv_permlane32_swap_b32 v{33+4*p}, v{35+4*p}')
        A(f'buffer_store_dwordx4 {vr(32+4*p,4)}, v10, {srd(OUT)}, s{sN1} offen offset:{32*p}' + ['', ' sc1', ' nt', ' sc0 sc1', ' sc1 nt'][OST])
    if PROF:
        A('s_waitcnt vmcnt(0)')
        stamp(10)
        A(f'''s_lshl_b32 s{sT}, s2, 3
        s_add_u32 s{sT}, s{sT}, s{sW}
        s_lshl_b32 s{sT}, s{sT}, 7
        s_add_u32 s{sT}, s{sT}, {WS_ST}
        v_mov_b32 v1, 0''')
        for i in range(11):
            A(f'v_mov_b32 v2, s{sST+2*i}\nbuffer_store_dword v2, v1, {srd(WS)}, s{sT} offen offset:{4*i}')
        A(f'v_mov_b32 v2, s100\nbuffer_store_dword v2, v1, {srd(WS)}, s{sT} offen offset:60')
        A('s_mov_b32 s99, s100\ns_memrealtime s[100:101]\ns_waitcnt lgkmcnt(0)')
        A(f'v_mov_b32 v2, s100\nbuffer_store_dword v2, v1, {srd(WS)}, s{sT} offen offset:56')
    if DBGP:
        A(f'''s_mov_b64 exec, 1
        v_mov_b32 v2, s100
        buffer_atomic_umax v2, v1, {srd(DBG)}, 0 offen offset:56
        s_not_b32 s{sT}, s99
        v_mov_b32 v3, s{sT}
        buffer_atomic_umax v3, v1, {srd(DBG)}, 0 offen offset:60
        s_cmp_lg_u32 s2, {opt('dw', 77)}
        s_cbranch_scc1 L_end
        s_cmp_lg_u32 s{sW}, {opt('dv', 0)}
        s_cbranch_scc1 L_end''')
        for i in range(1, 11):
            A(f's_sub_u32 s{sT}, s{sST+2*i}, s{sST}\nv_mov_b32 v2, s{sT}\nbuffer_store_dword v2, v1, {srd(DBG)}, 0 offen offset:{12+4*i}')
        A('s_branch L_end\nL_dbg4:')
        for k, i in enumerate(()):
            A(f's_sub_u32 s{sT}, s{sST+2*i}, s{sST}\nv_mov_b32 v2, s{sT}\nbuffer_store_dword v2, v1, {srd(DBG)}, 0 offen offset:{52+4*k}')
    A('L_end:\ns_endpgm')

prologue()
def xpart():
    compute_p1()
    attention(0)
    A('s_branch L_final')
if not ORD: xpart()
loader_p1()
stamp(3)
attention(1)
finalize()
phase3()
if ORD: xpart()
fallback()
body, nadd = A.finish()
hdr = open('cdna_kernels/' + NAME + '.s.ref').read().split('; Override launch')[0]
out = hdr + f'''; @launch grid=(256,1,1) block=(512,1,1) lds=163840
.amdgcn_target "amdgcn-amd-amdhsa--gfx950"
.text
.globl {NAME}_kernel
.p2align 8
.type {NAME}_kernel,@function
{NAME}_kernel:
{body}.section .rodata,"a"
.p2align 6
.amdhsa_kernel {NAME}_kernel
  .amdhsa_next_free_vgpr 256
  .amdhsa_next_free_sgpr 102
  .amdhsa_accum_offset 256
  .amdhsa_group_segment_fixed_size 0
  .amdhsa_kernarg_size 72
  .amdhsa_user_sgpr_count 2
  .amdhsa_user_sgpr_kernarg_segment_ptr 1
  .amdhsa_system_sgpr_workgroup_id_x 1
.end_amdhsa_kernel
'''
dst = [a for a in sys.argv[1:] if not a.startswith('--')]
open(dst[0] if dst else 'cdna_kernels/' + NAME + '.s', 'w').write(out)
print('nops inserted', nadd, 'lines', body.count('\n'))
```
